```python
import torch

def _softmax(x, axis=-1):
    return torch.softmax(x, dim=axis)
def _gelu(x):
    return torch.nn.functional.gelu(x, approximate="tanh")
def _silu(x):
    return torch.nn.functional.silu(x)
def _sigmoid(x):
    return torch.sigmoid(x)
def _layernorm(x, axis=-1, eps=1e-5):
    m = x.mean(dim=axis, keepdim=True)
    v = x.var(dim=axis, keepdim=True, unbiased=False)
    return (x - m) / torch.sqrt(v + eps)
def _scatter_add(tgt, idx, src, axis=0):
    return tgt.clone().index_add_(axis, idx, src)
def _segment_sum(src, seg, n):
    out = torch.zeros((n,) + src.shape[1:], dtype=src.dtype)
    return out.index_add_(0, seg, src)
def _pad(x, pw):
    flat = tuple(v for pair in reversed(pw) for v in pair)
    return torch.nn.functional.pad(x, flat)

kernel_name = 'parallel_sum__mha_block_cached__dense_activation_silu__decode'

def setup_inputs():

    _w = (lambda a: (lambda t: t.to(torch.bfloat16) if t.is_floating_point() else t)(torch.as_tensor(a)))
    def _A_setup():
        B, Sq, D = 4, 1, 640
        H, Sk, Dh = 32, 8192, 192
        return {
            "x": _w((lambda *s: torch.randn(*s, dtype=torch.bfloat16) * 0.05)(B, Sq, D)),
            "k_cache": _w((lambda *s: torch.randn(*s, dtype=torch.bfloat16) * 3.2)(B, H, Sk, Dh)),
            "v_cache": _w((lambda *s: torch.randn(*s, dtype=torch.bfloat16) * 0.8)(B, H, Sk, Dh)),
            "wq": _w((lambda *s: torch.randn(*s, dtype=torch.bfloat16) * 3.2)(D, H * Dh) * (D ** -0.5)),
            "wo": _w((lambda *s: torch.randn(*s, dtype=torch.bfloat16) * 0.8)(H * Dh, D) * ((H * Dh) ** -0.5)),
        }
    _A_in = _A_setup()

    def _B_setup():
        B, S, D, F = 4, 1, 640, 1536
        return {
            "x": _w((lambda *s: torch.randn(*s, dtype=torch.bfloat16) * 0.05)(B, S, D)),
            "w1": _w((lambda *s: torch.randn(*s, dtype=torch.bfloat16) * 3.2)(D, F) * (D ** -0.5)),
            "w2": _w((lambda *s: torch.randn(*s, dtype=torch.bfloat16) * 0.4)(F, D) * (F ** -0.5)),
        }
    _B_in = _B_setup()

    return {
        "A_x": _A_in["x"],
        "A_k_cache": _A_in["k_cache"],
        "A_v_cache": _A_in["v_cache"],
        "A_wq": _A_in["wq"],
        "A_wo": _A_in["wo"],
        "B_x": _B_in["x"],
        "B_w1": _B_in["w1"],
        "B_w2": _B_in["w2"],
    }

def reference(A_x, A_k_cache, A_v_cache, A_wq, A_wo, B_x, B_w1, B_w2):
    def _A_ref(x, k_cache, v_cache, wq, wo):
        B, Sq, D = x.shape
        H, Dh = 32, 192
        q = (lambda x, *d: x.permute(*d))((x @ wq).reshape(B, Sq, H, Dh), 0, 2, 1, 3)
        scores = torch.einsum("bhqd,bhkd->bhqk", q, k_cache) * (Dh ** -0.5)
        p = _softmax(scores, axis=-1)
        o = torch.einsum("bhqk,bhkd->bhqd", p, v_cache)
        return (lambda x, *d: x.permute(*d))(o, 0, 2, 1, 3).reshape(B, Sq, H * Dh) @ wo

    def _B_ref(x, w1, w2):
        h = torch.einsum("bsd,df->bsf", x, w1)
        h = _silu(h)
        out = torch.einsum("bsf,fd->bsd", h, w2)
        return out

    x = A_x
    xn = _layernorm(x, axis=-1)
    return x + _A_ref(xn, A_k_cache, A_v_cache, A_wq, A_wo) + _B_ref(xn, B_w1, B_w2)
```

```python
import struct
import sys

NAME = "parallel_sum__mha_block_cached__dense_activation_silu__decode"
KV_BYTES = 4 * 32 * 8192 * 192 * 2
REGION = 3 << 20
WIN = 196608

QP, YP, OP, FL, SC, WS_END = 0x0, 0x140000, 0x1B0000, 0x1F0000, 0x200000, 0x400000
STAMPS = 0x1000000
L_S, L_P, L_ORED, L_OBUF, L_Q, L_C = 0x0, 0x2000, 0x4000, 0x5800, 0x5E00, 0x6000
C_CLR, C_PROBE, C_VOTE, C_QRDY, C_KSEG, C_PRDY, C_MAXC, C_OCNT, C_HS, C_F = (
    L_C + 0, L_C + 4, L_C + 8, L_C + 16, L_C + 20, L_C + 24, L_C + 28, L_C + 32, L_C + 36, L_C + 40)
C_MAX, C_LSUM = L_C + 48, L_C + 80
LDS_BYTES = 0x6100


def f32(x):
    return "0x%08x" % struct.unpack("<I", struct.pack("<f", x))[0]


def block_rows(b):
    t, r = divmod(b, 3)
    lo, hi = ((0, 21), (21, 43), (43, 64))[r]
    return list(range(64 * t + lo, 64 * t + hi))


def row_table():
    T = []
    for sig in range(2):
        lo = sum((block_rows(sig + o) for o in (0, 2, 8, 10, 16, 18)), [])
        up = sum((block_rows(sig + o + 4) for o in (0, 2, 8, 10, 16, 18)), [])
        T.append([[[(lo if g < 4 else up)[4 * (8 * w + t) + (g & 3)] for t in range(8)]
                   for g in range(8)] for w in range(4)])
    return T


class Gen:
    def __init__(self, opt):
        self.o = opt
        self.L = []
        self.nlab = 0
        self.nstamp = {}

    def __call__(self, text):
        for line in text.strip("\n").split("\n"):
            line = line.strip()
            if line:
                self.L.append(line if line.endswith(":") else "  " + line)

    def lab(self, base):
        self.nlab += 1
        return f"L_{base}{self.nlab}"

    def stamp(self, idx):
        if self.o["stamps"]:
            self(f"s_memrealtime s[78:79]\ns_waitcnt lgkmcnt(0)\ns_mov_b32 s{80 + idx}, s78")

    def spin_lds(self, off, target, sleep=1, wide=False):
        lp, dn = self.lab("sp"), self.lab("sd")
        self("s_mov_b32 s12, 0x40000")
        self(f"{lp}:")
        if wide:
            self(f"ds_read_b64 v[6:7], v1 offset:{off}")
        else:
            self(f"ds_read_b32 v6, v1 offset:{off}")
        self("s_waitcnt lgkmcnt(0)\nv_readfirstlane_b32 s10, v6")
        if wide:
            self("v_readfirstlane_b32 s11, v7")
        self(f"""
            s_cmp_ge_u32 s10, {target}
            s_cbranch_scc1 {dn}
            s_sleep {sleep}
            s_sub_u32 s12, s12, 1
            s_cbranch_scc0 {lp}
            s_branch L_end
            {dn}:""")

    def lds_inc(self, off, ret=False):
        self("s_mov_b64 exec, 1\nv_mov_b32 v5, 1")
        if ret:
            self(f"ds_add_rtn_u32 v6, v1, v5 offset:{off}\ns_waitcnt lgkmcnt(0)\nv_readfirstlane_b32 s10, v6")
        else:
            self(f"ds_add_u32 v1, v5 offset:{off}")
        self("s_mov_b64 exec, -1")

    def poll(self, loads, regs, sleep):
        lp, dn = self.lab("pl"), self.lab("pd")
        self("s_mov_b32 s12, 0x4000")
        self(f"{lp}:")
        self(loads)
        self("s_waitcnt vmcnt(0)")
        self(f"v_max3_u32 v5, v{regs[0]}, v{regs[1]}, v{regs[2]}")
        rest = regs[3:]
        while len(rest) >= 2:
            self(f"v_max3_u32 v5, v5, v{rest[0]}, v{rest[1]}")
            rest = rest[2:]
        if rest:
            self(f"v_max_u32 v5, v5, v{rest[0]}")
        self(f"""
            v_cmp_eq_u32 vcc, -1, v5
            s_cmp_eq_u64 vcc, 0
            s_cbranch_scc1 {dn}""")
        if sleep:
            self(f"s_sleep {sleep}")
        self(f"""
            s_sub_u32 s12, s12, 1
            s_cbranch_scc0 {lp}
            s_branch L_end
            {dn}:""")

    def rows4_reduce(self, r):
        self(f"""
            s_nop 1
            v_permlane16_swap_b32 v{r}, v{r+1}
            v_permlane16_swap_b32 v{r+2}, v{r+3}
            s_nop 1
            v_add_f32 v{r}, v{r}, v{r+1}
            v_add_f32 v{r+2}, v{r+2}, v{r+3}
            s_nop 1
            v_permlane32_swap_b32 v{r}, v{r+2}
            s_nop 1
            v_add_f32 v{r}, v{r}, v{r+2}""")

    def row16_allreduce(self, op, r):
        for ctl in ("quad_perm:[1,0,3,2]", "quad_perm:[2,3,0,1]", "row_half_mirror", "row_mirror"):
            self(f"s_nop 1\n{op}_dpp v{r}, v{r}, v{r} {ctl} row_mask:0xf bank_mask:0xf")

    def wave_allreduce(self, op, r, t):
        self.row16_allreduce(op, r)
        for sw in ("v_permlane16_swap_b32", "v_permlane32_swap_b32"):
            self(f"v_mov_b32 v{t}, v{r}\ns_nop 1\n{sw} v{r}, v{t}\ns_nop 1\n{op} v{r}, v{r}, v{t}")

    def bf16_round(self, r):
        self(f"v_cvt_pk_bf16_f32 v{r}, v{r}, v{r}\nv_lshlrev_b32 v{r}, 16, v{r}")

    def srd(self, d, p, size):
        self(f"s_mov_b32 s{d}, s{p}\ns_and_b32 s{d+1}, s{p+1}, 0xffff\ns_mov_b32 s{d+2}, {size}\ns_mov_b32 s{d+3}, 0x20000")

    def entry(self):
        o = self.o
        self(f"""
            s_cmp_ge_u32 s2, 256
            s_cbranch_scc1 L_exit
            s_load_dwordx16 s[16:31], s[0:1], 0
            s_load_dwordx4 s[32:35], s[0:1], 64
            s_load_dwordx2 s[36:37], s[0:1], 80
            v_lshrrev_b32 v2, 6, v0
            v_mov_b32 v1, 0
            v_readfirstlane_b32 s3, v2
            v_and_b32 v2, 63, v0
            v_lshlrev_b32 v5, 2, v2
            ds_write_b32 v5, v1 offset:{L_C}
            s_getreg_b32 s9, hwreg(HW_REG_XCC_ID)
            s_bfe_u32 s9, s9, 0x10002
            s_bfe_u32 s4, s2, 0x10002
            s_bfe_u32 s5, s2, 0x20003
            s_and_b32 s6, s2, 3
            s_lshl_b32 s6, s6, 3
            s_lshr_b32 s10, s2, 5
            s_add_u32 s6, s6, s10
            s_lshl_b32 s7, s5, 5
            s_add_u32 s7, s7, s6
            s_lshl_b32 s8, s5, 1
            s_add_u32 s8, s8, s4
            s_mul_i32 s56, s7, {REGION}""")
        if o["stamps"]:
            for i in range(12):
                self(f"s_mov_b32 s{80 + i}, 0")
            self("s_memrealtime s[78:79]")
        self("s_waitcnt lgkmcnt(0)")
        if o["stamps"]:
            self("s_mov_b32 s80, s78")
        self.srd(44, 36, WS_END)
        self("s_cmp_ge_u32 s3, 4\ns_cbranch_scc1 L_helper")

    def advance_window(self):
        self(f"""
            s_add_u32 s58, s58, 1
            s_add_u32 s57, s57, {WIN}
            s_cmp_eq_u32 s58, 16
            s_cselect_b32 s57, s56, s57
            s_cselect_b32 s40, s20, s40
            s_cselect_b32 s41, s63, s41
            s_bitcmp1_b32 s59, s58
            s_cselect_b64 s[60:61], -1, 0""")

    def issue(self, t, slot, wait):
        vo = 2 + (slot & 1)
        self(f"v_cndmask_b32 v{vo}, v{48 + t}, v{56 + t}, s[60:61]")
        if wait is not None:
            self(f"s_waitcnt vmcnt({wait})")
        for j in range(3):
            r = 64 + slot * 12 + j * 4
            self(f"buffer_load_dwordx4 v[{r}:{r+3}], v{vo}, s[40:43], s57 offen offset:{128 * j} nt")

    def consume_k(self, slot):
        t = slot & 7
        r = 64 + slot * 12
        for i in range(12):
            c = "0" if i == 0 else f"v{20 + t}"
            self(f"v_dot2_f32_bf16 v{20 + t}, v{r + i}, v{8 + i}, {c}")
        if t == 7:
            self("s_nop 2")
            for k in range(4):
                self(f"v_add_f32_dpp v{20 + k}, v{20 + k}, v{20 + k} row_shl:4 row_mask:0xf bank_mask:0x5")
            for k in range(4):
                self(f"v_add_f32_dpp v{20 + k}, v{24 + k}, v{24 + k} row_shr:4 row_mask:0xf bank_mask:0xa")
            for k in range(4):
                self(f"v_add_f32_dpp v{24 + k}, v{20 + k}, v{20 + k} quad_perm:[2,3,0,1] row_mask:0xf bank_mask:0xf")
            self("""
                v_cndmask_b32 v20, v24, v26, s[64:65]
                v_cndmask_b32 v21, v25, v27, s[64:65]
                s_nop 0
                v_add_f32_dpp v24, v20, v20 quad_perm:[1,0,3,2] row_mask:0xf bank_mask:0xf
                v_add_f32_dpp v25, v21, v21 quad_perm:[1,0,3,2] row_mask:0xf bank_mask:0xf
                v_cndmask_b32 v28, v24, v25, s[66:67]""")
            self.bf16_round(28)
            self(f"""
                v_mul_f32 v28, {f32(192 ** -0.5)}, v28
                v_cvt_pk_bf16_f32 v28, v28, v28
                ds_write_b16 v4, v28 offset:{L_S + (slot >> 3) * 512}""")

    def consume_v(self, slot):
        t = slot & 7
        r = 64 + slot * 12
        a = 28 + (slot & 1) * 4
        for w in range(4):
            self(f"v_perm_b32 v{a + w}, v{36 + (t >> 1)}, v{36 + (t >> 1)}, v{20 + (t & 1) * 4 + w}")
        self("s_nop 1")
        for j in range(3):
            self(f"v_mfma_f32_16x16x32_bf16 v[{8 + 4*j}:{11 + 4*j}], v[{a}:{a+3}], v[{r + 4*j}:{r + 4*j + 3}], v[{8 + 4*j}:{11 + 4*j}]")

    def streamer(self):
        o = self.o
        W, W0 = o["wait"], o["wait0"]
        self.srd(40, 18, KV_BYTES)
        self(f"""
            s_and_b32 s63, s21, 0xffff
            s_cmp_lg_u32 s3, 0
            s_cbranch_scc1 L_noprobe
            s_xor_b32 s10, s4, s7
            s_bitcmp1_b32 s10, 0
            s_cselect_b32 s52, s20, s18
            s_cselect_b32 s53, s63, s41
            s_mov_b32 s54, {KV_BYTES}
            s_mov_b32 s55, 0x20000
            s_and_b32 s10, s7, 1
            s_lshl_b32 s10, s10, 20
            s_add_u32 s10, s10, s56
            s_and_b32 s11, s2, 63
            s_lshl_b32 s11, s11, 7
            s_add_u32 s10, s10, s11
            s_add_u32 s10, s10, 0x80000
            s_add_u32 s11, s10, 0x2000
            s_mov_b64 exec, 1
            buffer_load_dword v6, v1, s[52:55], s10 offen nt
            buffer_load_dword v7, v1, s[52:55], s11 offen nt
            s_mov_b64 exec, -1
            L_noprobe:
            s_barrier
            s_setprio 2
            s_getpc_b64 s[14:15]
            L_pc:
            s_add_u32 s14, s14, L_table-L_pc
            s_addc_u32 s15, s15, 0
            v_lshrrev_b32 v5, 3, v0
            v_lshlrev_b32 v5, 5, v5
            global_load_dwordx4 v[48:51], v5, s[14:15]
            global_load_dwordx4 v[52:55], v5, s[14:15] offset:16
            global_load_dwordx4 v[56:59], v5, s[14:15] offset:1024
            global_load_dwordx4 v[60:63], v5, s[14:15] offset:1040
            s_cmp_lg_u32 s3, 0
            s_cbranch_scc1 L_noprobe2
            s_waitcnt vmcnt(5)
            s_memtime s[10:11]
            s_waitcnt vmcnt(4)
            s_memtime s[12:13]
            s_waitcnt lgkmcnt(0)
            s_sub_u32 s10, s12, s10
            s_cmp_le_u32 s10, {o["gap"]}
            s_cselect_b32 s10, 3, 2
            s_bfe_u32 s11, s7, 0x10001
            s_xor_b32 s10, s10, s11
            s_xor_b32 s10, s10, s9
            v_mov_b32 v6, s10
            ds_write_b32 v1, v6 offset:{C_PROBE}
            L_noprobe2:
            v_and_b32 v5, 7, v0
            v_lshlrev_b32 v5, 4, v5
            v_lshlrev_b32 v4, 1, v0
            s_mov_b32 s64, 0xcccccccc
            s_mov_b32 s65, 0xcccccccc
            s_mov_b32 s66, 0xaaaaaaaa
            s_mov_b32 s67, 0xaaaaaaaa
            s_mov_b32 s57, s56
            s_mov_b32 s58, 0
            s_lshr_b32 s10, s3, 1
            s_xor_b32 s10, s10, s4
            s_cmp_eq_u32 s10, 1
            s_cselect_b64 s[60:61], -1, 0
            s_waitcnt vmcnt(0)""")
        for i in range(16):
            self(f"v_add_u32 v{48 + i}, v{48 + i}, v5")
        self.stamp(1)
        for t in range(8):
            self.issue(t, t, W0 if 3 * t > W0 else None)
        self.spin_lds(C_VOTE, 1, wide=True)
        self("s_mov_b32 s59, s11")
        self.stamp(2)
        self.advance_window()
        for t in range(7):
            self.issue(t, 8 + t, W)
        self.stamp(3)
        self.spin_lds(C_QRDY, 3)
        for j in range(3):
            self(f"ds_read_b128 v[{8 + 4*j}:{11 + 4*j}], v5 offset:{L_Q + 128 * j}")
        self("s_mov_b32 s62, 0\ns_waitcnt lgkmcnt(0)")
        self.stamp(4)

        def body(consume, last=False, pre=None):
            for i in range(16):
                if pre:
                    pre(i)
                if not last or i == 0:
                    if i in (1, 9):
                        self.advance_window()
                    self.issue((i - 1) & 7, (i - 1) & 15, W)
                elif i == 14:
                    self("s_waitcnt vmcnt(3)")
                elif i == 15:
                    self("s_waitcnt vmcnt(0)")
                consume(i)

        self("L_kloop:")
        body(self.consume_k)
        self(f"""
            v_add_u32 v4, 1024, v4
            s_add_u32 s62, s62, 1
            s_and_b32 s10, s62, 3
            s_cmp_lg_u32 s10, 0
            s_cbranch_scc1 L_kloop""")
        self.lds_inc(C_KSEG)
        self("s_cmp_lt_u32 s62, 8\ns_cbranch_scc1 L_kloop")
        self.stamp(5)
        self("v_and_b32 v5, 7, v0\nv_mov_b32 v28, 0x0c0c0c0c")
        for par, (lo_sel, hi_sel) in enumerate(((0x0c0c0100, 0x01000c0c), (0x0c0c0302, 0x03020c0c))):
            self(f"v_mov_b32 v29, 0x{lo_sel:08x}\nv_mov_b32 v30, 0x{hi_sel:08x}")
            for w in range(4):
                r = 20 + par * 4 + w
                self(f"""
                    v_cmp_eq_u32 vcc, {2*w}, v5
                    v_cmp_eq_u32 s[10:11], {2*w + 1}, v5
                    s_nop 0
                    v_cndmask_b32 v{r}, v28, v29, vcc
                    v_cndmask_b32 v{r}, v{r}, v30, s[10:11]""")
        for i in range(12):
            self(f"v_mov_b32 v{8 + i}, 0")
        self("v_lshrrev_b32 v4, 3, v0\nv_lshlrev_b32 v4, 4, v4\ns_mov_b32 s62, 0")
        self.spin_lds(C_PRDY, 4)
        self.stamp(6)

        def pre_v(i):
            if i in (0, 8):
                self(f"ds_read_b128 v[36:39], v4 offset:{L_P + (i >> 3) * 512}")

        def cons_v(i):
            if i in (0, 8):
                self("s_waitcnt lgkmcnt(0)")
            self.consume_v(i)

        self("L_vloop:")
        body(cons_v, pre=pre_v)
        self(f"""
            v_add_u32 v4, 1024, v4
            s_add_u32 s62, s62, 1
            s_cmp_lg_u32 s62, 4
            s_cbranch_scc1 L_vnext""")
        self.spin_lds(C_PRDY, 8)
        self(f"ds_read_b32 v6, v1 offset:{C_F}\ns_nop 7\ns_waitcnt lgkmcnt(0)")
        for i in range(12):
            self(f"v_mul_f32 v{8 + i}, v{8 + i}, v6")
        self("L_vnext:\ns_cmp_lt_u32 s62, 7\ns_cbranch_scc1 L_vloop")
        self(f"""
            v_and_b32 v40, 7, v0
            v_lshlrev_b32 v40, 5, v40
            v_bfe_u32 v41, v0, 4, 1
            v_lshl_add_u32 v40, v41, 4, v40
            v_lshrrev_b32 v41, 5, v0
            v_mul_u32_u24 v41, 768, v41
            v_add_u32 v40, v40, v41
            v_and_b32 v41, 63, v0
            v_lshlrev_b32 v41, 4, v41
            ds_read_b128 v[44:47], v1 offset:{C_LSUM}
            s_lshl_b32 s13, s6, 3
            s_add_u32 s13, s13, s8
            s_lshl_b32 s13, s13, 10
            s_add_u32 s13, s13, {OP}
            s_waitcnt lgkmcnt(0)
            v_add_f32 v44, v44, v45
            v_add_f32 v46, v46, v47
            v_add_f32 v44, v44, v46
            v_rcp_f32 v42, v44""")
        body(cons_v, last=True, pre=pre_v)
        self(f"""
            s_mov_b32 exec_lo, 0x00ff00ff
            s_mov_b32 exec_hi, 0xff00ff00
            s_nop 5
            ds_write_b128 v40, v[8:11] offset:{L_ORED}
            ds_write_b128 v40, v[12:15] offset:{L_ORED + 256}
            ds_write_b128 v40, v[16:19] offset:{L_ORED + 512}""")
        self.lds_inc(C_OCNT, ret=True)
        self.stamp(7)
        self("""
            s_cmp_lg_u32 s10, 3
            s_cbranch_scc1 L_end
            s_mov_b32 exec_hi, 0xffff""")
        for k in range(8):
            self(f"ds_read_b128 v[{64 + 4*k}:{67 + 4*k}], v41 offset:{L_ORED + 768 * k}")
        for k in range(4):
            self(f"s_waitcnt lgkmcnt({6 - 2*k})")
            for e in range(4):
                self(f"v_add_f32 v{64 + 8*k + e}, v{64 + 8*k + e}, v{68 + 8*k + e}")
        for e in range(4):
            self(f"v_add_f32 v{64 + e}, v{64 + e}, v{72 + e}\nv_add_f32 v{80 + e}, v{80 + e}, v{88 + e}")
        for e in range(4):
            self(f"v_add_f32 v{64 + e}, v{64 + e}, v{80 + e}")
        for e in range(4):
            self(f"v_mul_f32 v{64 + e}, v{64 + e}, v42")
        self("buffer_store_dwordx4 v[64:67], v41, s[44:47], s13 offen sc1\ns_mov_b64 exec, -1")
        self.stamp(8)
        self("s_branch L_end")

    def item_loads(self, stride):
        for s in range(2):
            for rho in range(8):
                r = 48 + (s * 8 + rho) * 2
                self(f"buffer_load_dwordx2 v[{r}:{r+1}], v44, s[40:43], s13 offen nt")
                if (s, rho) != (1, 7):
                    self(f"s_add_u32 s13, s13, {stride * (25 if rho == 7 else 1)}")

    def item_compute(self, soff):
        for s in range(2):
            for e in range(4):
                for m in range(4):
                    lo = 48 + (s * 8 + 2 * m) * 2 + (e >> 1)
                    self(f"v_perm_b32 v{80 + s*16 + e*4 + m}, v{lo + 2}, v{lo}, s{68 + (e & 1)}")
        self("s_nop 1")
        for s in range(2):
            for e in range(4):
                a = 80 + s * 16 + e * 4
                d = 112 + e * 4
                c = "0" if s == 0 else f"v[{d}:{d+3}]"
                self(f"v_mfma_f32_16x16x32_bf16 v[{d}:{d+3}], v[{a}:{a+3}], v[{36 + 4*s}:{39 + 4*s}], {c}")
        self("s_nop 7")
        for r in range(4):
            self(f"v_cndmask_b32 v{112 + r}, v{112 + r}, v{116 + r}, s[66:67]")
            self(f"v_cndmask_b32 v{120 + r}, v{120 + r}, v{124 + r}, s[66:67]")
        for r in range(4):
            self(f"v_cndmask_b32 v{112 + r}, v{112 + r}, v{120 + r}, s[64:65]")
        self(f"buffer_store_dwordx4 v[112:115], v45, s[44:47], {soff} offen sc1")

    def gather_partials(self, sleep):
        self("s_add_u32 s14, s13, 12288\ns_add_u32 s15, s13, 24576")
        self.poll("""
            buffer_load_dwordx4 v[8:11], v46, s[44:47], s13 offen sc1
            buffer_load_dwordx4 v[12:15], v46, s[44:47], s14 offen sc1
            buffer_load_dwordx4 v[16:19], v47, s[44:47], s15 offen sc1""", list(range(8, 20)), sleep)
        for e in range(4):
            self(f"v_add_f32 v{8 + e}, v{8 + e}, v{12 + e}")
        for e in range(4):
            self(f"v_add_f32 v{8 + e}, v{8 + e}, v{16 + e}")
        self.rows4_reduce(8)
        self("v_cvt_pk_bf16_f32 v8, v8, v8")

    def project(self):
        self.lds_inc(C_HS)
        self.spin_lds(C_HS, 4, sleep=0)
        for s in range(6):
            self(f"ds_read_b128 v[{8 + 4*s}:{11 + 4*s}], v228 offset:{L_OBUF + 64 * s}")
        for s in range(6):
            self(f"s_waitcnt lgkmcnt({5 - s})")
            for e in range(2):
                b = 180 + s * 8 + e * 4
                d = 32 + e * 4
                c = "0" if s == 0 else f"v[{d}:{d+3}]"
                self(f"v_mfma_f32_16x16x32_bf16 v[{d}:{d+3}], v[{8 + 4*s}:{11 + 4*s}], v[{b}:{b+3}], {c}")
        self("s_mov_b32 vcc_lo, 0xffff0000\ns_mov_b32 vcc_hi, 0\ns_nop 6")
        for r in range(4):
            self(f"v_cndmask_b32 v{32 + r}, v{32 + r}, v{36 + r}, vcc")
        self("""
            s_mov_b32 exec_hi, 0
            buffer_store_dwordx4 v[32:35], v229, s[44:47], s75 offen sc1
            s_mov_b64 exec, -1""")

    def prep(self, g):
        o = self.o
        self.spin_lds(C_KSEG, 4 * (g + 1), sleep=8)
        self(f"""
            ds_read_b128 v[8:11], v230 offset:{L_S + 4096 * g}
            s_lshl_b32 s13, s2, 13
            s_add_u32 s13, s13, {SC + 4096 * g}
            s_xor_b32 s14, s13, {4 << 13}
            s_lshl_b32 s15, s2, 7
            s_lshl_b32 s10, s72, 3
            s_add_u32 s15, s15, s10
            s_add_u32 s15, s15, {FL + 4 * g}
            s_waitcnt lgkmcnt(0)
            buffer_store_dwordx4 v[8:11], v230, s[44:47], s13 offen {o["scst"]}
            v_mov_b32 v5, 1
            s_waitcnt vmcnt(0)
            s_mov_b64 exec, 1
            buffer_store_dword v5, v1, s[44:47], s15 offen sc1
            s_xor_b32 s15, s15, {4 << 7}""")
        lp, dn = self.lab("fl"), self.lab("fd")
        self(f"""
            s_mov_b32 s12, 0x4000
            {lp}:
            buffer_load_dword v6, v1, s[44:47], s15 offen sc1
            s_waitcnt vmcnt(0)
            v_readfirstlane_b32 s10, v6
            s_cmp_eq_u32 s10, 1
            s_cbranch_scc1 {dn}
            s_sleep 24
            s_sub_u32 s12, s12, 1
            s_cbranch_scc0 {lp}
            s_branch L_end
            {dn}:
            s_mov_b64 exec, -1
            buffer_load_dwordx4 v[12:15], v230, s[44:47], s14 offen {o["scld"]}""")
        self(f"""
            v_lshrrev_b32 v5, 5, v2
            s_lshl_b32 s10, s72, 1
            s_add_u32 s10, s10, {8 * g}
            v_add_u32 v5, s10, v5
            v_lshrrev_b32 v6, v5, s59
            v_lshrrev_b32 v7, 16, v6""")
        if g == 0:
            self("""
                v_bfe_u32 v32, v2, 4, 1
                v_xor_b32 v32, s4, v32
                v_cmp_eq_u32 vcc, 0, v5
                s_nop 1
                v_cndmask_b32 v6, v6, v32, vcc""")
        self("""
            v_xor_b32 v6, v6, v7
            v_and_b32 v6, 1, v6
            v_cmp_eq_u32 vcc, 1, v6
            s_nop 0
            s_waitcnt vmcnt(0)""")
        for i in range(4):
            self(f"v_cndmask_b32 v{32 + i}, v{8 + i}, v{12 + i}, vcc")
            self(f"v_cndmask_b32 v{36 + i}, v{12 + i}, v{8 + i}, vcc")
        for i in range(8):
            self(f"v_lshlrev_b32 v{8 + 2*i}, 16, v{32 + i}\nv_and_b32 v{9 + 2*i}, 0xffff0000, v{32 + i}")
        self("v_max3_f32 v24, v8, v9, v10")
        for i in range(11, 23, 2):
            self(f"v_max3_f32 v24, v24, v{i}, v{i + 1}")
        self("v_max_f32 v24, v24, v23")
        self.wave_allreduce("v_max_f32", 24, 25)
        self(f"s_lshl_b32 s10, s72, 2\nv_mov_b32 v26, s10\nds_write_b32 v26, v24 offset:{C_MAX + 16 * g}")
        self.lds_inc(C_MAXC)
        self.spin_lds(C_MAXC, 4 * (g + 1), sleep=2)
        self(f"""
            ds_read_b128 v[28:31], v1 offset:{C_MAX + 16 * g}
            s_mov_b32 s10, {f32(1.4426950408889634)}
            s_waitcnt lgkmcnt(0)
            v_max3_f32 v24, v28, v29, v30
            v_max_f32 v24, v24, v31""")
        if g == 1:
            self("""
                v_max_f32 v24, v24, v231
                v_sub_f32 v25, v231, v24
                v_mul_f32 v25, s10, v25
                v_exp_f32 v25, v25""")
        for i in range(16):
            self(f"v_sub_f32 v{8 + i}, v{8 + i}, v24")
        for i in range(16):
            self(f"v_mul_f32 v{8 + i}, s10, v{8 + i}")
        for i in range(16):
            self(f"v_exp_f32 v{8 + i}, v{8 + i}")
        for i in range(4):
            self(f"v_cvt_pk_bf16_f32 v{32 + i}, v{8 + 2*i}, v{9 + 2*i}")
        self(f"ds_write_b128 v230, v[32:35] offset:{L_P + 4096 * g}")
        for step in (8, 4, 2, 1):
            for i in range(step):
                self(f"v_add_f32 v{8 + i}, v{8 + i}, v{8 + step + i}")
        if g == 0:
            self("v_mov_b32 v231, v24\nv_mov_b32 v232, v8")
        else:
            self("v_fma_f32 v8, v232, v25, v8")
            self.wave_allreduce("v_add_f32", 8, 9)
            self(f"ds_write_b32 v26, v8 offset:{C_LSUM}\nds_write_b32 v1, v25 offset:{C_F}")
        self.lds_inc(C_PRDY)

    def helper(self):
        o = self.o
        self("L_helper:")
        self.srd(40, 22, 640 * 6144 * 2)
        self.srd(48, 16, 5120)
        self(f"""
            s_sub_u32 s72, s3, 4
            s_lshl_b32 s73, s8, 2
            s_add_u32 s73, s73, s72
            s_mul_i32 s70, s73, 86
            s_lshr_b32 s70, s70, 8
            s_mul_i32 s71, s70, 3
            s_sub_u32 s71, s73, s71
            s_cmp_ge_u32 s73, 30
            s_cselect_b32 s74, 0x80000000, 0
            s_cselect_b32 s70, 0, s70
            v_and_b32 v3, 15, v2
            v_lshrrev_b32 v4, 4, v2
            v_mul_u32_u24 v5, 1280, v4
            v_lshl_add_u32 v5, v3, 4, v5
            v_lshrrev_b32 v6, 2, v3
            v_mul_u32_u24 v7, 1280, v6
            v_lshl_add_u32 v7, v4, 4, v7
            v_or_b32 v7, s74, v7
            s_lshl_b32 s14, s70, 7
            v_mul_u32_u24 v44, {8 * 12288}, v4
            v_lshl_add_u32 v44, v3, 3, v44
            v_or_b32 v44, s74, v44
            s_mul_i32 s13, s70, {64 * 12288}
            s_mul_i32 s10, s6, 384
            s_add_u32 s13, s13, s10
            s_lshl_b32 s10, s71, 7
            s_add_u32 s13, s13, s10
            v_lshlrev_b32 v229, 4, v2
            v_mov_b32 v128, -1
            v_mov_b32 v129, -1
            v_mov_b32 v130, -1
            v_mov_b32 v131, -1""")
        self(f"""
            s_lshr_b32 s10, s2, 5
            s_lshl_b32 s10, s10, 2
            s_and_b32 s11, s2, 3
            s_add_u32 s10, s10, s11
            s_sub_u32 s11, s8, 5
            s_lshl_b32 s11, s11, 5
            s_add_u32 s10, s10, s11
            s_mul_i32 s11, s10, 52
            s_lshr_b32 s11, s11, 8
            s_mul_i32 s12, s11, 5
            s_sub_u32 s12, s10, s12
            s_add_u32 s11, s11, 32
            s_sub_u32 s77, s10, 56
            s_cmp_ge_u32 s10, 56
            s_cselect_b32 s76, 3, 2
            s_cmp_lt_u32 s10, 40
            s_cselect_b32 s76, 1, s76
            s_cselect_b32 s77, s11, s77
            s_cmp_lt_u32 s8, 5
            s_cselect_b32 s76, 0, s76
            s_cselect_b32 s77, s6, s77
            s_cselect_b32 s12, s8, s12
            s_lshl_b32 s39, s12, 2
            s_add_u32 s39, s39, s72
            s_mul_i32 s75, s77, 10240
            s_lshl_b32 s10, s39, 9
            s_add_u32 s75, s75, s10
            s_add_u32 s75, s75, {YP}
            s_cmp_lt_u32 s76, 2
            s_cselect_b32 s75, s75, 0
            s_cselect_b32 s10, 32, 0
            v_cmp_gt_u32 vcc, s10, v2
            v_or_b32 v132, s74, v229
            v_mov_b32 v135, 0x80000000
            v_cndmask_b32 v134, v135, v229, vcc
            s_and_b32 s10, s6, 3
            s_cmp_eq_u32 s10, 0
            s_cselect_b32 s38, s74, 0x80000000
            v_or_b32 v133, s38, v229
            s_lshl_b32 s60, s6, 5
            s_add_u32 s60, s60, s73
            s_lshl_b32 s60, s60, 10
            s_lshr_b32 s61, s6, 2
            s_add_u32 s61, s61, 32
            s_lshl_b32 s61, s61, 5
            s_add_u32 s61, s61, s73
            s_lshl_b32 s61, s61, 10
            s_lshl_b32 s10, s6, 3
            s_add_u32 s10, s10, s8
            s_lshl_b32 s10, s10, 10
            s_add_u32 s10, s10, {OP}
            s_lshl_b32 s11, s2, 7
            s_add_u32 s11, s11, {FL}
            s_cmp_eq_u32 s72, 0
            s_cselect_b32 s62, s10, s11
            s_cselect_b32 s10, 48, 8
            s_cmp_lt_u32 s72, 2
            s_cselect_b32 s10, s10, 0
            v_cmp_gt_u32 vcc, s10, v2
            s_mov_b32 s64, 0xcccccccc
            s_mov_b32 s65, 0xcccccccc
            v_cndmask_b32 v135, v135, v229, vcc
            s_mov_b32 s66, 0xaaaaaaaa
            s_mov_b32 s67, 0xaaaaaaaa
            s_mov_b32 s68, 0x05040100
            s_mov_b32 s69, 0x07060302
            s_barrier""")
        for i in range(5):
            self(f"buffer_load_dwordx4 v[{8 + 4*i}:{11 + 4*i}], v5, s[48:51], 0 offen offset:{256 * i}")
        self(f"""
            buffer_load_dwordx4 v[28:31], v7, s[48:51], s14 offen
            buffer_load_dwordx4 v[32:35], v7, s[48:51], s14 offen offset:64
            buffer_store_dwordx4 v[128:131], v132, s[44:47], s60 offen sc1
            buffer_store_dwordx4 v[128:131], v133, s[44:47], s61 offen sc1
            buffer_store_dwordx4 v[128:131], v134, s[44:47], s75 offen sc1
            buffer_store_dwordx4 v[128:131], v135, s[44:47], s62 offen sc1""")
        self.item_loads(12288)
        self(f"""
            v_lshlrev_b32 v45, 8, v6
            v_lshl_add_u32 v45, v4, 6, v45
            v_and_b32 v46, 3, v2
            v_lshl_add_u32 v45, v46, 4, v45
            v_or_b32 v45, s74, v45
            v_mul_u32_u24 v228, 384, v46
            v_lshl_add_u32 v228, v4, 4, v228
            v_lshlrev_b32 v233, 5, v6
            v_lshl_add_u32 v233, v4, 3, v233
            v_lshl_add_u32 v233, v46, 1, v233
            v_mul_u32_u24 v46, 3072, v4
            v_lshl_add_u32 v46, v3, 4, v46
            v_lshrrev_b32 v47, 1, v4
            v_lshl_or_b32 v47, v47, 31, v46
            s_lshl_b32 s10, s72, 10
            v_add_u32 v230, s10, v229
            v_lshlrev_b32 v234, 6, v6
            s_mov_b32 s10, 0x3f803f80
            s_waitcnt vmcnt(22)""")
        for i in range(20):
            self(f"v_dot2_f32_bf16 v40, v{8 + i}, s10, {'0' if i == 0 else 'v40'}")
        self("s_nop 1")
        self.row16_allreduce("v_add_f32", 40)
        self(f"v_mul_f32 v40, {f32(1 / 640)}, v40\ns_waitcnt vmcnt(16)")
        self.lds_inc(C_CLR, ret=True)
        self("s_mov_b32 s57, s10\ns_cmp_lg_u32 s10, 3\ns_cbranch_scc1 L_noann")
        self.spin_lds(C_PROBE, 2)
        self(f"""
            s_and_b32 s10, s10, 1
            s_lshl_b32 s11, s9, 6
            s_or_b32 s10, s10, s11
            s_or_b32 s10, s10, 0x80
            s_lshl_b32 s11, s7, 1
            s_add_u32 s11, s11, s4""")
        if o["ann"] == "byte":
            self("""
                v_mov_b32 v5, s10
                v_mov_b32 v6, s11
                s_mov_b64 exec, 1
                global_store_byte v6, v5, s[34:35] sc1
                s_mov_b64 exec, -1""")
        else:
            self("""
                s_and_b32 s12, s11, 3
                s_lshl_b32 s12, s12, 3
                s_lshl_b32 s10, s10, s12
                s_and_b32 s11, s11, 0xfc
                v_mov_b32 v5, s10
                v_mov_b32 v6, s11
                s_mov_b64 exec, 1
                global_atomic_or v6, v5, s[34:35] sc1
                s_mov_b64 exec, -1""")
        self("L_noann:")
        self.stamp(1)
        self("v_mov_b32 v41, 0\nv_mov_b32 v42, 0")
        for i in range(20):
            self(f"""
                v_lshlrev_b32 v36, 16, v{8 + i}
                v_and_b32 v37, 0xffff0000, v{8 + i}
                v_sub_f32 v36, v36, v40
                v_sub_f32 v37, v37, v40
                v_fmac_f32 v41, v36, v36
                v_fmac_f32 v42, v37, v37""")
        self("v_add_f32 v41, v41, v42")
        self.row16_allreduce("v_add_f32", 41)
        self(f"v_mul_f32 v41, {f32(1 / 640)}, v41")
        self.bf16_round(41)
        self(f"v_add_f32 v41, {f32(1e-5)}, v41")
        self.bf16_round(41)
        self("v_sqrt_f32 v41, v41\ns_nop 0")
        self.bf16_round(41)
        self("v_rcp_f32 v41, v41")
        self.bf16_round(40)
        self("""
            ds_bpermute_b32 v40, v234, v40
            ds_bpermute_b32 v41, v234, v41""")
        for i in range(8):
            self(f"v_lshlrev_b32 v{8 + 2*i}, 16, v{28 + i}\nv_and_b32 v{9 + 2*i}, 0xffff0000, v{28 + i}")
        self("s_waitcnt lgkmcnt(0)")
        for i in range(16):
            self(f"v_sub_f32 v{8 + i}, v{8 + i}, v40")
        for i in range(8):
            self(f"v_cvt_pk_bf16_f32 v{28 + i}, v{8 + 2*i}, v{9 + 2*i}")
        for i in range(8):
            self(f"v_lshlrev_b32 v{8 + 2*i}, 16, v{28 + i}\nv_and_b32 v{9 + 2*i}, 0xffff0000, v{28 + i}")
        for i in range(16):
            self(f"v_mul_f32 v{8 + i}, v{8 + i}, v41")
        for i in range(8):
            self(f"v_cvt_pk_bf16_f32 v{36 + i}, v{8 + 2*i}, v{9 + 2*i}")
        self.stamp(2)
        self("""
            s_waitcnt vmcnt(1)
            s_cmp_eq_u32 s57, 3
            s_cbranch_scc1 L_wready
            s_waitcnt vmcnt(0)
            L_wready:""")
        self.item_compute("s60")
        self.stamp(3)
        self("s_cmp_eq_u32 s72, 3\ns_cbranch_scc1 L_vote")
        self.spin_lds(C_VOTE, 1, wide=True)
        self(f"""
            s_mov_b32 s59, s11
            s_lshl_b32 s13, s6, 15
            s_lshl_b32 s10, s72, 10
            s_add_u32 s13, s13, s10
            s_lshl_b32 s10, s5, 8
            s_add_u32 s13, s13, s10""")
        self.stamp(4)
        self.gather_partials(o["qsleep"])
        self(f"s_lshl_b32 s10, s72, 7\nv_add_u32 v9, s10, v233\nds_write_b16 v9, v8 offset:{L_Q}")
        self.lds_inc(C_QRDY)
        self("s_branch L_qdone")
        GS = o["gs"]
        self(f"""
            L_vote:
            v_lshlrev_b32 v9, 2, v2
            s_mov_b32 s12, 0x4000
            s_mov_b32 s13, 0x80808080
            L_annpoll:
            global_load_dword v8, v9, s[34:35] sc1
            s_waitcnt vmcnt(0)
            v_and_b32 v10, s13, v8
            v_cmp_ne_u32 vcc, s13, v10
            s_cmp_eq_u64 vcc, 0
            s_cbranch_scc1 L_anndone
            s_sleep {o["asleep"]}
            s_sub_u32 s12, s12, 1
            s_cbranch_scc0 L_annpoll
            s_branch L_end
            L_anndone:
            v_mul_u32_u24 v10, 3, v2
            v_add_u32 v11, 2, v10
            v_lshrrev_b32 v10, {GS}, v10
            v_lshrrev_b32 v11, {GS}, v11
            s_lshr_b32 s10, s7, 1
            v_readlane_b32 s11, v8, s10
            s_and_b32 s10, s7, 1
            s_lshl_b32 s12, s10, 4
            s_add_u32 s12, s12, 6
            s_lshr_b32 s11, s11, s12
            s_xor_b32 s63, s11, s4
            s_cmp_eq_u32 s10, 0
            s_cselect_b32 s58, 0x7ff, 0x1f
            s_mov_b32 s59, 0
            s_mul_i32 s57, s7, 3
            s_lshr_b32 s57, s57, 1""")
        for pg in range(2):
            self(f"""
                s_lshr_b32 s10, s57, {GS}
                v_cmp_eq_u32 s[52:53], s10, v10
                v_cmp_eq_u32 s[54:55], s10, v11
                s_bcnt1_i32_b64 s14, s[52:53]
                s_bcnt1_i32_b64 s15, s[54:55]
                s_add_u32 s14, s14, s15""")
            for buf, (be, bo) in enumerate(((0, 24), (8, 16))):
                self(f"""
                    v_bfe_u32 v12, v8, {be}, 1
                    v_bfe_u32 v13, v8, {bo}, 1
                    v_cmp_eq_u32 vcc, 1, v12
                    s_and_b64 s[10:11], vcc, s[52:53]
                    s_bcnt1_i32_b64 s15, s[10:11]
                    v_cmp_eq_u32 vcc, 1, v13
                    s_and_b64 s[10:11], vcc, s[54:55]
                    s_bcnt1_i32_b64 s10, s[10:11]
                    s_add_u32 s15, s15, s10
                    s_lshl_b32 s15, s15, 1
                    s_cmp_gt_u32 s15, s14
                    s_cselect_b32 s10, 1, 0
                    s_xor_b32 s10, s10, s57
                    s_xor_b32 s10, s10, s63
                    s_lshl_b32 s11, s58, {16 * buf}
                    s_bitcmp1_b32 s10, 0
                    s_cselect_b32 s11, s11, 0
                    s_or_b32 s59, s59, s11""")
            if pg == 0:
                self("s_add_u32 s57, s57, 1\ns_xor_b32 s58, s58, 0xffff")
        if o["numa"] == "far":
            self("s_not_b32 s59, s59")
        elif o["numa"] == "mix":
            self("s_xor_b32 s10, s4, s7\ns_bitcmp1_b32 s10, 0\ns_cselect_b32 s59, -1, 0\ns_xor_b32 s59, s59, 0x55555555")
        self(f"""
            v_mov_b32 v6, 1
            v_mov_b32 v7, s59
            ds_write_b64 v1, v[6:7] offset:{C_VOTE}""")
        self.stamp(4)
        self("L_qdone:")
        self.stamp(5)
        self("s_cmp_lg_u32 s38, 0\ns_cbranch_scc1 L_now1")
        self.srd(40, 28, 640 * 1536 * 2)
        self(f"""
            v_mul_u32_u24 v44, {8 * 3072}, v4
            v_lshl_add_u32 v44, v3, 3, v44
            s_mul_i32 s13, s70, {64 * 3072}
            s_mul_i32 s10, s6, 96
            s_add_u32 s13, s13, s10
            s_lshl_b32 s10, s71, 7
            s_add_u32 s13, s13, s10""")
        self.item_loads(3072)
        self("s_waitcnt vmcnt(0)")
        self.item_compute("s61")
        self("L_now1:")
        self(f"""
            s_cmp_ge_u32 s76, 2
            s_cbranch_scc1 L_noproj
            s_mov_b32 s42, {1536 * 1280}
            s_cmp_eq_u32 s76, 0
            s_cselect_b32 s40, s24, s30
            s_cselect_b32 s41, s25, s31
            s_cselect_b32 s42, {6144 * 1280}, s42
            s_and_b32 s41, s41, 0xffff
            s_mov_b32 s43, 0x20000
            s_and_b32 s13, s77, 31
            s_mul_i32 s13, s13, {192 * 1280}
            s_lshl_b32 s10, s39, 6
            s_add_u32 s13, s13, s10
            v_mul_u32_u24 v44, {8 * 1280}, v4
            v_lshl_add_u32 v44, v3, 2, v44""")
        for s in range(6):
            for rho in range(8):
                self(f"s_waitcnt vmcnt({o['wdepth'] - 1})")
                self(f"buffer_load_dword v{132 + s*8 + rho}, v44, s[40:43], s13 offen nt")
                self(f"s_add_u32 s13, s13, {1280 * (25 if rho == 7 else 1)}")
        self("s_waitcnt vmcnt(0)")
        for s in range(6):
            for e in range(2):
                for m in range(4):
                    lo = 132 + s * 8 + 2 * m
                    self(f"v_perm_b32 v{180 + s*8 + e*4 + m}, v{lo + 1}, v{lo}, s{68 + e}")
        self("s_cmp_eq_u32 s76, 0\ns_cbranch_scc1 L_noproj")
        self(f"""
            s_lshl_b32 s62, s77, 15
            s_lshl_b32 s10, s72, 8
            s_add_u32 s62, s62, s10
            s_mul_i32 s10, s72, 384
            v_add_u32 v20, s10, v233
            s_mov_b32 s63, 0
            L_hloop:
            s_mov_b32 s13, s62""")
        self.gather_partials(16)
        self(f"""
            v_lshlrev_b32 v8, 16, v8
            v_mul_f32 v9, {f32(-1.4426950408889634)}, v8
            v_exp_f32 v9, v9
            s_nop 0
            v_add_f32 v9, 1.0, v9
            v_rcp_f32 v9, v9
            s_nop 0
            v_mul_f32 v8, v8, v9
            v_cvt_pk_bf16_f32 v8, v8, v8
            ds_write_b16 v20, v8 offset:{L_OBUF}
            v_add_u32 v20, 128, v20
            s_add_u32 s62, s62, 1024
            s_add_u32 s63, s63, 1
            s_cmp_lt_u32 s63, 3
            s_cbranch_scc1 L_hloop""")
        self.project()
        self("L_noproj:")
        self.stamp(6)
        self.prep(0)
        self.stamp(7)
        self.prep(1)
        self.stamp(8)
        self("""
            s_cmp_eq_u32 s76, 3
            s_cbranch_scc1 L_reduce
            s_cmp_lg_u32 s76, 0
            s_cbranch_scc1 L_end""")
        self(f"""
            s_lshl_b32 s13, s6, 3
            s_lshl_b32 s10, s72, 1
            s_add_u32 s13, s13, s10
            s_lshl_b32 s13, s13, 10
            s_add_u32 s13, s13, {OP}
            s_mul_i32 s10, s72, 384
            v_lshlrev_b32 v20, 3, v2
            v_add_u32 v20, s10, v20""")
        self.spin_lds(C_OCNT, 1, sleep=o["tsleep"])
        self("s_setprio 3\ns_mov_b32 exec_hi, 0xffff")
        self.poll("""
            buffer_load_dwordx4 v[8:11], v229, s[44:47], s13 offen sc1
            buffer_load_dwordx4 v[12:15], v229, s[44:47], s13 offen offset:1024 sc1""", list(range(8, 16)), o["psleep"])
        for e in range(4):
            self(f"v_add_f32 v{8 + e}, v{8 + e}, v{12 + e}")
        self(f"""
            v_cvt_pk_bf16_f32 v8, v8, v9
            v_cvt_pk_bf16_f32 v9, v10, v11
            ds_write_b64 v20, v[8:9] offset:{L_OBUF}""")
        self.stamp(9)
        self.project()
        self.stamp(10)
        self("s_branch L_end")
        self("L_reduce:\ns_cmp_lg_u32 s72, 0\ns_cbranch_scc1 L_end")
        self.srd(52, 32, 5120)
        self(f"""
            v_mul_u32_u24 v44, 10240, v4
            v_bfe_u32 v5, v2, 3, 1
            v_lshl_add_u32 v44, v5, 8, v44
            v_and_b32 v6, 7, v2
            v_lshl_add_u32 v44, v6, 4, v44
            v_mul_u32_u24 v45, 1280, v4
            v_lshl_add_u32 v45, v6, 2, v45
            v_lshl_add_u32 v45, v5, 1, v45
            s_lshr_b32 s10, s77, 1
            s_lshl_b32 s13, s10, 9
            s_and_b32 s11, s77, 1
            s_lshl_b32 s11, s11, 7
            s_add_u32 s13, s13, s11
            s_add_u32 s13, s13, {YP}
            s_lshl_b32 s62, s77, 5
            buffer_load_ushort v46, v45, s[48:51], s62 offen""")
        for i in range(10):
            self(f"s_add_u32 s{16 + i}, s13, {40960 * i}")
        self.poll("""
            buffer_load_dwordx4 v[40:43], v44, s[44:47], s24 offen sc1
            buffer_load_dwordx4 v[12:15], v44, s[44:47], s25 offen sc1""", [40, 41, 42, 43, 12, 13, 14, 15], 16)
        for e in range(4):
            self(f"v_add_f32 v{40 + e}, v{40 + e}, v{12 + e}")
        self.rows4_reduce(40)
        self.bf16_round(40)
        self("v_lshlrev_b32 v46, 16, v46")
        self.spin_lds(C_OCNT, 1, sleep=o["tsleep"])
        self("s_setprio 3")
        self.poll("\n".join(f"buffer_load_dwordx4 v[{8 + 4*i}:{11 + 4*i}], v44, s[44:47], s{16 + i} offen sc1"
                            for i in range(8)), list(range(8, 40)), o["psleep"])
        self.stamp(9)
        for step in (16, 8, 4):
            for i in range(step):
                self(f"v_add_f32 v{8 + i}, v{8 + i}, v{8 + step + i}")
        self.rows4_reduce(8)
        self.bf16_round(8)
        self("v_add_f32 v8, v46, v8")
        self.bf16_round(8)
        self("""
            v_add_f32 v8, v8, v40
            v_cvt_pk_bf16_f32 v8, v8, v8
            buffer_store_short v8, v45, s[52:55], s62 offen""")
        self.stamp(10)

    def finish(self):
        self("L_end:")
        if self.o["stamps"]:
            self(f"""
                s_waitcnt vmcnt(0)
                s_memrealtime s[78:79]
                s_getreg_b32 s92, hwreg(HW_REG_XCC_ID)
                s_waitcnt lgkmcnt(0)
                s_mov_b32 s91, s78
                s_mov_b64 exec, 1
                s_lshl_b32 s10, s2, 3
                s_add_u32 s10, s10, s3
                s_lshl_b32 s10, s10, 6
                s_add_u32 s10, s10, {STAMPS}
                v_mov_b32 v5, s10""")
            for i in range(12):
                self(f"v_mov_b32 v{8 + i}, s{80 + i}")
            self("v_mov_b32 v20, s92\nv_mov_b32 v21, s59\nv_mov_b32 v22, s7\nv_mov_b32 v23, s76")
            for i in range(4):
                self(f"global_store_dwordx4 v5, v[{8 + 4*i}:{11 + 4*i}], s[36:37] offset:{16 * i}")
        self("L_exit:\ns_endpgm")

    def build(self):
        head = open(f"cdna_kernels/{NAME}.s.ref").read().split("\n") if self.o["head"] else []
        out = [ln for ln in head if ln.startswith(";") and "@launch" not in ln][:14]
        out.append(f"; @launch grid=(256,1,1) block=(512,1,1) lds={LDS_BYTES}")
        out.append(DOC.strip("\n"))
        out += ['.amdgcn_target "amdgcn-amd-amdhsa--gfx950"', ".text", f".globl {NAME}_kernel", ".p2align 8",
                f".type {NAME}_kernel,@function", f"{NAME}_kernel:"]
        self.entry()
        self.streamer()
        self.helper()
        self.finish()
        out += self.L
        out += [".p2align 8", ".type L_table,@object", "L_table:"]
        T = row_table()
        for sig in range(2):
            for w in range(4):
                for g in range(8):
                    out.append("  .long " + ", ".join(str(T[sig][w][g][t] * 384) for t in range(8)))
        out.append(".size L_table, 2048")
        out += ['.section .rodata,"a"', ".p2align 6", f".amdhsa_kernel {NAME}_kernel",
                "  .amdhsa_next_free_vgpr 256", "  .amdhsa_next_free_sgpr 102", "  .amdhsa_accum_offset 256",
                "  .amdhsa_group_segment_fixed_size 0", "  .amdhsa_kernarg_size 88", "  .amdhsa_user_sgpr_count 2",
                "  .amdhsa_user_sgpr_kernarg_segment_ptr 1", "  .amdhsa_system_sgpr_workgroup_id_x 1",
                ".end_amdhsa_kernel"]
        return "\n".join(out) + "\n"


DOC = """
"""

DEFAULTS = dict(stamps=0, head=1, wait=3, wait0=6, gap=40, gs=3, numa="near", ann="atomic", scst="sc1 nt",
                scld="sc1 nt", asleep=4, qsleep=2, wdepth=4, tsleep=2, psleep=0)

if __name__ == "__main__":
    opt = dict(DEFAULTS)
    for kv in sys.argv[2:]:
        k, v = kv.split("=")
        assert k in opt, k
        opt[k] = int(v) if isinstance(DEFAULTS[k], int) else v.replace("+", " ")
    open(sys.argv[1], "w").write(Gen(opt).build())
```

```python
import struct
import sys

NAME = "parallel_sum__mha_block_cached__dense_activation_silu__decode"
KV_BYTES = 4 * 32 * 8192 * 192 * 2
REGION = 3 << 20
WIN = 196608

QP, YP, OP, FL, VR, SC, WS_END = 0x0, 0x140000, 0x1B0000, 0x1F0000, 0x1F8000, 0x200000, 0x400000
STAMPS = 0x1000000
L_S, L_P, L_ORED, L_OBUF, L_Q, L_C = 0x0, 0x2000, 0x4000, 0x5800, 0x5E00, 0x6000
C_NONCE, C_PROBE, C_VOTE, C_QRDY, C_KSEG, C_PRDY, C_MAXC, C_OCNT, C_HS, C_F = (
    L_C + 0, L_C + 4, L_C + 8, L_C + 16, L_C + 20, L_C + 24, L_C + 28, L_C + 32, L_C + 36, L_C + 40)
C_MAX, C_LSUM = L_C + 48, L_C + 80
LDS_BYTES = 0x6100


def f32(x):
    return "0x%08x" % struct.unpack("<I", struct.pack("<f", x))[0]


def block_rows(b):
    t, r = divmod(b, 3)
    lo, hi = ((0, 21), (21, 43), (43, 64))[r]
    return list(range(64 * t + lo, 64 * t + hi))


def row_table():
    T = []
    for sig in range(2):
        lo = sum((block_rows(sig + o) for o in (0, 2, 8, 10, 16, 18)), [])
        up = sum((block_rows(sig + o + 4) for o in (0, 2, 8, 10, 16, 18)), [])
        T.append([[[(lo if g < 4 else up)[4 * (8 * w + t) + (g & 3)] for t in range(8)]
                   for g in range(8)] for w in range(4)])
    return T


class Gen:
    def __init__(self, opt):
        self.o = opt
        self.L = []
        self.nlab = 0
        self.in_helper = False

    def __call__(self, text):
        for line in text.strip("\n").split("\n"):
            line = line.strip()
            if line:
                self.L.append(line if line.endswith(":") else "  " + line)

    def lab(self, base):
        self.nlab += 1
        return f"L_{base}{self.nlab}"

    def stamp(self, idx, mode=1):
        if self.o["stamps"] == mode or (self.o["stamps"] and not self.in_helper):
            self(f"s_memrealtime s[78:79]\ns_waitcnt lgkmcnt(0)\ns_mov_b32 s{80 + idx}, s78")

    def spin_lds(self, off, target, sleep=1, wide=False):
        lp, dn = self.lab("sp"), self.lab("sd")
        self("s_mov_b32 s12, 0x40000")
        self(f"{lp}:")
        if wide:
            self(f"ds_read_b64 v[6:7], v1 offset:{off}")
        else:
            self(f"ds_read_b32 v6, v1 offset:{off}")
        self("s_waitcnt lgkmcnt(0)\nv_readfirstlane_b32 s10, v6")
        if wide:
            self("v_readfirstlane_b32 s11, v7")
        self(f"""
            s_cmp_ge_u32 s10, {target}
            s_cbranch_scc1 {dn}
            s_sleep {sleep}
            s_sub_u32 s12, s12, 1
            s_cbranch_scc0 {lp}
            s_branch L_end
            {dn}:""")

    def lds_inc(self, off, ret=False):
        self("s_mov_b64 exec, 1\nv_mov_b32 v5, 1")
        if ret:
            self(f"ds_add_rtn_u32 v6, v1, v5 offset:{off}\ns_waitcnt lgkmcnt(0)\nv_readfirstlane_b32 s10, v6")
        else:
            self(f"ds_add_u32 v1, v5 offset:{off}")
        self("s_mov_b64 exec, -1")

    def tags(self, t):
        self(f"""
            s_mul_i32 s10, s92, 0x9e3779b1
            s_mul_hi_u32 s11, s92, 0x85ebca6b
            s_mul_i32 s12, s92, 0xc2b2ae35
            s_xor_b32 s11, s11, s12
            v_mov_b32 v{t}, s10
            v_mov_b32 v{t+1}, s11
            v_and_b32 v{t+2}, 1, v0
            v_cndmask_b32 v{t}, v{t}, v{t+1}, s[64:65]
            v_lshlrev_b32 v{t+2}, 4, v{t+2}
            v_lshrrev_b32 v{t}, v{t+2}, v{t}
            v_lshrrev_b32 v{t+1}, 4, v{t}
            v_lshrrev_b32 v{t+2}, 8, v{t}
            v_lshrrev_b32 v{t+3}, 12, v{t}""")

    def tag_data(self, r, t):
        for e in range(4):
            self(f"v_bfi_b32 v{r + e}, 15, v{t + e}, v{r + e}")

    def poll(self, loads, sleep, t=236, half_last=False):
        lp, dn = self.lab("pl"), self.lab("pd")
        n = len(loads)
        self("s_mov_b32 s12, 0x4000")
        self(f"{lp}:")
        for i, (r, ins) in enumerate(loads):
            if half_last and i == n - 1:
                self(f"s_mov_b32 exec_hi, 0\n{ins}\ns_mov_b32 exec_hi, -1")
            else:
                self(ins)
        for i, (r, ins) in enumerate(loads):
            self(f"s_waitcnt vmcnt({n - 1 - i})")
            if half_last and i == n - 1:
                self("s_mov_b32 exec_hi, 0")
            for e in range(4):
                if i == 0 and e == 0:
                    self(f"v_xor_b32 v5, v{r}, v{t}")
                else:
                    self(f"v_bitop3_b32 v5, v5, v{r + e}, v{t + e} bitop3:0xf6")
            for e in range(4):
                self(f"v_and_b32 v{r + e}, -16, v{r + e}")
            if half_last and i == n - 1:
                self("s_mov_b32 exec_hi, -1")
        self(f"""
            v_and_b32 v5, 15, v5
            v_cmp_ne_u32 vcc, 0, v5
            s_cmp_eq_u64 vcc, 0
            s_cbranch_scc1 {dn}""")
        if sleep:
            self(f"s_sleep {sleep}")
        self(f"""
            s_sub_u32 s12, s12, 1
            s_cbranch_scc0 {lp}
            s_branch L_end
            {dn}:""")

    def rows4_reduce(self, r):
        self(f"""
            s_nop 1
            v_permlane16_swap_b32 v{r}, v{r+1}
            v_permlane16_swap_b32 v{r+2}, v{r+3}
            s_nop 1
            v_add_f32 v{r}, v{r}, v{r+1}
            v_add_f32 v{r+2}, v{r+2}, v{r+3}
            s_nop 1
            v_permlane32_swap_b32 v{r}, v{r+2}
            s_nop 1
            v_add_f32 v{r}, v{r}, v{r+2}""")

    def row16_allreduce(self, op, r):
        for ctl in ("quad_perm:[1,0,3,2]", "quad_perm:[2,3,0,1]", "row_half_mirror", "row_mirror"):
            self(f"s_nop 1\n{op}_dpp v{r}, v{r}, v{r} {ctl} row_mask:0xf bank_mask:0xf")

    def wave_allreduce(self, op, r, t):
        self.row16_allreduce(op, r)
        for sw in ("v_permlane16_swap_b32", "v_permlane32_swap_b32"):
            self(f"v_mov_b32 v{t}, v{r}\ns_nop 1\n{sw} v{r}, v{t}\ns_nop 1\n{op} v{r}, v{r}, v{t}")

    def bf16_round(self, r):
        self(f"v_cvt_pk_bf16_f32 v{r}, v{r}, v{r}\nv_lshlrev_b32 v{r}, 16, v{r}")

    def srd(self, d, p, size):
        self(f"s_mov_b32 s{d}, s{p}\ns_and_b32 s{d+1}, s{p+1}, 0xffff\ns_mov_b32 s{d+2}, {size}\ns_mov_b32 s{d+3}, 0x20000")

    def entry(self):
        o = self.o
        self(f"""
            s_cmp_ge_u32 s2, 256
            s_cbranch_scc1 L_exit
            s_load_dwordx16 s[16:31], s[0:1], 0
            s_load_dwordx4 s[32:35], s[0:1], 64
            s_load_dwordx2 s[36:37], s[0:1], 80
            s_memrealtime s[94:95]
            v_lshrrev_b32 v2, 6, v0
            v_mov_b32 v1, 0
            v_readfirstlane_b32 s3, v2
            v_and_b32 v2, 63, v0
            v_lshlrev_b32 v5, 2, v2
            ds_write_b32 v5, v1 offset:{L_C}
            s_getreg_b32 s9, hwreg(HW_REG_XCC_ID)
            s_bfe_u32 s9, s9, 0x10002
            s_bfe_u32 s4, s2, 0x10002
            s_bfe_u32 s5, s2, 0x20003
            s_and_b32 s6, s2, 3
            s_lshl_b32 s6, s6, 3
            s_lshr_b32 s10, s2, 5
            s_add_u32 s6, s6, s10
            s_lshl_b32 s7, s5, 5
            s_add_u32 s7, s7, s6
            s_lshl_b32 s8, s5, 1
            s_add_u32 s8, s8, s4
            s_mov_b32 s64, 0xcccccccc
            s_mov_b32 s65, 0xcccccccc
            s_mov_b32 s66, 0xaaaaaaaa
            s_mov_b32 s67, 0xaaaaaaaa""")
        if o["stamps"]:
            for i in range(1, 12):
                self(f"s_mov_b32 s{80 + i}, 0")
        self("s_cmp_ge_u32 s3, 4\ns_cbranch_scc1 L_helper")

    def args_ready(self):
        self("s_waitcnt lgkmcnt(0)")
        if self.o["stamps"]:
            self("s_mov_b32 s80, s94")

    def advance_window(self):
        self(f"""
            s_add_u32 s58, s58, 1
            s_add_u32 s57, s57, {WIN}
            s_cmp_eq_u32 s58, 16
            s_cselect_b32 s57, s56, s57
            s_cselect_b32 s40, s20, s40
            s_cselect_b32 s41, s63, s41
            s_bitcmp1_b32 s59, s58
            s_cselect_b64 s[60:61], -1, 0""")

    def issue(self, t, slot, wait):
        vo = 2 + (slot & 1)
        self(f"v_cndmask_b32 v{vo}, v{48 + t}, v{56 + t}, s[60:61]")
        if wait is not None:
            self(f"s_waitcnt vmcnt({wait})")
        for j in range(3):
            r = 64 + slot * 12 + j * 4
            self(f"buffer_load_dwordx4 v[{r}:{r+3}], v{vo}, s[40:43], s57 offen offset:{128 * j} nt")

    def consume_k(self, slot):
        t = slot & 7
        r = 64 + slot * 12
        for i in range(1 if "k" in self.o["skip"] else 12):
            c = "0" if i == 0 else f"v{20 + t}"
            self(f"v_dot2_f32_bf16 v{20 + t}, v{r + i}, v{8 + i}, {c}")
        if t == 7:
            self("s_nop 2")
            for k in range(4):
                self(f"v_add_f32_dpp v{20 + k}, v{20 + k}, v{20 + k} row_shl:4 row_mask:0xf bank_mask:0x5")
            for k in range(4):
                self(f"v_add_f32_dpp v{20 + k}, v{24 + k}, v{24 + k} row_shr:4 row_mask:0xf bank_mask:0xa")
            for k in range(4):
                self(f"v_add_f32_dpp v{24 + k}, v{20 + k}, v{20 + k} quad_perm:[2,3,0,1] row_mask:0xf bank_mask:0xf")
            self("""
                v_cndmask_b32 v20, v24, v26, s[64:65]
                v_cndmask_b32 v21, v25, v27, s[64:65]
                s_nop 0
                v_add_f32_dpp v24, v20, v20 quad_perm:[1,0,3,2] row_mask:0xf bank_mask:0xf
                v_add_f32_dpp v25, v21, v21 quad_perm:[1,0,3,2] row_mask:0xf bank_mask:0xf
                v_cndmask_b32 v28, v24, v25, s[66:67]""")
            self.bf16_round(28)
            self(f"""
                v_mul_f32 v28, {f32(192 ** -0.5)}, v28
                v_cvt_pk_bf16_f32 v28, v28, v28
                ds_write_b16 v4, v28 offset:{L_S + (slot >> 3) * 512}""")

    def consume_v(self, slot):
        t = slot & 7
        r = 64 + slot * 12
        a = 28 + (slot & 1) * 4
        if "v" in self.o["skip"]:
            return
        for w in range(4):
            self(f"v_perm_b32 v{a + w}, v{36 + (t >> 1)}, v{36 + (t >> 1)}, v{20 + (t & 1) * 4 + w}")
        self("s_nop 1")
        for j in range(3):
            self(f"v_mfma_f32_16x16x32_bf16 v[{8 + 4*j}:{11 + 4*j}], v[{a}:{a+3}], v[{r + 4*j}:{r + 4*j + 3}], v[{8 + 4*j}:{11 + 4*j}]")

    def streamer(self):
        o = self.o
        WP = [int(c, 36) for c in o["wait"]]
        W, W0 = max(WP), o["wait0"]
        TAB = "\n".join(f"global_load_dwordx4 v[{48 + 4*i}:{51 + 4*i}], v8, s[14:15] offset:{(i >> 1) * 1024 + (i & 1) * 16}"
                        for i in range(4))
        late = 0 if o["tabearly"] else 4
        self(f"""
            s_getpc_b64 s[14:15]
            L_pc:
            s_add_u32 s14, s14, L_table-L_pc
            s_addc_u32 s15, s15, 0
            v_lshrrev_b32 v5, 3, v0
            v_lshlrev_b32 v5, 5, v5
            v_mov_b32 v8, v5
            {TAB if o["tabearly"] else ""}
            s_mul_i32 s56, s7, {REGION}
            s_and_b32 s10, s7, 1
            s_lshl_b32 s10, s10, 20
            s_add_u32 s10, s10, s56
            s_and_b32 s11, s2, 63
            s_lshl_b32 s11, s11, 7
            s_add_u32 s10, s10, s11
            s_add_u32 s10, s10, 0x80000
            s_add_u32 s11, s10, 0x2000
            v_and_b32 v5, 7, v0
            v_lshlrev_b32 v5, 4, v5
            v_lshlrev_b32 v4, 1, v0
            s_mov_b32 s57, s56
            s_mov_b32 s58, 0
            s_lshr_b32 s12, s3, 1
            s_xor_b32 s12, s12, s4
            s_cmp_eq_u32 s12, 1
            s_cselect_b64 s[60:61], -1, 0
            s_mov_b32 s54, {KV_BYTES}
            s_mov_b32 s55, 0x20000
            s_xor_b32 s12, s4, s7
            s_setprio 2""")
        self.args_ready()
        self(f"""
            s_cmp_lg_u32 s3, 0
            s_cbranch_scc1 L_noprobe
            s_bitcmp1_b32 s12, 0
            s_cselect_b32 s52, s20, s18
            s_cselect_b32 s53, s21, s19
            s_and_b32 s53, s53, 0xffff
            s_mov_b64 exec, 1
            buffer_load_dword v6, v1, s[52:55], s10 offen nt
            buffer_load_dword v7, v1, s[52:55], s11 offen nt
            s_mov_b64 exec, -1
            L_noprobe:
            s_barrier
            {"" if o["tabearly"] else TAB}""")
        self.srd(40, 18, KV_BYTES)
        self.srd(44, 36, WS_END)
        self(f"""
            s_and_b32 s63, s21, 0xffff
            s_cmp_lg_u32 s3, 0
            s_cbranch_scc1 L_noprobe2
            s_waitcnt vmcnt({1 + late})
            s_memtime s[10:11]
            s_waitcnt vmcnt({late})
            s_memtime s[12:13]
            s_waitcnt lgkmcnt(0)
            s_sub_u32 s10, s12, s10
            s_cmp_le_u32 s10, {o["gap"]}
            s_cselect_b32 s10, 3, 2
            s_bfe_u32 s11, s7, 0x10001
            s_xor_b32 s10, s10, s11
            s_xor_b32 s10, s10, s9
            v_mov_b32 v6, s10
            ds_write_b32 v1, v6 offset:{C_PROBE}
            L_noprobe2:
            s_waitcnt vmcnt(0)""")
        for i in range(16):
            self(f"v_add_u32 v{48 + i}, v{48 + i}, v5")
        self.stamp(1)
        for t in range(8):
            self.issue(t, t, W0 if 3 * t > W0 else None)
        self.spin_lds(C_VOTE, 1, wide=True)
        self("s_mov_b32 s59, s11")
        self.stamp(2)
        self.advance_window()
        for t in range(7):
            self.issue(t, 8 + t, WP[t % len(WP)])
        self.stamp(3)
        self.spin_lds(C_QRDY, 3)
        for j in range(3):
            self(f"ds_read_b128 v[{8 + 4*j}:{11 + 4*j}], v5 offset:{L_Q + 128 * j}")
        self("s_mov_b32 s62, 0\ns_waitcnt lgkmcnt(0)")
        self.stamp(4)

        def body(consume, last=False, pre=None):
            for i in range(16):
                if pre:
                    pre(i)
                if not last or i == 0:
                    if i in (1, 9):
                        self.advance_window()
                    self.issue((i - 1) & 7, (i - 1) & 15, WP[i % len(WP)])
                elif 3 * (15 - i) < W + 3:
                    self(f"s_waitcnt vmcnt({3 * (15 - i)})")
                consume(i)

        self("L_kloop:")
        body(self.consume_k)
        self(f"""
            v_add_u32 v4, 1024, v4
            s_add_u32 s62, s62, 1
            s_and_b32 s10, s62, 3
            s_cmp_lg_u32 s10, 0
            s_cbranch_scc1 L_kloop""")
        self.lds_inc(C_KSEG)
        self("s_cmp_lt_u32 s62, 8\ns_cbranch_scc1 L_kloop")
        self.stamp(5)
        self("v_and_b32 v5, 7, v0\nv_mov_b32 v28, 0x0c0c0c0c")
        for par, (lo_sel, hi_sel) in enumerate(((0x0c0c0100, 0x01000c0c), (0x0c0c0302, 0x03020c0c))):
            self(f"v_mov_b32 v29, 0x{lo_sel:08x}\nv_mov_b32 v30, 0x{hi_sel:08x}")
            for w in range(4):
                r = 20 + par * 4 + w
                self(f"""
                    v_cmp_eq_u32 vcc, {2*w}, v5
                    v_cmp_eq_u32 s[10:11], {2*w + 1}, v5
                    s_nop 0
                    v_cndmask_b32 v{r}, v28, v29, vcc
                    v_cndmask_b32 v{r}, v{r}, v30, s[10:11]""")
        for i in range(12):
            self(f"v_mov_b32 v{8 + i}, 0")
        self("v_lshrrev_b32 v4, 3, v0\nv_lshlrev_b32 v4, 4, v4\ns_mov_b32 s62, 0")
        self.spin_lds(C_PRDY, 4)
        self.stamp(6)

        def pre_v(i):
            if i in (0, 8):
                self(f"ds_read_b128 v[36:39], v4 offset:{L_P + (i >> 3) * 512}")

        def cons_v(i):
            if i in (0, 8):
                self("s_waitcnt lgkmcnt(0)")
            self.consume_v(i)

        self("L_vloop:")
        body(cons_v, pre=pre_v)
        self(f"""
            v_add_u32 v4, 1024, v4
            s_add_u32 s62, s62, 1
            s_cmp_lg_u32 s62, 4
            s_cbranch_scc1 L_vnext""")
        self.spin_lds(C_PRDY, 8)
        self(f"ds_read_b32 v6, v1 offset:{C_F}\ns_nop 7\ns_waitcnt lgkmcnt(0)")
        for i in range(12):
            self(f"v_mul_f32 v{8 + i}, v{8 + i}, v6")
        self("L_vnext:\ns_cmp_lt_u32 s62, 7\ns_cbranch_scc1 L_vloop")
        self(f"""
            v_and_b32 v40, 7, v0
            v_lshlrev_b32 v40, 5, v40
            v_bfe_u32 v41, v0, 4, 1
            v_lshl_add_u32 v40, v41, 4, v40
            v_lshrrev_b32 v41, 5, v0
            v_mul_u32_u24 v41, 768, v41
            v_add_u32 v40, v40, v41
            v_and_b32 v41, 63, v0
            v_lshlrev_b32 v41, 4, v41
            ds_read_b128 v[44:47], v1 offset:{C_LSUM}
            ds_read_b32 v43, v1 offset:{C_NONCE}
            s_lshl_b32 s13, s6, 3
            s_add_u32 s13, s13, s8
            s_lshl_b32 s13, s13, 10
            s_add_u32 s13, s13, {OP}
            s_waitcnt lgkmcnt(0)
            v_add_f32 v44, v44, v45
            v_add_f32 v46, v46, v47
            v_add_f32 v44, v44, v46
            v_readfirstlane_b32 s92, v43
            v_rcp_f32 v42, v44""")
        self.tags(44)
        body(cons_v, last=True, pre=pre_v)
        self(f"""
            s_mov_b32 exec_lo, 0x00ff00ff
            s_mov_b32 exec_hi, 0xff00ff00
            s_nop 5
            ds_write_b128 v40, v[8:11] offset:{L_ORED}
            ds_write_b128 v40, v[12:15] offset:{L_ORED + 256}
            ds_write_b128 v40, v[16:19] offset:{L_ORED + 512}""")
        self.lds_inc(C_OCNT, ret=True)
        self.stamp(7)
        self("""
            s_cmp_lg_u32 s10, 3
            s_cbranch_scc1 L_end
            s_mov_b32 exec_hi, 0xffff""")
        for k in range(8):
            self(f"ds_read_b128 v[{64 + 4*k}:{67 + 4*k}], v41 offset:{L_ORED + 768 * k}")
        for k in range(4):
            self(f"s_waitcnt lgkmcnt({6 - 2*k})")
            for e in range(4):
                self(f"v_add_f32 v{64 + 8*k + e}, v{64 + 8*k + e}, v{68 + 8*k + e}")
        for e in range(4):
            self(f"v_add_f32 v{64 + e}, v{64 + e}, v{72 + e}\nv_add_f32 v{80 + e}, v{80 + e}, v{88 + e}")
        for e in range(4):
            self(f"v_add_f32 v{64 + e}, v{64 + e}, v{80 + e}")
        for e in range(4):
            self(f"v_mul_f32 v{64 + e}, v{64 + e}, v42")
        self.tag_data(64, 44)
        self("buffer_store_dwordx4 v[64:67], v41, s[44:47], s13 offen sc1\ns_mov_b64 exec, -1")
        self.stamp(8)
        self("s_branch L_end")

    def item_loads(self, stride):
        for s in range(2):
            for rho in range(8):
                r = 48 + (s * 8 + rho) * 2
                self(f"buffer_load_dwordx2 v[{r}:{r+1}], v44, s[40:43], s13 offen nt")
                if (s, rho) != (1, 7):
                    self(f"s_add_u32 s13, s13, {stride * (25 if rho == 7 else 1)}")

    def item_compute(self, soff):
        for s in range(2):
            for e in range(4):
                for m in range(4):
                    lo = 48 + (s * 8 + 2 * m) * 2 + (e >> 1)
                    self(f"v_perm_b32 v{80 + s*16 + e*4 + m}, v{lo + 2}, v{lo}, s{68 + (e & 1)}")
        self("s_nop 1")
        for s in range(2):
            for e in range(4):
                a = 80 + s * 16 + e * 4
                d = 112 + e * 4
                c = "0" if s == 0 else f"v[{d}:{d+3}]"
                self(f"v_mfma_f32_16x16x32_bf16 v[{d}:{d+3}], v[{a}:{a+3}], v[{36 + 4*s}:{39 + 4*s}], {c}")
        self("s_nop 7")
        for r in range(4):
            self(f"v_cndmask_b32 v{112 + r}, v{112 + r}, v{116 + r}, s[66:67]")
            self(f"v_cndmask_b32 v{120 + r}, v{120 + r}, v{124 + r}, s[66:67]")
        for r in range(4):
            self(f"v_cndmask_b32 v{112 + r}, v{112 + r}, v{120 + r}, s[64:65]")
        self.tag_data(112, 236)
        self(f"buffer_store_dwordx4 v[112:115], v45, s[44:47], {soff} offen sc1")

    def gather_partials(self, sleep):
        self("s_add_u32 s14, s13, 12288\ns_add_u32 s15, s13, 24576")
        for e in range(4):
            self(f"v_mov_b32 v{16 + e}, 0")
        self.poll([(8, "buffer_load_dwordx4 v[8:11], v46, s[44:47], s13 offen sc1"),
                   (12, "buffer_load_dwordx4 v[12:15], v46, s[44:47], s14 offen sc1"),
                   (16, "buffer_load_dwordx4 v[16:19], v46, s[44:47], s15 offen sc1")], sleep, half_last=True)
        for e in range(4):
            self(f"v_add_f32 v{8 + e}, v{8 + e}, v{12 + e}")
        for e in range(4):
            self(f"v_add_f32 v{8 + e}, v{8 + e}, v{16 + e}")
        self.rows4_reduce(8)
        self("v_cvt_pk_bf16_f32 v8, v8, v8")

    def project(self):
        self.lds_inc(C_HS)
        self.spin_lds(C_HS, 4, sleep=0)
        for s in range(6):
            self(f"ds_read_b128 v[{8 + 4*s}:{11 + 4*s}], v228 offset:{L_OBUF + 64 * s}")
        for s in range(6):
            self(f"s_waitcnt lgkmcnt({5 - s})")
            for e in range(2):
                b = 180 + s * 8 + e * 4
                d = 32 + e * 4
                c = "0" if s == 0 else f"v[{d}:{d+3}]"
                self(f"v_mfma_f32_16x16x32_bf16 v[{d}:{d+3}], v[{8 + 4*s}:{11 + 4*s}], v[{b}:{b+3}], {c}")
        self("s_mov_b32 vcc_lo, 0xffff0000\ns_mov_b32 vcc_hi, 0\ns_nop 6")
        for r in range(4):
            self(f"v_cndmask_b32 v{32 + r}, v{32 + r}, v{36 + r}, vcc")
        self.tag_data(32, 236)
        self("""
            s_mov_b32 exec_hi, 0
            buffer_store_dwordx4 v[32:35], v229, s[44:47], s75 offen sc1
            s_mov_b64 exec, -1""")

    def prep(self, g):
        o = self.o
        self.spin_lds(C_KSEG, 4 * (g + 1), sleep=8)
        self(f"""
            ds_read_b128 v[8:11], v230 offset:{L_S + 4096 * g}
            s_lshl_b32 s13, s2, 13
            s_add_u32 s13, s13, {SC + 4096 * g}
            s_xor_b32 s14, s13, {4 << 13}
            s_lshl_b32 s15, s2, 7
            s_lshl_b32 s10, s72, 3
            s_add_u32 s15, s15, s10
            s_add_u32 s15, s15, {FL + 4 * g}
            s_waitcnt lgkmcnt(0)
            {"" if "s" in o["skip"] else "buffer_store_dwordx4 v[8:11], v230, s[44:47], s13 offen " + o["scst"]}
            v_mov_b32 v5, s92
            s_waitcnt vmcnt(0)
            s_mov_b64 exec, 1
            buffer_store_dword v5, v1, s[44:47], s15 offen sc1
            s_xor_b32 s15, s15, {4 << 7}""")
        lp, dn = self.lab("fl"), self.lab("fd")
        self(f"""
            s_mov_b32 s12, 0x4000
            {lp}:
            buffer_load_dword v6, v1, s[44:47], s15 offen sc1
            s_waitcnt vmcnt(0)
            v_readfirstlane_b32 s10, v6
            s_cmp_eq_u32 s10, s92
            s_cbranch_scc1 {dn}
            s_sleep 24
            s_sub_u32 s12, s12, 1
            s_cbranch_scc0 {lp}
            s_branch L_end
            {dn}:
            s_mov_b64 exec, -1
            {"" if "s" in o["skip"] else "buffer_load_dwordx4 v[12:15], v230, s[44:47], s14 offen " + o["scld"]}""")
        self(f"""
            v_lshrrev_b32 v5, 5, v2
            s_lshl_b32 s10, s72, 1
            s_add_u32 s10, s10, {8 * g}
            v_add_u32 v5, s10, v5
            v_lshrrev_b32 v6, v5, s59
            v_lshrrev_b32 v7, 16, v6""")
        if g == 0:
            self("""
                v_bfe_u32 v32, v2, 4, 1
                v_xor_b32 v32, s4, v32
                v_cmp_eq_u32 vcc, 0, v5
                s_nop 1
                v_cndmask_b32 v6, v6, v32, vcc""")
        self("""
            v_xor_b32 v6, v6, v7
            v_and_b32 v6, 1, v6
            v_cmp_eq_u32 vcc, 1, v6
            s_nop 0
            s_waitcnt vmcnt(0)""")
        for i in range(4):
            self(f"v_cndmask_b32 v{32 + i}, v{8 + i}, v{12 + i}, vcc")
            self(f"v_cndmask_b32 v{36 + i}, v{12 + i}, v{8 + i}, vcc")
        for i in range(8):
            self(f"v_lshlrev_b32 v{8 + 2*i}, 16, v{32 + i}\nv_and_b32 v{9 + 2*i}, 0xffff0000, v{32 + i}")
        self("v_max3_f32 v24, v8, v9, v10")
        for i in range(11, 23, 2):
            self(f"v_max3_f32 v24, v24, v{i}, v{i + 1}")
        self("v_max_f32 v24, v24, v23")
        self.wave_allreduce("v_max_f32", 24, 25)
        self(f"s_lshl_b32 s10, s72, 2\nv_mov_b32 v26, s10\nds_write_b32 v26, v24 offset:{C_MAX + 16 * g}")
        self.lds_inc(C_MAXC)
        self.spin_lds(C_MAXC, 4 * (g + 1), sleep=2)
        self(f"""
            ds_read_b128 v[28:31], v1 offset:{C_MAX + 16 * g}
            s_mov_b32 s10, {f32(1.4426950408889634)}
            s_waitcnt lgkmcnt(0)
            v_max3_f32 v24, v28, v29, v30
            v_max_f32 v24, v24, v31""")
        if g == 1:
            self("""
                v_max_f32 v24, v24, v231
                v_sub_f32 v25, v231, v24
                v_mul_f32 v25, s10, v25
                v_exp_f32 v25, v25""")
        for i in range(16):
            self(f"v_sub_f32 v{8 + i}, v{8 + i}, v24")
        for i in range(16):
            self(f"v_mul_f32 v{8 + i}, s10, v{8 + i}")
        for i in range(16):
            self(f"v_exp_f32 v{8 + i}, v{8 + i}")
        for i in range(4):
            self(f"v_cvt_pk_bf16_f32 v{32 + i}, v{8 + 2*i}, v{9 + 2*i}")
        self(f"ds_write_b128 v230, v[32:35] offset:{L_P + 4096 * g}")
        for step in (8, 4, 2, 1):
            for i in range(step):
                self(f"v_add_f32 v{8 + i}, v{8 + i}, v{8 + step + i}")
        if g == 0:
            self("v_mov_b32 v231, v24\nv_mov_b32 v232, v8")
        else:
            self("v_fma_f32 v8, v232, v25, v8")
            self.wave_allreduce("v_add_f32", 8, 9)
            self(f"ds_write_b32 v26, v8 offset:{C_LSUM}\nds_write_b32 v1, v25 offset:{C_F}")
        self.lds_inc(C_PRDY)

    def helper(self):
        o = self.o
        self.in_helper = True
        self("L_helper:")
        self(f"""
            s_sub_u32 s72, s3, 4
            s_lshl_b32 s73, s8, 2
            s_add_u32 s73, s73, s72
            s_mul_i32 s70, s73, 86
            s_lshr_b32 s70, s70, 8
            s_mul_i32 s71, s70, 3
            s_sub_u32 s71, s73, s71
            s_cmp_ge_u32 s73, 30
            s_cselect_b32 s74, 0x80000000, 0
            s_cselect_b32 s70, 0, s70
            v_and_b32 v3, 15, v2
            v_lshrrev_b32 v4, 4, v2
            v_mul_u32_u24 v5, 1280, v4
            v_lshl_add_u32 v5, v3, 4, v5
            v_lshrrev_b32 v6, 2, v3
            v_mul_u32_u24 v7, 1280, v6
            v_lshl_add_u32 v7, v4, 4, v7
            s_lshl_b32 s14, s70, 7
            v_mul_u32_u24 v44, {8 * 12288}, v4
            v_lshl_add_u32 v44, v3, 3, v44
            v_or_b32 v44, s74, v44
            s_mul_i32 s13, s70, {64 * 12288}
            s_mul_i32 s10, s6, 384
            s_add_u32 s13, s13, s10
            s_lshl_b32 s10, s71, 7
            s_add_u32 s13, s13, s10
            s_or_b32 s10, s2, s72""")
        self.args_ready()
        self("""
            s_cmp_lg_u32 s10, 0
            s_cbranch_scc1 L_nononce
            s_lshl_b32 s10, s94, 2
            s_or_b32 s10, s10, 1
            v_mov_b32 v47, s10
            v_lshlrev_b32 v46, 2, v2
            global_store_dword v46, v47, s[34:35] sc1
            L_nononce:""")
        self.srd(48, 16, 5120)
        self.srd(40, 22, 640 * 6144 * 2)
        self.stamp(1, 2)
        self("s_barrier")
        self.stamp(2, 2)
        for i in range(5):
            self(f"buffer_load_dwordx4 v[{8 + 4*i}:{11 + 4*i}], v5, s[48:51], 0 offen offset:{256 * i}")
        self(f"""
            buffer_load_dwordx4 v[28:31], v7, s[48:51], s14 offen
            buffer_load_dwordx4 v[32:35], v7, s[48:51], s14 offen offset:64""")
        self.item_loads(12288)
        self.stamp(3, 2)
        self.srd(44, 36, WS_END)
        self(f"""
            s_lshr_b32 s10, s2, 5
            s_lshl_b32 s10, s10, 2
            s_and_b32 s11, s2, 3
            s_add_u32 s10, s10, s11
            s_sub_u32 s11, s8, 5
            s_lshl_b32 s11, s11, 5
            s_add_u32 s10, s10, s11
            s_mul_i32 s11, s10, 52
            s_lshr_b32 s11, s11, 8
            s_mul_i32 s12, s11, 5
            s_sub_u32 s12, s10, s12
            s_add_u32 s11, s11, 32
            s_sub_u32 s77, s10, 56
            s_cmp_ge_u32 s10, 56
            s_cselect_b32 s76, 3, 2
            s_cmp_lt_u32 s10, 40
            s_cselect_b32 s76, 1, s76
            s_cselect_b32 s77, s11, s77
            s_cmp_lt_u32 s8, 5
            s_cselect_b32 s76, 0, s76
            s_cselect_b32 s77, s6, s77
            s_cselect_b32 s12, s8, s12
            s_lshl_b32 s39, s12, 2
            s_add_u32 s39, s39, s72
            s_mul_i32 s75, s77, 10240
            s_lshl_b32 s10, s39, 9
            s_add_u32 s75, s75, s10
            s_add_u32 s75, s75, {YP}
            s_and_b32 s38, s6, 3
            s_or_b32 s38, s38, s74
            s_lshl_b32 s60, s6, 5
            s_add_u32 s60, s60, s73
            s_lshl_b32 s60, s60, 10
            s_lshr_b32 s61, s6, 2
            s_add_u32 s61, s61, 32
            s_lshl_b32 s61, s61, 5
            s_add_u32 s61, s61, s73
            s_lshl_b32 s61, s61, 10
            s_mov_b32 s68, 0x05040100
            s_mov_b32 s69, 0x07060302
            v_lshlrev_b32 v229, 4, v2
            v_lshlrev_b32 v45, 8, v6
            v_lshl_add_u32 v45, v4, 6, v45
            v_and_b32 v46, 3, v2
            v_lshl_add_u32 v45, v46, 4, v45
            v_or_b32 v45, s74, v45
            v_mul_u32_u24 v228, 384, v46
            v_lshl_add_u32 v228, v4, 4, v228
            v_lshlrev_b32 v233, 5, v6
            v_lshl_add_u32 v233, v4, 3, v233
            v_lshl_add_u32 v233, v46, 1, v233
            v_mul_u32_u24 v46, 3072, v4
            v_lshl_add_u32 v46, v3, 4, v46
            s_lshl_b32 s10, s72, 10
            v_add_u32 v230, s10, v229
            v_lshlrev_b32 v234, 6, v6""")
        self.stamp(4, 2)
        for k in range(o["ntry"]):
            self(f"""
                s_load_dword s92, s[34:35], {64 * k}
                s_waitcnt lgkmcnt(0)
                s_cmp_lg_u32 s92, 0
                s_cbranch_scc1 L_ndone
                s_sleep {o["nsleep"]}""")
        self("""
            s_mov_b32 s12, 0x4000
            L_npoll:
            global_load_dword v5, v1, s[34:35] sc1
            s_waitcnt vmcnt(0)
            v_readfirstlane_b32 s92, v5
            s_cmp_lg_u32 s92, 0
            s_cbranch_scc1 L_ndone
            s_sleep 4
            s_sub_u32 s12, s12, 1
            s_cbranch_scc0 L_npoll
            s_branch L_end
            L_ndone:""")
        self.stamp(1)
        self.stamp(5, 2)
        self("s_cmp_lg_u32 s72, 3\ns_cbranch_scc1 L_norec")
        self.spin_lds(C_PROBE, 2, sleep=0)
        self(f"""
            s_and_b32 s10, s10, 1
            s_lshl_b32 s11, s9, 1
            s_or_b32 s10, s10, s11
            s_and_b32 s11, s92, -4
            s_or_b32 s10, s10, s11
            s_lshl_b32 s11, s7, 1
            s_add_u32 s11, s11, s4
            s_lshl_b32 s11, s11, 7
            s_add_u32 s11, s11, {VR}
            v_mov_b32 v5, s10
            v_mov_b32 v6, s92
            s_mov_b64 exec, 1
            buffer_store_dword v5, v1, s[44:47], s11 offen sc1
            ds_write_b32 v1, v6 offset:{C_NONCE}
            s_mov_b64 exec, -1
            L_norec:""")
        self.tags(236)
        self("s_mov_b32 s10, 0x3f803f80\ns_waitcnt vmcnt(16)")
        self.stamp(6, 2)
        for i in range(20):
            self(f"v_dot2_f32_bf16 v40, v{8 + i}, s10, {'0' if i == 0 else 'v40'}")
        self("s_nop 1")
        self.row16_allreduce("v_add_f32", 40)
        self(f"v_mul_f32 v40, {f32(1 / 640)}, v40")
        self("v_mov_b32 v41, 0\nv_mov_b32 v42, 0")
        for i in range(20):
            self(f"""
                v_lshlrev_b32 v36, 16, v{8 + i}
                v_and_b32 v37, 0xffff0000, v{8 + i}
                v_sub_f32 v36, v36, v40
                v_sub_f32 v37, v37, v40
                v_fmac_f32 v41, v36, v36
                v_fmac_f32 v42, v37, v37""")
        self("v_add_f32 v41, v41, v42")
        self.row16_allreduce("v_add_f32", 41)
        self(f"v_mul_f32 v41, {f32(1 / 640)}, v41")
        self.bf16_round(41)
        self(f"v_add_f32 v41, {f32(1e-5)}, v41")
        self.bf16_round(41)
        self("v_sqrt_f32 v41, v41\ns_nop 0")
        self.bf16_round(41)
        self("v_rcp_f32 v41, v41")
        self.bf16_round(40)
        self("""
            ds_bpermute_b32 v40, v234, v40
            ds_bpermute_b32 v41, v234, v41""")
        for i in range(8):
            self(f"v_lshlrev_b32 v{8 + 2*i}, 16, v{28 + i}\nv_and_b32 v{9 + 2*i}, 0xffff0000, v{28 + i}")
        self("s_waitcnt lgkmcnt(0)")
        for i in range(16):
            self(f"v_sub_f32 v{8 + i}, v{8 + i}, v40")
        for i in range(8):
            self(f"v_cvt_pk_bf16_f32 v{28 + i}, v{8 + 2*i}, v{9 + 2*i}")
        for i in range(8):
            self(f"v_lshlrev_b32 v{8 + 2*i}, 16, v{28 + i}\nv_and_b32 v{9 + 2*i}, 0xffff0000, v{28 + i}")
        for i in range(16):
            self(f"v_mul_f32 v{8 + i}, v{8 + i}, v41")
        for i in range(8):
            self(f"v_cvt_pk_bf16_f32 v{36 + i}, v{8 + 2*i}, v{9 + 2*i}")
        self.stamp(2)
        self.stamp(7, 2)
        self("""
            s_waitcnt vmcnt(1)
            s_cmp_eq_u32 s72, 3
            s_cbranch_scc1 L_wready
            s_waitcnt vmcnt(0)
            L_wready:""")
        self.stamp(8, 2)
        self.item_compute("s60")
        self.stamp(3)
        self.stamp(9, 2)
        self("s_cmp_eq_u32 s72, 3\ns_cbranch_scc1 L_vote")
        self(f"""
            s_lshl_b32 s13, s6, 15
            s_lshl_b32 s10, s72, 10
            s_add_u32 s13, s13, s10
            s_lshl_b32 s10, s5, 8
            s_add_u32 s13, s13, s10""")
        self.stamp(4)
        self.gather_partials(o["qsleep"])
        self(f"s_lshl_b32 s10, s72, 7\nv_add_u32 v9, s10, v233\nds_write_b16 v9, v8 offset:{L_Q}")
        self.lds_inc(C_QRDY)
        self("s_branch L_qdone")
        GS = o["gs"]
        self(f"""
            L_vote:
            s_mul_i32 s57, s7, 3
            s_lshr_b32 s57, s57, 1
            s_lshr_b32 s14, s57, {GS}
            s_add_u32 s15, s57, 1
            s_lshr_b32 s15, s15, {GS}
            s_mul_i32 s13, s14, {171 << GS}
            s_lshr_b32 s13, s13, 9
            v_lshrrev_b32 v9, 2, v2
            v_add_u32 v9, s13, v9
            v_mul_u32_u24 v9, 3, v9
            v_and_b32 v10, 2, v2
            v_add_u32 v9, v9, v10
            v_lshrrev_b32 v9, {GS}, v9
            v_cmp_eq_u32 s[52:53], s14, v9
            v_cmp_eq_u32 s[54:55], s15, v9
            v_lshlrev_b32 v9, 7, v2
            s_lshl_b32 s58, s13, 1
            s_sub_u32 s58, s7, s58
            s_lshl_b32 s58, s58, 1
            s_lshl_b32 s13, s13, 9
            s_add_u32 s13, s13, {VR}
            s_lshr_b32 s14, s92, 2
            s_mov_b32 s12, 0x4000
            s_or_b64 exec, s[52:53], s[54:55]
            L_annpoll:
            buffer_load_dword v8, v9, s[44:47], s13 offen sc1
            s_waitcnt vmcnt(0)
            v_lshrrev_b32 v10, 2, v8
            v_cmp_ne_u32 vcc, s14, v10
            s_cmp_eq_u64 vcc, 0
            s_cbranch_scc1 L_anndone
            s_sleep {o["asleep"]}
            s_sub_u32 s12, s12, 1
            s_cbranch_scc0 L_annpoll
            s_branch L_end
            L_anndone:
            v_and_b32 v10, 1, v8
            v_readlane_b32 s63, v8, s58
            v_cmp_eq_u32 vcc, 1, v10
            s_mov_b64 exec, -1
            s_lshr_b32 s63, s63, 1
            s_xor_b32 s63, s63, s4
            s_bitcmp1_b32 s7, 0
            s_cselect_b32 s58, 0x1f, 0x7ff
            s_mov_b32 s59, 0""")
        for pg in range(2):
            for buf, lanes in enumerate((0x99999999, 0x66666666)):
                self(f"""
                    s_and_b32 s10, s{52 + 2*pg}, 0x{lanes:x}
                    s_and_b32 s11, s{53 + 2*pg}, 0x{lanes:x}
                    s_bcnt1_i32_b64 s14, s[10:11]
                    s_and_b64 s[10:11], s[10:11], vcc
                    s_bcnt1_i32_b64 s15, s[10:11]
                    s_lshl_b32 s15, s15, 1
                    s_cmp_gt_u32 s15, s14
                    s_cselect_b32 s10, 1, 0
                    s_xor_b32 s10, s10, s57
                    s_xor_b32 s10, s10, s63
                    s_lshl_b32 s11, s58, {16 * buf}
                    s_bitcmp1_b32 s10, 0
                    s_cselect_b32 s11, s11, 0
                    s_or_b32 s59, s59, s11""")
            if pg == 0:
                self("s_add_u32 s57, s57, 1\ns_xor_b32 s58, s58, 0xffff")
        if o["numa"] == "far":
            self("s_not_b32 s59, s59")
        elif o["numa"] == "mix":
            self("s_xor_b32 s10, s4, s7\ns_bitcmp1_b32 s10, 0\ns_cselect_b32 s59, -1, 0\ns_xor_b32 s59, s59, 0x55555555")
        self(f"""
            v_mov_b32 v6, 1
            v_mov_b32 v7, s59
            ds_write_b64 v1, v[6:7] offset:{C_VOTE}""")
        self.stamp(4)
        self("L_qdone:")
        self.stamp(5)
        self.stamp(10, 2)
        self("s_cmp_lg_u32 s38, 0\ns_cbranch_scc1 L_now1")
        self.srd(40, 28, 640 * 1536 * 2)
        self(f"""
            v_mul_u32_u24 v44, {8 * 3072}, v4
            v_lshl_add_u32 v44, v3, 3, v44
            s_mul_i32 s13, s70, {64 * 3072}
            s_mul_i32 s10, s6, 96
            s_add_u32 s13, s13, s10
            s_lshl_b32 s10, s71, 7
            s_add_u32 s13, s13, s10""")
        self.item_loads(3072)
        self("s_waitcnt vmcnt(0)")
        self.item_compute("s61")
        self("L_now1:")
        self(f"""
            s_cmp_ge_u32 s76, 2
            s_cbranch_scc1 L_noproj
            s_mov_b32 s42, {1536 * 1280}
            s_cmp_eq_u32 s76, 0
            s_cselect_b32 s40, s24, s30
            s_cselect_b32 s41, s25, s31
            s_cselect_b32 s42, {6144 * 1280}, s42
            s_and_b32 s41, s41, 0xffff
            s_mov_b32 s43, 0x20000
            s_and_b32 s13, s77, 31
            s_mul_i32 s13, s13, {192 * 1280}
            s_lshl_b32 s10, s39, 6
            s_add_u32 s13, s13, s10
            v_mul_u32_u24 v44, {8 * 1280}, v4
            v_lshl_add_u32 v44, v3, 2, v44""")
        for s in range(0 if "w" in o["skip"] else 6):
            for rho in range(8):
                self(f"s_waitcnt vmcnt({o['wdepth'] - 1})")
                self(f"buffer_load_dword v{132 + s*8 + rho}, v44, s[40:43], s13 offen nt")
                self(f"s_add_u32 s13, s13, {1280 * (25 if rho == 7 else 1)}")
        self("s_waitcnt vmcnt(0)")
        for s in range(6):
            for e in range(2):
                for m in range(4):
                    lo = 132 + s * 8 + 2 * m
                    self(f"v_perm_b32 v{180 + s*8 + e*4 + m}, v{lo + 1}, v{lo}, s{68 + e}")
        self("s_cmp_eq_u32 s76, 0\ns_cbranch_scc1 L_noproj")
        self(f"""
            s_lshl_b32 s62, s77, 15
            s_lshl_b32 s10, s72, 8
            s_add_u32 s62, s62, s10
            s_mul_i32 s10, s72, 384
            v_add_u32 v20, s10, v233
            s_mov_b32 s63, 0
            L_hloop:
            s_mov_b32 s13, s62""")
        self.gather_partials(16)
        self(f"""
            v_lshlrev_b32 v8, 16, v8
            v_mul_f32 v9, {f32(-1.4426950408889634)}, v8
            v_exp_f32 v9, v9
            s_nop 0
            v_add_f32 v9, 1.0, v9
            v_rcp_f32 v9, v9
            s_nop 0
            v_mul_f32 v8, v8, v9
            v_cvt_pk_bf16_f32 v8, v8, v8
            ds_write_b16 v20, v8 offset:{L_OBUF}
            v_add_u32 v20, 128, v20
            s_add_u32 s62, s62, 1024
            s_add_u32 s63, s63, 1
            s_cmp_lt_u32 s63, 3
            s_cbranch_scc1 L_hloop""")
        self.project()
        self("L_noproj:")
        self.stamp(6)
        self.spin_lds(C_VOTE, 1, wide=True)
        self("s_mov_b32 s59, s11")
        self.prep(0)
        self.stamp(7)
        self.prep(1)
        self.stamp(8)
        self("""
            s_cmp_eq_u32 s76, 3
            s_cbranch_scc1 L_reduce
            s_cmp_lg_u32 s76, 0
            s_cbranch_scc1 L_end""")
        self(f"""
            s_lshl_b32 s13, s6, 3
            s_lshl_b32 s10, s72, 1
            s_add_u32 s13, s13, s10
            s_lshl_b32 s13, s13, 10
            s_add_u32 s13, s13, {OP}
            s_mul_i32 s10, s72, 384
            v_lshlrev_b32 v20, 3, v2
            v_add_u32 v20, s10, v20""")
        self.spin_lds(C_OCNT, 1, sleep=o["tsleep"])
        self("s_setprio 3\ns_mov_b32 exec_hi, 0xffff")
        self.poll([(8, "buffer_load_dwordx4 v[8:11], v229, s[44:47], s13 offen sc1"),
                   (12, "buffer_load_dwordx4 v[12:15], v229, s[44:47], s13 offen offset:1024 sc1")], o["psleep"])
        for e in range(4):
            self(f"v_add_f32 v{8 + e}, v{8 + e}, v{12 + e}")
        self(f"""
            v_cvt_pk_bf16_f32 v8, v8, v9
            v_cvt_pk_bf16_f32 v9, v10, v11
            ds_write_b64 v20, v[8:9] offset:{L_OBUF}""")
        self.stamp(9)
        self.project()
        self.stamp(10)
        self("s_branch L_end")
        self("L_reduce:\ns_cmp_lg_u32 s72, 0\ns_cbranch_scc1 L_end")
        self.srd(52, 32, 5120)
        self(f"""
            v_mul_u32_u24 v44, 10240, v4
            v_bfe_u32 v5, v2, 3, 1
            v_lshl_add_u32 v44, v5, 8, v44
            v_and_b32 v6, 7, v2
            v_lshl_add_u32 v44, v6, 4, v44
            v_mul_u32_u24 v45, 1280, v4
            v_lshl_add_u32 v45, v6, 2, v45
            v_lshl_add_u32 v45, v5, 1, v45
            s_lshr_b32 s10, s77, 1
            s_lshl_b32 s13, s10, 9
            s_and_b32 s11, s77, 1
            s_lshl_b32 s11, s11, 7
            s_add_u32 s13, s13, s11
            s_add_u32 s13, s13, {YP}
            s_lshl_b32 s62, s77, 5
            buffer_load_ushort v46, v45, s[48:51], s62 offen""")
        for i in range(10):
            self(f"s_add_u32 s{16 + i}, s13, {40960 * i}")
        self("s_waitcnt vmcnt(0)")
        self.poll([(40, "buffer_load_dwordx4 v[40:43], v44, s[44:47], s24 offen sc1"),
                   (12, "buffer_load_dwordx4 v[12:15], v44, s[44:47], s25 offen sc1")], 16)
        for e in range(4):
            self(f"v_add_f32 v{40 + e}, v{40 + e}, v{12 + e}")
        self.rows4_reduce(40)
        self.bf16_round(40)
        self("v_lshlrev_b32 v46, 16, v46")
        self.spin_lds(C_OCNT, 1, sleep=o["tsleep"])
        self("s_setprio 3")
        self.poll([(8 + 4*i, f"buffer_load_dwordx4 v[{8 + 4*i}:{11 + 4*i}], v44, s[44:47], s{16 + i} offen sc1")
                   for i in range(8)], o["psleep"])
        self.stamp(9)
        for step in (16, 8, 4):
            for i in range(step):
                self(f"v_add_f32 v{8 + i}, v{8 + i}, v{8 + step + i}")
        self.rows4_reduce(8)
        self.bf16_round(8)
        self("v_add_f32 v8, v46, v8")
        self.bf16_round(8)
        self("""
            v_add_f32 v8, v8, v40
            v_cvt_pk_bf16_f32 v8, v8, v8
            buffer_store_short v8, v45, s[52:55], s62 offen""")
        self.stamp(10)

    def finish(self):
        self("L_end:")
        if self.o["stamps"]:
            self(f"""
                s_waitcnt vmcnt(0)
                s_memrealtime s[78:79]
                s_getreg_b32 s93, hwreg(HW_REG_XCC_ID)
                s_waitcnt lgkmcnt(0)
                s_mov_b32 s91, s78
                s_mov_b64 exec, 1
                s_lshl_b32 s10, s2, 3
                s_add_u32 s10, s10, s3
                s_lshl_b32 s10, s10, 6
                s_add_u32 s10, s10, {STAMPS}
                v_mov_b32 v5, s10""")
            for i in range(12):
                self(f"v_mov_b32 v{8 + i}, s{80 + i}")
            self("v_mov_b32 v20, s93\nv_mov_b32 v21, s59\nv_mov_b32 v22, s7\nv_mov_b32 v23, s76")
            for i in range(4):
                self(f"global_store_dwordx4 v5, v[{8 + 4*i}:{11 + 4*i}], s[36:37] offset:{16 * i}")
        if self.o["dbgout"]:
            self("""
                s_cmp_lg_u32 s3, 0
                s_cbranch_scc1 L_exit
                s_cmp_lg_u32 s4, 0
                s_cbranch_scc1 L_exit""")
            for i, reg in enumerate((0, 40, 84, 88, 126)):
                nx = self.lab("dg")
                self(f"""
                    s_cmp_lg_u32 s7, {reg}
                    s_cbranch_scc1 {nx}
                    s_sub_u32 s10, s85, s80
                    s_sub_u32 s11, s87, s80
                    s_sub_u32 s12, s84, s80
                    s_mul_i32 s12, s12, 100000
                    s_add_u32 s10, s10, s12
                    s_and_b32 s12, s59, 0x10002
                    v_mov_b32 v8, s10
                    v_mov_b32 v9, s11
                    v_mov_b32 v10, s12
                    global_store_dwordx3 v1, v[8:10], s[34:35] offset:{4 + 12 * i}
                    {nx}:""")
        self("L_exit:\ns_endpgm")

    def build(self):
        head = open(f"cdna_kernels/{NAME}.s.ref").read().split("\n") if self.o["head"] else []
        out = [ln for ln in head if ln.startswith(";") and "@launch" not in ln][:14]
        out.append(f"; @launch grid=(256,1,1) block=(512,1,1) lds={LDS_BYTES}")
        out.append(DOC.strip("\n"))
        out += ['.amdgcn_target "amdgcn-amd-amdhsa--gfx950"', ".text", f".globl {NAME}_kernel", ".p2align 8",
                f".type {NAME}_kernel,@function", f"{NAME}_kernel:"]
        self.entry()
        self.streamer()
        self.helper()
        self.finish()
        out += self.L
        out += [".p2align 8", ".type L_table,@object", "L_table:"]
        T = row_table()
        for sig in range(2):
            for w in range(4):
                for g in range(8):
                    out.append("  .long " + ", ".join(str(T[sig][w][g][t] * 384) for t in range(8)))
        out.append(".size L_table, 2048")
        out += ['.section .rodata,"a"', ".p2align 6", f".amdhsa_kernel {NAME}_kernel",
                "  .amdhsa_next_free_vgpr 256", "  .amdhsa_next_free_sgpr 102", "  .amdhsa_accum_offset 256",
                "  .amdhsa_group_segment_fixed_size 0", "  .amdhsa_kernarg_size 88", "  .amdhsa_user_sgpr_count 2",
                "  .amdhsa_user_sgpr_kernarg_segment_ptr 1", "  .amdhsa_system_sgpr_workgroup_id_x 1",
                ".end_amdhsa_kernel"]
        return "\n".join(out) + "\n"


DOC = """
"""

DEFAULTS = dict(stamps=0, head=1, wait="3", wait0=3, gap=40, gs=4, numa="near", scst="sc1 nt",
                scld="sc1 nt", asleep=4, qsleep=2, wdepth=4, tsleep=2, psleep=0, ntry=4, nsleep=2, tabearly=0, skip="", dbgout=0)

if __name__ == "__main__":
    opt = dict(DEFAULTS)
    for kv in sys.argv[2:]:
        k, v = kv.split("=")
        assert k in opt, k
        opt[k] = int(v) if isinstance(DEFAULTS[k], int) else v.replace("+", " ")
    open(sys.argv[1], "w").write(Gen(opt).build())
```

```python
import struct
import sys

NAME = "parallel_sum__mha_block_cached__dense_activation_silu__decode"
KV_BYTES = 4 * 32 * 8192 * 192 * 2
REGION = 3 << 20
WIN = 196608

QP, YP, OP, FL, VR, SC, WS_END = 0x0, 0x140000, 0x1B0000, 0x1F0000, 0x1F8000, 0x200000, 0x400000
STAMPS = 0x1000000
L_S, L_P, L_ORED, L_OBUF, L_Q, L_C = 0x0, 0x2000, 0x4000, 0x5800, 0x5E00, 0x6000
C_NONCE, C_PROBE, C_VOTE, C_QRDY, C_KSEG, C_PRDY, C_MAXC, C_OCNT, C_HS, C_F = (
    L_C + 0, L_C + 4, L_C + 8, L_C + 16, L_C + 20, L_C + 24, L_C + 28, L_C + 32, L_C + 36, L_C + 40)
C_MAX, C_LSUM = L_C + 48, L_C + 80
LDS_BYTES = 0x6100


def f32(x):
    return "0x%08x" % struct.unpack("<I", struct.pack("<f", x))[0]


def block_rows(b):
    t, r = divmod(b, 3)
    lo, hi = ((0, 21), (21, 43), (43, 64))[r]
    return list(range(64 * t + lo, 64 * t + hi))


def row_table():
    T = []
    for sig in range(2):
        lo = sum((block_rows(sig + o) for o in (0, 2, 8, 10, 16, 18)), [])
        up = sum((block_rows(sig + o + 4) for o in (0, 2, 8, 10, 16, 18)), [])
        T.append([[[(lo if g < 4 else up)[4 * (8 * w + t) + (g & 3)] for t in range(8)]
                   for g in range(8)] for w in range(4)])
    return T


class Gen:
    def __init__(self, opt):
        self.o = opt
        self.L = []
        self.nlab = 0
        self.in_helper = False

    def __call__(self, text):
        for line in text.strip("\n").split("\n"):
            line = line.strip()
            if line:
                self.L.append(line if line.endswith(":") else "  " + line)

    def lab(self, base):
        self.nlab += 1
        return f"L_{base}{self.nlab}"

    def stamp(self, idx, mode=1):
        if self.o["stamps"] == mode or (self.o["stamps"] and not self.in_helper):
            self(f"s_memrealtime s[78:79]\ns_waitcnt lgkmcnt(0)\ns_mov_b32 s{80 + idx}, s78")

    def spin_lds(self, off, target, sleep=1, wide=False):
        lp, dn = self.lab("sp"), self.lab("sd")
        self("s_mov_b32 s12, 0x40000")
        self(f"{lp}:")
        if wide:
            self(f"ds_read_b64 v[6:7], v1 offset:{off}")
        else:
            self(f"ds_read_b32 v6, v1 offset:{off}")
        self("s_waitcnt lgkmcnt(0)\nv_readfirstlane_b32 s10, v6")
        if wide:
            self("v_readfirstlane_b32 s11, v7")
        self(f"""
            s_cmp_ge_u32 s10, {target}
            s_cbranch_scc1 {dn}
            s_sleep {sleep}
            s_sub_u32 s12, s12, 1
            s_cbranch_scc0 {lp}
            s_branch L_end
            {dn}:""")

    def lds_inc(self, off, ret=False):
        self("s_mov_b64 exec, 1\nv_mov_b32 v5, 1")
        if ret:
            self(f"ds_add_rtn_u32 v6, v1, v5 offset:{off}\ns_waitcnt lgkmcnt(0)\nv_readfirstlane_b32 s10, v6")
        else:
            self(f"ds_add_u32 v1, v5 offset:{off}")
        self("s_mov_b64 exec, -1")

    def tags(self, t):
        self(f"""
            s_mul_i32 s10, s92, 0x9e3779b1
            s_mul_hi_u32 s11, s92, 0x85ebca6b
            s_mul_i32 s12, s92, 0xc2b2ae35
            s_xor_b32 s11, s11, s12
            v_mov_b32 v{t}, s10
            v_mov_b32 v{t+1}, s11
            v_and_b32 v{t+2}, 1, v0
            v_cndmask_b32 v{t}, v{t}, v{t+1}, s[64:65]
            v_lshlrev_b32 v{t+2}, 4, v{t+2}
            v_lshrrev_b32 v{t}, v{t+2}, v{t}
            v_lshrrev_b32 v{t+1}, 4, v{t}
            v_lshrrev_b32 v{t+2}, 8, v{t}
            v_lshrrev_b32 v{t+3}, 12, v{t}""")

    def tag_data(self, r, t):
        for e in range(4):
            self(f"v_bfi_b32 v{r + e}, 15, v{t + e}, v{r + e}")

    def poll(self, loads, sleep, t=236, half_last=False):
        lp, dn = self.lab("pl"), self.lab("pd")
        n = len(loads)
        self("s_mov_b32 s12, 0x4000")
        self(f"{lp}:")
        for i, (r, ins) in enumerate(loads):
            if half_last and i == n - 1:
                self(f"s_mov_b32 exec_hi, 0\n{ins}\ns_mov_b32 exec_hi, -1")
            else:
                self(ins)
        for i, (r, ins) in enumerate(loads):
            self(f"s_waitcnt vmcnt({n - 1 - i})")
            if half_last and i == n - 1:
                self("s_mov_b32 exec_hi, 0")
            for e in range(4):
                if i == 0 and e == 0:
                    self(f"v_xor_b32 v5, v{r}, v{t}")
                else:
                    self(f"v_bitop3_b32 v5, v5, v{r + e}, v{t + e} bitop3:0xf6")
            for e in range(4):
                self(f"v_and_b32 v{r + e}, -16, v{r + e}")
            if half_last and i == n - 1:
                self("s_mov_b32 exec_hi, -1")
        self(f"""
            v_and_b32 v5, 15, v5
            v_cmp_ne_u32 vcc, 0, v5
            s_cmp_eq_u64 vcc, 0
            s_cbranch_scc1 {dn}""")
        if sleep:
            self(f"s_sleep {sleep}")
        self(f"""
            s_sub_u32 s12, s12, 1
            s_cbranch_scc0 {lp}
            s_branch L_end
            {dn}:""")

    def rows4_reduce(self, r):
        self(f"""
            s_nop 1
            v_permlane16_swap_b32 v{r}, v{r+1}
            v_permlane16_swap_b32 v{r+2}, v{r+3}
            s_nop 1
            v_add_f32 v{r}, v{r}, v{r+1}
            v_add_f32 v{r+2}, v{r+2}, v{r+3}
            s_nop 1
            v_permlane32_swap_b32 v{r}, v{r+2}
            s_nop 1
            v_add_f32 v{r}, v{r}, v{r+2}""")

    def row16_allreduce(self, op, r):
        for ctl in ("quad_perm:[1,0,3,2]", "quad_perm:[2,3,0,1]", "row_half_mirror", "row_mirror"):
            self(f"s_nop 1\n{op}_dpp v{r}, v{r}, v{r} {ctl} row_mask:0xf bank_mask:0xf")

    def wave_allreduce(self, op, r, t):
        self.row16_allreduce(op, r)
        for sw in ("v_permlane16_swap_b32", "v_permlane32_swap_b32"):
            self(f"v_mov_b32 v{t}, v{r}\ns_nop 1\n{sw} v{r}, v{t}\ns_nop 1\n{op} v{r}, v{r}, v{t}")

    def bf16_round(self, r):
        self(f"v_cvt_pk_bf16_f32 v{r}, v{r}, v{r}\nv_lshlrev_b32 v{r}, 16, v{r}")

    def srd(self, d, p, size):
        self(f"s_mov_b32 s{d}, s{p}\ns_and_b32 s{d+1}, s{p+1}, 0xffff\ns_mov_b32 s{d+2}, {size}\ns_mov_b32 s{d+3}, 0x20000")

    def entry(self):
        o = self.o
        self(f"""
            s_cmp_ge_u32 s2, 256
            s_cbranch_scc1 L_exit
            s_load_dwordx16 s[16:31], s[0:1], 0
            s_load_dwordx4 s[32:35], s[0:1], 64
            s_load_dwordx2 s[36:37], s[0:1], 80
            s_memrealtime s[94:95]
            v_lshrrev_b32 v2, 6, v0
            v_mov_b32 v1, 0
            v_readfirstlane_b32 s3, v2
            v_and_b32 v2, 63, v0
            v_lshlrev_b32 v5, 2, v2
            ds_write_b32 v5, v1 offset:{L_C}
            s_getreg_b32 s9, hwreg(HW_REG_XCC_ID)
            s_bfe_u32 s9, s9, 0x10002
            s_bfe_u32 s4, s2, 0x10002
            s_bfe_u32 s5, s2, 0x20003
            s_and_b32 s6, s2, 3
            s_lshl_b32 s6, s6, 3
            s_lshr_b32 s10, s2, 5
            s_add_u32 s6, s6, s10
            s_lshl_b32 s7, s5, 5
            s_add_u32 s7, s7, s6
            s_lshl_b32 s8, s5, 1
            s_add_u32 s8, s8, s4
            s_mov_b32 s64, 0xcccccccc
            s_mov_b32 s65, 0xcccccccc
            s_mov_b32 s66, 0xaaaaaaaa
            s_mov_b32 s67, 0xaaaaaaaa""")
        if o["stamps"]:
            for i in range(1, 12):
                self(f"s_mov_b32 s{80 + i}, 0")
        self("s_cmp_ge_u32 s3, 4\ns_cbranch_scc1 L_helper")

    def args_ready(self):
        self("s_waitcnt lgkmcnt(0)")
        if self.o["stamps"]:
            self("s_mov_b32 s80, s94")

    def advance_window(self):
        self(f"""
            s_add_u32 s58, s58, 1
            s_add_u32 s57, s57, {WIN}
            s_cmp_eq_u32 s58, 16
            s_cselect_b32 s57, s56, s57
            s_cselect_b32 s40, s20, s40
            s_cselect_b32 s41, s63, s41
            s_bitcmp1_b32 s59, s58
            s_cselect_b64 s[60:61], -1, 0""")

    def issue(self, t, slot, wait):
        vo = 2 + (slot & 1)
        self(f"v_cndmask_b32 v{vo}, v{48 + t}, v{56 + t}, s[60:61]")
        if wait is not None:
            self(f"s_waitcnt vmcnt({wait})")
        for j in range(3):
            r = 64 + slot * 12 + j * 4
            self(f"buffer_load_dwordx4 v[{r}:{r+3}], v{vo}, s[40:43], s57 offen offset:{128 * j} nt")

    def consume_k(self, slot):
        t = slot & 7
        r = 64 + slot * 12
        for i in range(1 if "k" in self.o["skip"] else 12):
            c = "0" if i == 0 else f"v{20 + t}"
            self(f"v_dot2_f32_bf16 v{20 + t}, v{r + i}, v{8 + i}, {c}")
        if t == 7:
            self("s_nop 2")
            for k in range(4):
                self(f"v_add_f32_dpp v{20 + k}, v{20 + k}, v{20 + k} row_shl:4 row_mask:0xf bank_mask:0x5")
            for k in range(4):
                self(f"v_add_f32_dpp v{20 + k}, v{24 + k}, v{24 + k} row_shr:4 row_mask:0xf bank_mask:0xa")
            for k in range(4):
                self(f"v_add_f32_dpp v{24 + k}, v{20 + k}, v{20 + k} quad_perm:[2,3,0,1] row_mask:0xf bank_mask:0xf")
            self("""
                v_cndmask_b32 v20, v24, v26, s[64:65]
                v_cndmask_b32 v21, v25, v27, s[64:65]
                s_nop 0
                v_add_f32_dpp v24, v20, v20 quad_perm:[1,0,3,2] row_mask:0xf bank_mask:0xf
                v_add_f32_dpp v25, v21, v21 quad_perm:[1,0,3,2] row_mask:0xf bank_mask:0xf
                v_cndmask_b32 v28, v24, v25, s[66:67]""")
            self.bf16_round(28)
            self(f"""
                v_mul_f32 v28, {f32(192 ** -0.5)}, v28
                v_cvt_pk_bf16_f32 v28, v28, v28
                ds_write_b16 v4, v28 offset:{L_S + (slot >> 3) * 512}""")

    def consume_v(self, slot):
        t = slot & 7
        r = 64 + slot * 12
        a = 28 + (slot & 1) * 4
        if "v" in self.o["skip"]:
            return
        for w in range(4):
            self(f"v_perm_b32 v{a + w}, v{36 + (t >> 1)}, v{36 + (t >> 1)}, v{20 + (t & 1) * 4 + w}")
        self("s_nop 1")
        for j in range(3):
            self(f"v_mfma_f32_16x16x32_bf16 v[{8 + 4*j}:{11 + 4*j}], v[{a}:{a+3}], v[{r + 4*j}:{r + 4*j + 3}], v[{8 + 4*j}:{11 + 4*j}]")

    def streamer(self):
        o = self.o
        WP = [int(c, 36) for c in o["wait"]]
        W, W0 = max(WP), o["wait0"]
        TAB = "\n".join(f"global_load_dwordx4 v[{48 + 4*i}:{51 + 4*i}], v8, s[14:15] offset:{(i >> 1) * 1024 + (i & 1) * 16}"
                        for i in range(4))
        late = 0 if o["tabearly"] else 4
        self(f"""
            s_getpc_b64 s[14:15]
            L_pc:
            s_add_u32 s14, s14, L_table-L_pc
            s_addc_u32 s15, s15, 0
            v_lshrrev_b32 v5, 3, v0
            v_lshlrev_b32 v5, 5, v5
            v_mov_b32 v8, v5
            {TAB if o["tabearly"] else ""}
            s_mul_i32 s56, s7, {REGION}
            s_and_b32 s10, s7, 1
            s_lshl_b32 s10, s10, 20
            s_add_u32 s10, s10, s56
            s_and_b32 s11, s2, 63
            s_lshl_b32 s11, s11, 7
            s_add_u32 s10, s10, s11
            s_add_u32 s10, s10, 0x80000
            s_add_u32 s11, s10, 0x2000
            v_and_b32 v5, 7, v0
            v_lshlrev_b32 v5, 4, v5
            v_lshlrev_b32 v4, 1, v0
            s_mov_b32 s57, s56
            s_mov_b32 s58, 0
            s_lshr_b32 s12, s3, 1
            s_xor_b32 s12, s12, s4
            s_cmp_eq_u32 s12, 1
            s_cselect_b64 s[60:61], -1, 0
            s_mov_b32 s54, {KV_BYTES}
            s_mov_b32 s55, 0x20000
            s_xor_b32 s12, s4, s7
            s_setprio 2""")
        self.args_ready()
        self(f"""
            s_cmp_lg_u32 s3, 0
            s_cbranch_scc1 L_noprobe
            s_bitcmp1_b32 s12, 0
            s_cselect_b32 s52, s20, s18
            s_cselect_b32 s53, s21, s19
            s_and_b32 s53, s53, 0xffff
            s_mov_b64 exec, 1
            buffer_load_dword v6, v1, s[52:55], s10 offen nt
            buffer_load_dword v7, v1, s[52:55], s11 offen nt
            s_mov_b64 exec, -1
            L_noprobe:
            s_barrier
            {"" if o["tabearly"] else TAB}""")
        self.srd(40, 18, KV_BYTES)
        self.srd(44, 36, WS_END)
        self(f"""
            s_and_b32 s63, s21, 0xffff
            s_cmp_lg_u32 s3, 0
            s_cbranch_scc1 L_noprobe2
            s_waitcnt vmcnt({1 + late})
            s_memtime s[10:11]
            s_waitcnt vmcnt({late})
            s_memtime s[12:13]
            s_waitcnt lgkmcnt(0)
            s_sub_u32 s10, s12, s10
            s_cmp_le_u32 s10, {o["gap"]}
            s_cselect_b32 s10, 3, 2
            s_bfe_u32 s11, s7, 0x10001
            s_xor_b32 s10, s10, s11
            s_xor_b32 s10, s10, s9
            v_mov_b32 v6, s10
            ds_write_b32 v1, v6 offset:{C_PROBE}
            L_noprobe2:
            s_waitcnt vmcnt(0)""")
        for i in range(16):
            self(f"v_add_u32 v{48 + i}, v{48 + i}, v5")
        self.stamp(1)
        for t in range(8):
            self.issue(t, t, W0 if 3 * t > W0 else None)
        self.spin_lds(C_VOTE, 1, wide=True)
        self("s_mov_b32 s59, s11")
        self.stamp(2)
        self.advance_window()
        for t in range(7):
            self.issue(t, 8 + t, WP[t % len(WP)])
        self.stamp(3)
        self.spin_lds(C_QRDY, 3)
        for j in range(3):
            self(f"ds_read_b128 v[{8 + 4*j}:{11 + 4*j}], v5 offset:{L_Q + 128 * j}")
        self("s_mov_b32 s62, 0\ns_waitcnt lgkmcnt(0)")
        self.stamp(4)

        def body(consume, last=False, pre=None):
            for i in range(16):
                if pre:
                    pre(i)
                if not last or i == 0:
                    if i in (1, 9):
                        self.advance_window()
                    self.issue((i - 1) & 7, (i - 1) & 15, WP[i % len(WP)])
                elif 3 * (15 - i) < W + 3:
                    self(f"s_waitcnt vmcnt({3 * (15 - i)})")
                consume(i)

        self("L_kloop:")
        body(self.consume_k)
        self(f"""
            v_add_u32 v4, 1024, v4
            s_add_u32 s62, s62, 1
            s_and_b32 s10, s62, 3
            s_cmp_lg_u32 s10, 0
            s_cbranch_scc1 L_kloop""")
        self.lds_inc(C_KSEG)
        self("s_cmp_lt_u32 s62, 8\ns_cbranch_scc1 L_kloop")
        self.stamp(5)
        self("v_and_b32 v5, 7, v0\nv_mov_b32 v28, 0x0c0c0c0c")
        for par, (lo_sel, hi_sel) in enumerate(((0x0c0c0100, 0x01000c0c), (0x0c0c0302, 0x03020c0c))):
            self(f"v_mov_b32 v29, 0x{lo_sel:08x}\nv_mov_b32 v30, 0x{hi_sel:08x}")
            for w in range(4):
                r = 20 + par * 4 + w
                self(f"""
                    v_cmp_eq_u32 vcc, {2*w}, v5
                    v_cmp_eq_u32 s[10:11], {2*w + 1}, v5
                    s_nop 0
                    v_cndmask_b32 v{r}, v28, v29, vcc
                    v_cndmask_b32 v{r}, v{r}, v30, s[10:11]""")
        for i in range(12):
            self(f"v_mov_b32 v{8 + i}, 0")
        self("v_lshrrev_b32 v4, 3, v0\nv_lshlrev_b32 v4, 4, v4\ns_mov_b32 s62, 0")
        self.spin_lds(C_PRDY, 4)
        self.stamp(6)

        def pre_v(i):
            if i in (0, 8):
                self(f"ds_read_b128 v[36:39], v4 offset:{L_P + (i >> 3) * 512}")

        def cons_v(i):
            if i in (0, 8):
                self("s_waitcnt lgkmcnt(0)")
            self.consume_v(i)

        self("L_vloop:")
        body(cons_v, pre=pre_v)
        self(f"""
            v_add_u32 v4, 1024, v4
            s_add_u32 s62, s62, 1
            s_cmp_lg_u32 s62, 4
            s_cbranch_scc1 L_vnext""")
        self.spin_lds(C_PRDY, 8)
        self(f"ds_read_b32 v6, v1 offset:{C_F}\ns_nop 7\ns_waitcnt lgkmcnt(0)")
        for i in range(12):
            self(f"v_mul_f32 v{8 + i}, v{8 + i}, v6")
        self("L_vnext:\ns_cmp_lt_u32 s62, 7\ns_cbranch_scc1 L_vloop")
        self(f"""
            v_and_b32 v40, 7, v0
            v_lshlrev_b32 v40, 5, v40
            v_bfe_u32 v41, v0, 4, 1
            v_lshl_add_u32 v40, v41, 4, v40
            v_lshrrev_b32 v41, 5, v0
            v_mul_u32_u24 v41, 768, v41
            v_add_u32 v40, v40, v41
            v_and_b32 v41, 63, v0
            v_lshlrev_b32 v41, 4, v41
            ds_read_b128 v[44:47], v1 offset:{C_LSUM}
            ds_read_b32 v43, v1 offset:{C_NONCE}
            s_lshl_b32 s13, s6, 3
            s_add_u32 s13, s13, s8
            s_lshl_b32 s13, s13, 10
            s_add_u32 s13, s13, {OP}
            s_waitcnt lgkmcnt(0)
            v_add_f32 v44, v44, v45
            v_add_f32 v46, v46, v47
            v_add_f32 v44, v44, v46
            v_readfirstlane_b32 s92, v43
            v_rcp_f32 v42, v44""")
        self.tags(44)
        body(cons_v, last=True, pre=pre_v)
        self(f"""
            s_mov_b32 exec_lo, 0x00ff00ff
            s_mov_b32 exec_hi, 0xff00ff00
            s_nop 5
            ds_write_b128 v40, v[8:11] offset:{L_ORED}
            ds_write_b128 v40, v[12:15] offset:{L_ORED + 256}
            ds_write_b128 v40, v[16:19] offset:{L_ORED + 512}""")
        self.lds_inc(C_OCNT, ret=True)
        self.stamp(7)
        self("""
            s_cmp_lg_u32 s10, 3
            s_cbranch_scc1 L_end
            s_mov_b32 exec_hi, 0xffff""")
        for k in range(8):
            self(f"ds_read_b128 v[{64 + 4*k}:{67 + 4*k}], v41 offset:{L_ORED + 768 * k}")
        for k in range(4):
            self(f"s_waitcnt lgkmcnt({6 - 2*k})")
            for e in range(4):
                self(f"v_add_f32 v{64 + 8*k + e}, v{64 + 8*k + e}, v{68 + 8*k + e}")
        for e in range(4):
            self(f"v_add_f32 v{64 + e}, v{64 + e}, v{72 + e}\nv_add_f32 v{80 + e}, v{80 + e}, v{88 + e}")
        for e in range(4):
            self(f"v_add_f32 v{64 + e}, v{64 + e}, v{80 + e}")
        for e in range(4):
            self(f"v_mul_f32 v{64 + e}, v{64 + e}, v42")
        self.tag_data(64, 44)
        self("buffer_store_dwordx4 v[64:67], v41, s[44:47], s13 offen sc1\ns_mov_b64 exec, -1")
        self.stamp(8)
        self("s_branch L_end")

    def item_loads(self, stride):
        for s in range(2):
            for rho in range(8):
                r = 48 + (s * 8 + rho) * 2
                self(f"buffer_load_dwordx2 v[{r}:{r+1}], v44, s[40:43], s13 offen nt")
                if (s, rho) != (1, 7):
                    self(f"s_add_u32 s13, s13, {stride * (25 if rho == 7 else 1)}")

    def item_compute(self, soff):
        for s in range(2):
            for e in range(4):
                for m in range(4):
                    lo = 48 + (s * 8 + 2 * m) * 2 + (e >> 1)
                    self(f"v_perm_b32 v{80 + s*16 + e*4 + m}, v{lo + 2}, v{lo}, s{68 + (e & 1)}")
        self("s_nop 1")
        for s in range(2):
            for e in range(4):
                a = 80 + s * 16 + e * 4
                d = 112 + e * 4
                c = "0" if s == 0 else f"v[{d}:{d+3}]"
                self(f"v_mfma_f32_16x16x32_bf16 v[{d}:{d+3}], v[{a}:{a+3}], v[{36 + 4*s}:{39 + 4*s}], {c}")
        self("s_nop 7")
        for r in range(4):
            self(f"v_cndmask_b32 v{112 + r}, v{112 + r}, v{116 + r}, s[66:67]")
            self(f"v_cndmask_b32 v{120 + r}, v{120 + r}, v{124 + r}, s[66:67]")
        for r in range(4):
            self(f"v_cndmask_b32 v{112 + r}, v{112 + r}, v{120 + r}, s[64:65]")
        self.tag_data(112, 236)
        self(f"buffer_store_dwordx4 v[112:115], v45, s[44:47], {soff} offen sc1")

    def gather_partials(self, sleep):
        self("s_add_u32 s14, s13, 12288\ns_add_u32 s15, s13, 24576")
        for e in range(4):
            self(f"v_mov_b32 v{16 + e}, 0")
        self.poll([(8, "buffer_load_dwordx4 v[8:11], v46, s[44:47], s13 offen sc1"),
                   (12, "buffer_load_dwordx4 v[12:15], v46, s[44:47], s14 offen sc1"),
                   (16, "buffer_load_dwordx4 v[16:19], v46, s[44:47], s15 offen sc1")], sleep, half_last=True)
        for e in range(4):
            self(f"v_add_f32 v{8 + e}, v{8 + e}, v{12 + e}")
        for e in range(4):
            self(f"v_add_f32 v{8 + e}, v{8 + e}, v{16 + e}")
        self.rows4_reduce(8)
        self("v_cvt_pk_bf16_f32 v8, v8, v8")

    def project(self):
        self.lds_inc(C_HS)
        self.spin_lds(C_HS, 4, sleep=0)
        for s in range(6):
            self(f"ds_read_b128 v[{8 + 4*s}:{11 + 4*s}], v228 offset:{L_OBUF + 64 * s}")
        for s in range(6):
            self(f"s_waitcnt lgkmcnt({5 - s})")
            for e in range(2):
                b = 180 + s * 8 + e * 4
                d = 32 + e * 4
                c = "0" if s == 0 else f"v[{d}:{d+3}]"
                self(f"v_mfma_f32_16x16x32_bf16 v[{d}:{d+3}], v[{8 + 4*s}:{11 + 4*s}], v[{b}:{b+3}], {c}")
        self("s_mov_b32 vcc_lo, 0xffff0000\ns_mov_b32 vcc_hi, 0\ns_nop 6")
        for r in range(4):
            self(f"v_cndmask_b32 v{32 + r}, v{32 + r}, v{36 + r}, vcc")
        self.tag_data(32, 236)
        self("""
            s_mov_b32 exec_hi, 0
            buffer_store_dwordx4 v[32:35], v229, s[44:47], s75 offen sc1
            s_mov_b64 exec, -1""")

    def prep(self, g):
        o = self.o
        self.spin_lds(C_KSEG, 4 * (g + 1), sleep=8)
        self(f"""
            ds_read_b128 v[8:11], v230 offset:{L_S + 4096 * g}
            s_lshl_b32 s13, s2, 13
            s_add_u32 s13, s13, {SC + 4096 * g}
            s_xor_b32 s14, s13, {4 << 13}
            s_lshl_b32 s15, s2, 7
            s_lshl_b32 s10, s72, 3
            s_add_u32 s15, s15, s10
            s_add_u32 s15, s15, {FL + 4 * g}
            s_waitcnt lgkmcnt(0)
            {"" if "s" in o["skip"] else "buffer_store_dwordx4 v[8:11], v230, s[44:47], s13 offen " + o["scst"]}
            v_mov_b32 v5, s92
            s_waitcnt vmcnt(0)
            s_mov_b64 exec, 1
            buffer_store_dword v5, v1, s[44:47], s15 offen sc1
            s_xor_b32 s15, s15, {4 << 7}""")
        lp, dn = self.lab("fl"), self.lab("fd")
        self(f"""
            s_mov_b32 s12, 0x4000
            {lp}:
            buffer_load_dword v6, v1, s[44:47], s15 offen sc1
            s_waitcnt vmcnt(0)
            v_readfirstlane_b32 s10, v6
            s_cmp_eq_u32 s10, s92
            s_cbranch_scc1 {dn}
            s_sleep 24
            s_sub_u32 s12, s12, 1
            s_cbranch_scc0 {lp}
            s_branch L_end
            {dn}:
            s_mov_b64 exec, -1
            {"" if "s" in o["skip"] else "buffer_load_dwordx4 v[12:15], v230, s[44:47], s14 offen " + o["scld"]}""")
        self(f"""
            v_lshrrev_b32 v5, 5, v2
            s_lshl_b32 s10, s72, 1
            s_add_u32 s10, s10, {8 * g}
            v_add_u32 v5, s10, v5
            v_lshrrev_b32 v6, v5, s59
            v_lshrrev_b32 v7, 16, v6""")
        if g == 0:
            self("""
                v_bfe_u32 v32, v2, 4, 1
                v_xor_b32 v32, s4, v32
                v_cmp_eq_u32 vcc, 0, v5
                s_nop 1
                v_cndmask_b32 v6, v6, v32, vcc""")
        self("""
            v_xor_b32 v6, v6, v7
            v_and_b32 v6, 1, v6
            v_cmp_eq_u32 vcc, 1, v6
            s_nop 0
            s_waitcnt vmcnt(0)""")
        for i in range(4):
            self(f"v_cndmask_b32 v{32 + i}, v{8 + i}, v{12 + i}, vcc")
            self(f"v_cndmask_b32 v{36 + i}, v{12 + i}, v{8 + i}, vcc")
        for i in range(8):
            self(f"v_lshlrev_b32 v{8 + 2*i}, 16, v{32 + i}\nv_and_b32 v{9 + 2*i}, 0xffff0000, v{32 + i}")
        self("v_max3_f32 v24, v8, v9, v10")
        for i in range(11, 23, 2):
            self(f"v_max3_f32 v24, v24, v{i}, v{i + 1}")
        self("v_max_f32 v24, v24, v23")
        self.wave_allreduce("v_max_f32", 24, 25)
        self(f"s_lshl_b32 s10, s72, 2\nv_mov_b32 v26, s10\nds_write_b32 v26, v24 offset:{C_MAX + 16 * g}")
        self.lds_inc(C_MAXC)
        self.spin_lds(C_MAXC, 4 * (g + 1), sleep=2)
        self(f"""
            ds_read_b128 v[28:31], v1 offset:{C_MAX + 16 * g}
            s_mov_b32 s10, {f32(1.4426950408889634)}
            s_waitcnt lgkmcnt(0)
            v_max3_f32 v24, v28, v29, v30
            v_max_f32 v24, v24, v31""")
        if g == 1:
            self("""
                v_max_f32 v24, v24, v231
                v_sub_f32 v25, v231, v24
                v_mul_f32 v25, s10, v25
                v_exp_f32 v25, v25""")
        for i in range(16):
            self(f"v_sub_f32 v{8 + i}, v{8 + i}, v24")
        for i in range(16):
            self(f"v_mul_f32 v{8 + i}, s10, v{8 + i}")
        for i in range(16):
            self(f"v_exp_f32 v{8 + i}, v{8 + i}")
        for i in range(4):
            self(f"v_cvt_pk_bf16_f32 v{32 + i}, v{8 + 2*i}, v{9 + 2*i}")
        self(f"ds_write_b128 v230, v[32:35] offset:{L_P + 4096 * g}")
        for step in (8, 4, 2, 1):
            for i in range(step):
                self(f"v_add_f32 v{8 + i}, v{8 + i}, v{8 + step + i}")
        if g == 0:
            self("v_mov_b32 v231, v24\nv_mov_b32 v232, v8")
        else:
            self("v_fma_f32 v8, v232, v25, v8")
            self.wave_allreduce("v_add_f32", 8, 9)
            self(f"ds_write_b32 v26, v8 offset:{C_LSUM}\nds_write_b32 v1, v25 offset:{C_F}")
        self.lds_inc(C_PRDY)

    def helper(self):
        o = self.o
        self.in_helper = True
        self("L_helper:")
        self(f"""
            s_sub_u32 s72, s3, 4
            s_lshl_b32 s73, s8, 2
            s_add_u32 s73, s73, s72
            s_mul_i32 s70, s73, 86
            s_lshr_b32 s70, s70, 8
            s_mul_i32 s71, s70, 3
            s_sub_u32 s71, s73, s71
            s_cmp_ge_u32 s73, 30
            s_cselect_b32 s74, 0x80000000, 0
            s_cselect_b32 s70, 0, s70
            v_and_b32 v3, 15, v2
            v_lshrrev_b32 v4, 4, v2
            v_mul_u32_u24 v5, 1280, v4
            v_lshl_add_u32 v5, v3, 4, v5
            v_lshrrev_b32 v6, 2, v3
            v_mul_u32_u24 v7, 1280, v6
            v_lshl_add_u32 v7, v4, 4, v7
            s_lshl_b32 s14, s70, 7
            v_mul_u32_u24 v44, {8 * 12288}, v4
            v_lshl_add_u32 v44, v3, 3, v44
            v_or_b32 v44, s74, v44
            s_mul_i32 s13, s70, {64 * 12288}
            s_mul_i32 s10, s6, 384
            s_add_u32 s13, s13, s10
            s_lshl_b32 s10, s71, 7
            s_add_u32 s13, s13, s10
            s_or_b32 s10, s2, s72""")
        self.args_ready()
        self("""
            s_cmp_lg_u32 s10, 0
            s_cbranch_scc1 L_nononce
            s_lshl_b32 s10, s94, 2
            s_or_b32 s10, s10, 1
            v_mov_b32 v47, s10
            v_lshlrev_b32 v46, 2, v2
            global_store_dword v46, v47, s[34:35] sc1
            L_nononce:""")
        self.srd(48, 16, 5120)
        self.srd(40, 22, 640 * 6144 * 2)
        self.stamp(1, 2)
        self("s_barrier")
        self.stamp(2, 2)
        for i in range(5):
            self(f"buffer_load_dwordx4 v[{8 + 4*i}:{11 + 4*i}], v5, s[48:51], 0 offen offset:{256 * i}")
        self(f"""
            buffer_load_dwordx4 v[28:31], v7, s[48:51], s14 offen
            buffer_load_dwordx4 v[32:35], v7, s[48:51], s14 offen offset:64""")
        self.item_loads(12288)
        self.stamp(3, 2)
        self.srd(44, 36, WS_END)
        self(f"""
            s_lshr_b32 s10, s2, 5
            s_lshl_b32 s10, s10, 2
            s_and_b32 s11, s2, 3
            s_add_u32 s10, s10, s11
            s_sub_u32 s11, s8, 5
            s_lshl_b32 s11, s11, 5
            s_add_u32 s10, s10, s11
            s_mul_i32 s11, s10, 52
            s_lshr_b32 s11, s11, 8
            s_mul_i32 s12, s11, 5
            s_sub_u32 s12, s10, s12
            s_add_u32 s11, s11, 32
            s_sub_u32 s77, s10, 56
            s_cmp_ge_u32 s10, 56
            s_cselect_b32 s76, 3, 2
            s_cmp_lt_u32 s10, 40
            s_cselect_b32 s76, 1, s76
            s_cselect_b32 s77, s11, s77
            s_cmp_lt_u32 s8, 5
            s_cselect_b32 s76, 0, s76
            s_cselect_b32 s77, s6, s77
            s_cselect_b32 s12, s8, s12
            s_lshl_b32 s39, s12, 2
            s_add_u32 s39, s39, s72
            s_mul_i32 s75, s77, 10240
            s_lshl_b32 s10, s39, 9
            s_add_u32 s75, s75, s10
            s_add_u32 s75, s75, {YP}
            s_and_b32 s38, s6, 3
            s_or_b32 s38, s38, s74
            s_lshl_b32 s60, s6, 5
            s_add_u32 s60, s60, s73
            s_lshl_b32 s60, s60, 10
            s_lshr_b32 s61, s6, 2
            s_add_u32 s61, s61, 32
            s_lshl_b32 s61, s61, 5
            s_add_u32 s61, s61, s73
            s_lshl_b32 s61, s61, 10
            s_mov_b32 s68, 0x05040100
            s_mov_b32 s69, 0x07060302
            v_lshlrev_b32 v229, 4, v2
            v_lshlrev_b32 v45, 8, v6
            v_lshl_add_u32 v45, v4, 6, v45
            v_and_b32 v46, 3, v2
            v_lshl_add_u32 v45, v46, 4, v45
            v_or_b32 v45, s74, v45
            v_mul_u32_u24 v228, 384, v46
            v_lshl_add_u32 v228, v4, 4, v228
            v_lshlrev_b32 v233, 5, v6
            v_lshl_add_u32 v233, v4, 3, v233
            v_lshl_add_u32 v233, v46, 1, v233
            v_mul_u32_u24 v46, 3072, v4
            v_lshl_add_u32 v46, v3, 4, v46
            s_lshl_b32 s10, s72, 10
            v_add_u32 v230, s10, v229
            v_lshlrev_b32 v234, 6, v6""")
        self.stamp(4, 2)
        for k in range(o["ntry"]):
            self(f"""
                s_load_dword s92, s[34:35], {64 * k}
                s_waitcnt lgkmcnt(0)
                s_cmp_lg_u32 s92, 0
                s_cbranch_scc1 L_ndone
                s_sleep {o["nsleep"]}""")
        self("""
            s_mov_b32 s12, 0x4000
            L_npoll:
            global_load_dword v5, v1, s[34:35] sc1
            s_waitcnt vmcnt(0)
            v_readfirstlane_b32 s92, v5
            s_cmp_lg_u32 s92, 0
            s_cbranch_scc1 L_ndone
            s_sleep 4
            s_sub_u32 s12, s12, 1
            s_cbranch_scc0 L_npoll
            s_branch L_end
            L_ndone:""")
        self.stamp(1)
        self.stamp(5, 2)
        self("s_cmp_lg_u32 s72, 3\ns_cbranch_scc1 L_norec")
        self.spin_lds(C_PROBE, 2, sleep=0)
        self(f"""
            s_and_b32 s10, s10, 1
            s_lshl_b32 s11, s9, 1
            s_or_b32 s10, s10, s11
            s_and_b32 s11, s92, -4
            s_or_b32 s10, s10, s11
            s_lshl_b32 s11, s7, 1
            s_add_u32 s11, s11, s4
            s_lshl_b32 s11, s11, 7
            s_add_u32 s11, s11, {VR}
            v_mov_b32 v5, s10
            v_mov_b32 v6, s92
            s_mov_b64 exec, 1
            buffer_store_dword v5, v1, s[44:47], s11 offen sc1
            ds_write_b32 v1, v6 offset:{C_NONCE}
            s_mov_b64 exec, -1
            L_norec:""")
        self.tags(236)
        self("s_mov_b32 s10, 0x3f803f80\ns_waitcnt vmcnt(16)")
        self.stamp(6, 2)
        for i in range(20):
            self(f"v_dot2_f32_bf16 v40, v{8 + i}, s10, {'0' if i == 0 else 'v40'}")
        self("s_nop 1")
        self.row16_allreduce("v_add_f32", 40)
        self(f"v_mul_f32 v40, {f32(1 / 640)}, v40")
        self("v_mov_b32 v41, 0\nv_mov_b32 v42, 0")
        for i in range(20):
            self(f"""
                v_lshlrev_b32 v36, 16, v{8 + i}
                v_and_b32 v37, 0xffff0000, v{8 + i}
                v_sub_f32 v36, v36, v40
                v_sub_f32 v37, v37, v40
                v_fmac_f32 v41, v36, v36
                v_fmac_f32 v42, v37, v37""")
        self("v_add_f32 v41, v41, v42")
        self.row16_allreduce("v_add_f32", 41)
        self(f"v_mul_f32 v41, {f32(1 / 640)}, v41")
        self.bf16_round(41)
        self(f"v_add_f32 v41, {f32(1e-5)}, v41")
        self.bf16_round(41)
        self("v_sqrt_f32 v41, v41\ns_nop 0")
        self.bf16_round(41)
        self("v_rcp_f32 v41, v41")
        self.bf16_round(40)
        self("""
            ds_bpermute_b32 v40, v234, v40
            ds_bpermute_b32 v41, v234, v41""")
        for i in range(8):
            self(f"v_lshlrev_b32 v{8 + 2*i}, 16, v{28 + i}\nv_and_b32 v{9 + 2*i}, 0xffff0000, v{28 + i}")
        self("s_waitcnt lgkmcnt(0)")
        for i in range(16):
            self(f"v_sub_f32 v{8 + i}, v{8 + i}, v40")
        for i in range(8):
            self(f"v_cvt_pk_bf16_f32 v{28 + i}, v{8 + 2*i}, v{9 + 2*i}")
        for i in range(8):
            self(f"v_lshlrev_b32 v{8 + 2*i}, 16, v{28 + i}\nv_and_b32 v{9 + 2*i}, 0xffff0000, v{28 + i}")
        for i in range(16):
            self(f"v_mul_f32 v{8 + i}, v{8 + i}, v41")
        for i in range(8):
            self(f"v_cvt_pk_bf16_f32 v{36 + i}, v{8 + 2*i}, v{9 + 2*i}")
        self.stamp(2)
        self.stamp(7, 2)
        self("""
            s_waitcnt vmcnt(1)
            s_cmp_eq_u32 s72, 3
            s_cbranch_scc1 L_wready
            s_waitcnt vmcnt(0)
            L_wready:""")
        self.stamp(8, 2)
        self.item_compute("s60")
        self.stamp(3)
        self.stamp(9, 2)
        self("s_cmp_eq_u32 s72, 3\ns_cbranch_scc1 L_vote")
        self(f"""
            s_lshl_b32 s13, s6, 15
            s_lshl_b32 s10, s72, 10
            s_add_u32 s13, s13, s10
            s_lshl_b32 s10, s5, 8
            s_add_u32 s13, s13, s10""")
        self.stamp(4)
        self.gather_partials(o["qsleep"])
        self(f"s_lshl_b32 s10, s72, 7\nv_add_u32 v9, s10, v233\nds_write_b16 v9, v8 offset:{L_Q}")
        self.lds_inc(C_QRDY)
        self("s_branch L_qdone")
        GS = o["gs"]
        self(f"""
            L_vote:
            s_mul_i32 s57, s7, 3
            s_lshr_b32 s57, s57, 1
            s_lshr_b32 s14, s57, {GS}
            s_add_u32 s15, s57, 1
            s_lshr_b32 s15, s15, {GS}
            s_mul_i32 s13, s14, {171 << GS}
            s_lshr_b32 s13, s13, 9
            v_lshrrev_b32 v9, 2, v2
            v_add_u32 v9, s13, v9
            v_mul_u32_u24 v9, 3, v9
            v_and_b32 v10, 2, v2
            v_add_u32 v9, v9, v10
            v_lshrrev_b32 v9, {GS}, v9
            v_cmp_eq_u32 s[52:53], s14, v9
            v_cmp_eq_u32 s[54:55], s15, v9
            v_lshlrev_b32 v9, 7, v2
            s_lshl_b32 s58, s13, 1
            s_sub_u32 s58, s7, s58
            s_lshl_b32 s58, s58, 1
            s_lshl_b32 s13, s13, 9
            s_add_u32 s13, s13, {VR}
            s_lshr_b32 s14, s92, 2
            s_mov_b32 s12, 0x4000
            s_or_b64 exec, s[52:53], s[54:55]
            L_annpoll:
            buffer_load_dword v8, v9, s[44:47], s13 offen sc1
            s_waitcnt vmcnt(0)
            v_lshrrev_b32 v10, 2, v8
            v_cmp_ne_u32 vcc, s14, v10
            s_cmp_eq_u64 vcc, 0
            s_cbranch_scc1 L_anndone
            s_sleep {o["asleep"]}
            s_sub_u32 s12, s12, 1
            s_cbranch_scc0 L_annpoll
            s_branch L_end
            L_anndone:
            v_and_b32 v10, 1, v8
            v_readlane_b32 s63, v8, s58
            v_cmp_eq_u32 vcc, 1, v10
            s_mov_b64 exec, -1
            s_lshr_b32 s63, s63, 1
            s_xor_b32 s63, s63, s4
            s_bitcmp1_b32 s7, 0
            s_cselect_b32 s58, 0x1f, 0x7ff
            s_mov_b32 s59, 0""")
        for pg in range(2):
            for buf, lanes in enumerate((0x99999999, 0x66666666)):
                self(f"""
                    s_and_b32 s10, s{52 + 2*pg}, 0x{lanes:x}
                    s_and_b32 s11, s{53 + 2*pg}, 0x{lanes:x}
                    s_bcnt1_i32_b64 s14, s[10:11]
                    s_and_b64 s[10:11], s[10:11], vcc
                    s_bcnt1_i32_b64 s15, s[10:11]
                    s_lshl_b32 s15, s15, 1
                    s_cmp_gt_u32 s15, s14
                    s_cselect_b32 s10, 1, 0
                    s_xor_b32 s10, s10, s57
                    s_xor_b32 s10, s10, s63
                    s_lshl_b32 s11, s58, {16 * buf}
                    s_bitcmp1_b32 s10, 0
                    s_cselect_b32 s11, s11, 0
                    s_or_b32 s59, s59, s11""")
            if pg == 0:
                self("s_add_u32 s57, s57, 1\ns_xor_b32 s58, s58, 0xffff")
        if o["numa"] == "far":
            self("s_not_b32 s59, s59")
        elif o["numa"] == "mix":
            self("s_xor_b32 s10, s4, s7\ns_bitcmp1_b32 s10, 0\ns_cselect_b32 s59, -1, 0\ns_xor_b32 s59, s59, 0x55555555")
        self(f"""
            v_mov_b32 v6, 1
            v_mov_b32 v7, s59
            ds_write_b64 v1, v[6:7] offset:{C_VOTE}""")
        self.stamp(4)
        self("L_qdone:")
        self.stamp(5)
        self.stamp(10, 2)
        self("s_cmp_lg_u32 s38, 0\ns_cbranch_scc1 L_now1")
        self.srd(40, 28, 640 * 1536 * 2)
        self(f"""
            v_mul_u32_u24 v44, {8 * 3072}, v4
            v_lshl_add_u32 v44, v3, 3, v44
            s_mul_i32 s13, s70, {64 * 3072}
            s_mul_i32 s10, s6, 96
            s_add_u32 s13, s13, s10
            s_lshl_b32 s10, s71, 7
            s_add_u32 s13, s13, s10""")
        self.item_loads(3072)
        self("s_waitcnt vmcnt(0)")
        self.item_compute("s61")
        self("L_now1:")
        self(f"""
            s_cmp_ge_u32 s76, 2
            s_cbranch_scc1 L_noproj
            s_mov_b32 s42, {1536 * 1280}
            s_cmp_eq_u32 s76, 0
            s_cselect_b32 s40, s24, s30
            s_cselect_b32 s41, s25, s31
            s_cselect_b32 s42, {6144 * 1280}, s42
            s_and_b32 s41, s41, 0xffff
            s_mov_b32 s43, 0x20000
            s_and_b32 s13, s77, 31
            s_mul_i32 s13, s13, {192 * 1280}
            s_lshl_b32 s10, s39, 6
            s_add_u32 s13, s13, s10
            v_mul_u32_u24 v44, {8 * 1280}, v4
            v_lshl_add_u32 v44, v3, 2, v44""")
        for s in range(0 if "w" in o["skip"] else 6):
            for rho in range(8):
                self(f"s_waitcnt vmcnt({o['wdepth'] - 1})")
                self(f"buffer_load_dword v{132 + s*8 + rho}, v44, s[40:43], s13 offen nt")
                self(f"s_add_u32 s13, s13, {1280 * (25 if rho == 7 else 1)}")
        self("s_waitcnt vmcnt(0)")
        for s in range(6):
            for e in range(2):
                for m in range(4):
                    lo = 132 + s * 8 + 2 * m
                    self(f"v_perm_b32 v{180 + s*8 + e*4 + m}, v{lo + 1}, v{lo}, s{68 + e}")
        self("s_cmp_eq_u32 s76, 0\ns_cbranch_scc1 L_noproj")
        self(f"""
            s_lshl_b32 s62, s77, 15
            s_lshl_b32 s10, s72, 8
            s_add_u32 s62, s62, s10
            s_mul_i32 s10, s72, 384
            v_add_u32 v20, s10, v233
            s_mov_b32 s63, 0
            L_hloop:
            s_mov_b32 s13, s62""")
        self.gather_partials(16)
        self(f"""
            v_lshlrev_b32 v8, 16, v8
            v_mul_f32 v9, {f32(-1.4426950408889634)}, v8
            v_exp_f32 v9, v9
            s_nop 0
            v_add_f32 v9, 1.0, v9
            v_rcp_f32 v9, v9
            s_nop 0
            v_mul_f32 v8, v8, v9
            v_cvt_pk_bf16_f32 v8, v8, v8
            ds_write_b16 v20, v8 offset:{L_OBUF}
            v_add_u32 v20, 128, v20
            s_add_u32 s62, s62, 1024
            s_add_u32 s63, s63, 1
            s_cmp_lt_u32 s63, 3
            s_cbranch_scc1 L_hloop""")
        self.project()
        self("L_noproj:")
        self.stamp(6)
        self.spin_lds(C_VOTE, 1, wide=True)
        self("s_mov_b32 s59, s11")
        self.prep(0)
        self.stamp(7)
        self.prep(1)
        self.stamp(8)
        self("""
            s_cmp_eq_u32 s76, 3
            s_cbranch_scc1 L_reduce
            s_cmp_lg_u32 s76, 0
            s_cbranch_scc1 L_end""")
        self(f"""
            s_lshl_b32 s13, s6, 3
            s_lshl_b32 s10, s72, 1
            s_add_u32 s13, s13, s10
            s_lshl_b32 s13, s13, 10
            s_add_u32 s13, s13, {OP}
            s_mul_i32 s10, s72, 384
            v_lshlrev_b32 v20, 3, v2
            v_add_u32 v20, s10, v20""")
        self.spin_lds(C_OCNT, 1, sleep=o["tsleep"])
        self("s_setprio 3\ns_mov_b32 exec_hi, 0xffff")
        self.poll([(8, "buffer_load_dwordx4 v[8:11], v229, s[44:47], s13 offen sc1"),
                   (12, "buffer_load_dwordx4 v[12:15], v229, s[44:47], s13 offen offset:1024 sc1")], o["psleep"])
        for e in range(4):
            self(f"v_add_f32 v{8 + e}, v{8 + e}, v{12 + e}")
        self(f"""
            v_cvt_pk_bf16_f32 v8, v8, v9
            v_cvt_pk_bf16_f32 v9, v10, v11
            ds_write_b64 v20, v[8:9] offset:{L_OBUF}""")
        self.stamp(9)
        self.project()
        self.stamp(10)
        self("s_branch L_end")
        self("L_reduce:\ns_cmp_lg_u32 s72, 0\ns_cbranch_scc1 L_end")
        self.srd(52, 32, 5120)
        self(f"""
            v_mul_u32_u24 v44, 10240, v4
            v_bfe_u32 v5, v2, 3, 1
            v_lshl_add_u32 v44, v5, 8, v44
            v_and_b32 v6, 7, v2
            v_lshl_add_u32 v44, v6, 4, v44
            v_mul_u32_u24 v45, 1280, v4
            v_lshl_add_u32 v45, v6, 2, v45
            v_lshl_add_u32 v45, v5, 1, v45
            s_lshr_b32 s10, s77, 1
            s_lshl_b32 s13, s10, 9
            s_and_b32 s11, s77, 1
            s_lshl_b32 s11, s11, 7
            s_add_u32 s13, s13, s11
            s_add_u32 s13, s13, {YP}
            s_lshl_b32 s62, s77, 5
            buffer_load_ushort v46, v45, s[48:51], s62 offen""")
        for i in range(10):
            self(f"s_add_u32 s{16 + i}, s13, {40960 * i}")
        self("s_waitcnt vmcnt(0)")
        self.poll([(40, "buffer_load_dwordx4 v[40:43], v44, s[44:47], s24 offen sc1"),
                   (12, "buffer_load_dwordx4 v[12:15], v44, s[44:47], s25 offen sc1")], 16)
        for e in range(4):
            self(f"v_add_f32 v{40 + e}, v{40 + e}, v{12 + e}")
        self.rows4_reduce(40)
        self.bf16_round(40)
        self("v_lshlrev_b32 v46, 16, v46")
        self.spin_lds(C_OCNT, 1, sleep=o["tsleep"])
        self("s_setprio 3")
        self.poll([(8 + 4*i, f"buffer_load_dwordx4 v[{8 + 4*i}:{11 + 4*i}], v44, s[44:47], s{16 + i} offen sc1")
                   for i in range(8)], o["psleep"])
        self.stamp(9)
        for step in (16, 8, 4):
            for i in range(step):
                self(f"v_add_f32 v{8 + i}, v{8 + i}, v{8 + step + i}")
        self.rows4_reduce(8)
        self.bf16_round(8)
        self("v_add_f32 v8, v46, v8")
        self.bf16_round(8)
        self("""
            v_add_f32 v8, v8, v40
            v_cvt_pk_bf16_f32 v8, v8, v8
            buffer_store_short v8, v45, s[52:55], s62 offen""")
        self.stamp(10)

    def finish(self):
        self("L_end:")
        if self.o["stamps"]:
            self(f"""
                s_waitcnt vmcnt(0)
                s_memrealtime s[78:79]
                s_getreg_b32 s93, hwreg(HW_REG_XCC_ID)
                s_waitcnt lgkmcnt(0)
                s_mov_b32 s91, s78
                s_mov_b64 exec, 1
                s_lshl_b32 s10, s2, 3
                s_add_u32 s10, s10, s3
                s_lshl_b32 s10, s10, 6
                s_add_u32 s10, s10, {STAMPS}
                v_mov_b32 v5, s10""")
            for i in range(12):
                self(f"v_mov_b32 v{8 + i}, s{80 + i}")
            self("v_mov_b32 v20, s93\nv_mov_b32 v21, s59\nv_mov_b32 v22, s7\nv_mov_b32 v23, s76")
            for i in range(4):
                self(f"global_store_dwordx4 v5, v[{8 + 4*i}:{11 + 4*i}], s[36:37] offset:{16 * i}")
        if self.o["enc"]:
            wave, idx, mult = (int(x) for x in self.o["enc"].split("x"))
            self(f"""
                s_cmp_lg_u32 s3, {wave}
                s_cbranch_scc1 L_exit
                s_sub_u32 s10, s{80 + idx}, s80
                s_mul_i32 s10, s10, {mult}
                s_min_u32 s10, s10, 40000
                s_add_u32 s10, s10, 20000
                L_encl:
                s_memrealtime s[78:79]
                s_waitcnt lgkmcnt(0)
                s_sub_u32 s11, s78, s80
                s_cmp_lt_u32 s11, s10
                s_cbranch_scc1 L_encl""")
        if self.o["dbgout"]:
            self("""
                s_cmp_lg_u32 s3, 0
                s_cbranch_scc1 L_exit
                s_cmp_lg_u32 s4, 0
                s_cbranch_scc1 L_exit""")
            for i, reg in enumerate((0, 40, 84, 88, 126)):
                nx = self.lab("dg")
                self(f"""
                    s_cmp_lg_u32 s7, {reg}
                    s_cbranch_scc1 {nx}
                    s_sub_u32 s10, s85, s80
                    s_sub_u32 s11, s87, s80
                    s_sub_u32 s12, s84, s80
                    s_mul_i32 s12, s12, 100000
                    s_add_u32 s10, s10, s12
                    s_and_b32 s12, s59, 0x10002
                    v_mov_b32 v8, s10
                    v_mov_b32 v9, s11
                    v_mov_b32 v10, s12
                    global_store_dwordx3 v1, v[8:10], s[34:35] offset:{4 + 12 * i}
                    {nx}:""")
        self("L_exit:\ns_endpgm")

    def build(self):
        head = open(f"cdna_kernels/{NAME}.s.ref").read().split("\n") if self.o["head"] else []
        out = [ln for ln in head if ln.startswith(";") and "@launch" not in ln][:14]
        out.append(f"; @launch grid=(256,1,1) block=(512,1,1) lds={LDS_BYTES}")
        out.append(DOC.strip("\n"))
        out += ['.amdgcn_target "amdgcn-amd-amdhsa--gfx950"', ".text", f".globl {NAME}_kernel", ".p2align 8",
                f".type {NAME}_kernel,@function", f"{NAME}_kernel:"]
        self.entry()
        self.streamer()
        self.helper()
        self.finish()
        out += self.L
        out += [".p2align 8", ".type L_table,@object", "L_table:"]
        T = row_table()
        for sig in range(2):
            for w in range(4):
                for g in range(8):
                    out.append("  .long " + ", ".join(str(T[sig][w][g][t] * 384) for t in range(8)))
        out.append(".size L_table, 2048")
        out += ['.section .rodata,"a"', ".p2align 6", f".amdhsa_kernel {NAME}_kernel",
                "  .amdhsa_next_free_vgpr 256", "  .amdhsa_next_free_sgpr 102", "  .amdhsa_accum_offset 256",
                "  .amdhsa_group_segment_fixed_size 0", "  .amdhsa_kernarg_size 88", "  .amdhsa_user_sgpr_count 2",
                "  .amdhsa_user_sgpr_kernarg_segment_ptr 1", "  .amdhsa_system_sgpr_workgroup_id_x 1",
                ".end_amdhsa_kernel"]
        return "\n".join(out) + "\n"


DOC = """
"""

DEFAULTS = dict(stamps=0, head=1, wait="3", wait0=3, gap=40, gs=4, numa="near", scst="sc1 nt",
                scld="sc1 nt", asleep=4, qsleep=2, wdepth=4, tsleep=2, psleep=0, ntry=4, nsleep=2, tabearly=0, skip="", dbgout=0, enc="")

if __name__ == "__main__":
    opt = dict(DEFAULTS)
    for kv in sys.argv[2:]:
        k, v = kv.split("=")
        assert k in opt, k
        opt[k] = int(v) if isinstance(DEFAULTS[k], int) else v.replace("+", " ")
    open(sys.argv[1], "w").write(Gen(opt).build())
```

```python
import struct
import sys

NAME = "parallel_sum__mha_block_cached__dense_activation_silu__decode"
KV_BYTES = 4 * 32 * 8192 * 192 * 2
REGION = 3 << 20
WIN = 196608

QP, YP, FL, VR, ST, CT, SC, OP, WS_END = (
    0x0, 0x140000, 0x1E0000, 0x1B8000, 0x1C0000, 0x1D0000, 0x200000, 0x400000, 0x500000)
STAMPS = 0x1000000
L_S, L_P, L_ORED, L_OBUF, L_Q, L_C, L_SER, L_WT = 0x0, 0x2000, 0x4000, 0xA000, 0xA600, 0xAC00, 0xAE00, 0xB000
C_NONCE, C_WRDY, C_VOTE, C_KSEG, C_PRDY, C_MAXC, C_HS, C_SC3 = (
    L_C + 0, L_C + 4, L_C + 8, L_C + 16, L_C + 20, L_C + 24, L_C + 28, L_C + 32)
C_CTL, C_QRDY, C_ICNT, C_OCNT, C_MAX, C_VOTE2, C_T = L_C + 40, L_C + 48, L_C + 52, L_C + 64, L_C + 80, L_C + 112, L_C + 128
C_FCNT, C_SCNT, C_SC, L_STAT = L_C + 56, L_C + 60, L_C + 192, 0xAD00
LDS_BYTES = 0x17000
BATCH = 32 * REGION


def f32(x):
    return "0x%08x" % struct.unpack("<I", struct.pack("<f", x))[0]


def block_rows(b):
    t, r = divmod(b, 3)
    lo, hi = ((0, 21), (21, 43), (43, 64))[r]
    return list(range(64 * t + lo, 64 * t + hi))


def row_table():
    T = []
    for sig in range(2):
        lo = sum((block_rows(sig + o) for o in (0, 2, 8, 10, 16, 18)), [])
        up = sum((block_rows(sig + o + 4) for o in (0, 2, 8, 10, 16, 18)), [])
        T.append([[[(lo if g < 4 else up)[4 * (8 * w + t) + (g & 3)] for t in range(8)]
                   for g in range(8)] for w in range(4)])
    return T


class Gen:
    def __init__(self, opt):
        self.o = opt
        self.L = []
        self.nlab = 0
        self.in_helper = False

    def __call__(self, text):
        for line in text.strip("\n").split("\n"):
            line = line.strip()
            if line:
                self.L.append(line if line.endswith(":") else "  " + line)

    def lab(self, base):
        self.nlab += 1
        return f"L_{base}{self.nlab}"

    def stamp(self, idx, mode=1):
        if self.o["stamps"] == mode or (self.o["stamps"] and not self.in_helper):
            self(f"s_memrealtime s[78:79]\ns_waitcnt lgkmcnt(0)\ns_mov_b32 s{80 + idx}, s78")

    def spin_lds(self, off, target, sleep=1, wide=False, addr="v1"):
        lp, dn = self.lab("sp"), self.lab("sd")
        self("s_mov_b32 s12, 0x40000")
        self(f"{lp}:")
        if wide:
            self(f"ds_read_b64 v[6:7], {addr} offset:{off}")
        else:
            self(f"ds_read_b32 v6, {addr} offset:{off}")
        self("s_waitcnt lgkmcnt(0)\nv_readfirstlane_b32 s10, v6")
        if wide:
            self("v_readfirstlane_b32 s11, v7")
        self(f"""
            s_cmp_ge_u32 s10, {target}
            s_cbranch_scc1 {dn}
            s_sleep {sleep}
            s_sub_u32 s12, s12, 1
            s_cbranch_scc0 {lp}
            s_branch L_end
            {dn}:""")

    def lds_inc(self, off, ret=False, addr="v1"):
        self("s_mov_b64 exec, 1\nv_mov_b32 v5, 1")
        if ret:
            self(f"ds_add_rtn_u32 v6, {addr}, v5 offset:{off}\ns_waitcnt lgkmcnt(0)\nv_readfirstlane_b32 s10, v6")
        else:
            self(f"ds_add_u32 {addr}, v5 offset:{off}")
        self("s_mov_b64 exec, -1")

    def tags(self, t):
        self(f"""
            s_mul_i32 s10, s92, 0x9e3779b1
            s_mul_hi_u32 s11, s92, 0x85ebca6b
            s_mul_i32 s12, s92, 0xc2b2ae35
            s_xor_b32 s11, s11, s12
            v_mov_b32 v{t}, s10
            v_mov_b32 v{t+1}, s11
            v_and_b32 v{t+2}, 1, v0
            v_cndmask_b32 v{t}, v{t}, v{t+1}, s[64:65]
            v_lshlrev_b32 v{t+2}, 4, v{t+2}
            v_lshrrev_b32 v{t}, v{t+2}, v{t}
            v_lshrrev_b32 v{t+1}, 4, v{t}
            v_lshrrev_b32 v{t+2}, 8, v{t}
            v_lshrrev_b32 v{t+3}, 12, v{t}""")

    def tag_data(self, r, t):
        for e in range(4):
            self(f"v_bfi_b32 v{r + e}, 15, v{t + e}, v{r + e}")

    def poll(self, loads, sleep, t=236, half=()):
        lp, dn = self.lab("pl"), self.lab("pd")
        n = len(loads)
        self("s_mov_b32 s12, 0x4000")
        self(f"{lp}:")
        for i, (r, ins) in enumerate(loads):
            if i in half:
                self(f"s_mov_b32 exec_hi, 0\n{ins}\ns_mov_b32 exec_hi, -1")
            else:
                self(ins)
        for i, (r, ins) in enumerate(loads):
            self(f"s_waitcnt vmcnt({n - 1 - i})")
            if i in half:
                self("s_mov_b32 exec_hi, 0")
            for e in range(4):
                if i == 0 and e == 0:
                    self(f"v_xor_b32 v5, v{r}, v{t}")
                else:
                    self(f"v_bitop3_b32 v5, v5, v{r + e}, v{t + e} bitop3:0xf6")
            for e in range(4):
                self(f"v_and_b32 v{r + e}, -16, v{r + e}")
            if i in half:
                self("s_mov_b32 exec_hi, -1")
        self(f"""
            v_and_b32 v5, 15, v5
            v_cmp_ne_u32 vcc, 0, v5
            s_cmp_eq_u64 vcc, 0
            s_cbranch_scc1 {dn}""")
        if sleep:
            self(f"s_sleep {sleep}")
        self(f"""
            s_sub_u32 s12, s12, 1
            s_cbranch_scc0 {lp}
            s_branch L_end
            {dn}:""")

    def rows4_reduce(self, r):
        self(f"""
            s_nop 1
            v_permlane16_swap_b32 v{r}, v{r+1}
            v_permlane16_swap_b32 v{r+2}, v{r+3}
            s_nop 1
            v_add_f32 v{r}, v{r}, v{r+1}
            v_add_f32 v{r+2}, v{r+2}, v{r+3}
            s_nop 1
            v_permlane32_swap_b32 v{r}, v{r+2}
            s_nop 1
            v_add_f32 v{r}, v{r}, v{r+2}""")

    def row16_allreduce(self, op, r):
        for ctl in ("quad_perm:[1,0,3,2]", "quad_perm:[2,3,0,1]", "row_half_mirror", "row_mirror"):
            self(f"s_nop 1\n{op}_dpp v{r}, v{r}, v{r} {ctl} row_mask:0xf bank_mask:0xf")

    def wave_allreduce(self, op, r, t):
        self.row16_allreduce(op, r)
        for sw in ("v_permlane16_swap_b32", "v_permlane32_swap_b32"):
            self(f"v_mov_b32 v{t}, v{r}\ns_nop 1\n{sw} v{r}, v{t}\ns_nop 1\n{op} v{r}, v{r}, v{t}")

    def bf16_round(self, r):
        self(f"v_cvt_pk_bf16_f32 v{r}, v{r}, v{r}\nv_lshlrev_b32 v{r}, 16, v{r}")

    def srd(self, d, p, size):
        self(f"s_mov_b32 s{d}, s{p}\ns_and_b32 s{d+1}, s{p+1}, 0xffff\ns_mov_b32 s{d+2}, {size}\ns_mov_b32 s{d+3}, 0x20000")

    def entry(self):
        o = self.o
        self(f"""
            s_cmp_ge_u32 s2, 256
            s_cbranch_scc1 L_exit
            s_load_dwordx16 s[16:31], s[0:1], 0
            s_load_dwordx4 s[32:35], s[0:1], 64
            s_load_dwordx2 s[36:37], s[0:1], 80
            s_memrealtime s[94:95]
            v_lshrrev_b32 v2, 6, v0
            v_mov_b32 v1, 0
            v_readfirstlane_b32 s3, v2
            v_and_b32 v2, 63, v0
            v_lshlrev_b32 v5, 2, v2
            ds_write_b32 v5, v1 offset:{L_C}
            s_getreg_b32 s9, hwreg(HW_REG_XCC_ID)
            s_bfe_u32 s9, s9, 0x10002
            s_bfe_u32 s4, s2, 0x10002
            s_bfe_u32 s5, s2, 0x20003
            s_and_b32 s11, s2, 3
            s_lshr_b32 s10, s2, 5
            s_lshl_b32 s6, s11, 3
            s_add_u32 s6, s6, s10
            s_lshl_b32 s8, s5, 1
            s_add_u32 s8, s8, s4
            s_mov_b32 s64, 0xcccccccc
            s_mov_b32 s65, 0xcccccccc
            s_mov_b32 s66, 0xaaaaaaaa
            s_mov_b32 s67, 0xaaaaaaaa""")
        self("""
            s_lshl_b32 s38, s10, 2
            s_add_u32 s38, s38, s11
            s_sub_u32 s11, s8, 5
            s_lshl_b32 s11, s11, 5
            s_add_u32 s38, s38, s11
            s_mul_i32 s11, s38, 52
            s_lshr_b32 s11, s11, 8
            s_mul_i32 s39, s11, 5
            s_sub_u32 s39, s38, s39
            s_add_u32 s11, s11, 32
            s_sub_u32 s77, s38, 56
            s_cmp_ge_u32 s38, 56
            s_cselect_b32 s76, 3, 2
            s_cmp_lt_u32 s38, 40
            s_cselect_b32 s76, 1, s76
            s_cselect_b32 s77, s11, s77
            s_cmp_lt_u32 s8, 5
            s_cselect_b32 s76, 0, s76
            s_cselect_b32 s77, s6, s77
            s_cselect_b32 s39, s8, s39""")
        if o["stamps"]:
            for i in range(1, 12):
                self(f"s_mov_b32 s{80 + i}, 0")
        self("s_cmp_ge_u32 s3, 4\ns_cbranch_scc1 L_helper")

    def args_ready(self):
        self("s_waitcnt lgkmcnt(0)")
        if self.o["stamps"]:
            self("s_mov_b32 s80, s94")

    def vote(self, full):
        o = self.o
        n = 4 if full else 1
        M = ("s[52:53]", "s[54:55]", "s[96:97]", "s[98:99]")
        lp, dn = self.lab("vl"), self.lab("vd")
        self(f"""
            v_and_b32 v16, 63, v0
            s_andn2_b32 s10, s2, 4
            s_lshl_b32 s10, s10, 7
            v_cmp_gt_u32 vcc, 60, v16
            v_lshlrev_b32 v12, 7, v16
            v_mov_b32 v13, s10
            v_cndmask_b32 v13, v13, v12, vcc
            v_cndmask_b32 v12, 0, v12, vcc
            s_mov_b32 s12, 0x4000
            s_mov_b32 exec_lo, {"-1" if full else "0x3fffffff"}
            s_mov_b32 exec_hi, {"0x8fffffff" if full else "0x80000000"}
            {lp}:""")
        for i in range(n):
            self(f"s_mov_b32 s13, {VR + 7680 * i}\nbuffer_load_dword v{8 + i}, v{13 if i == 0 else 12}, s[44:47], s13 offen sc1")
        self("s_waitcnt vmcnt(0)\nv_xor_b32 v14, s92, v8")
        for i in range(1, n):
            self(f"v_bitop3_b32 v14, v14, v{8 + i}, s92 bitop3:0xf6")
        self(f"""
            v_cmp_lt_u32 vcc, 3, v14
            s_cmp_eq_u64 vcc, 0
            s_cbranch_scc1 {dn}
            s_sleep {o["asleep"]}
            s_sub_u32 s12, s12, 1
            s_cbranch_scc0 {lp}
            s_branch L_end
            {dn}:
            v_readlane_b32 s11, v8, 63""")
        for i in range(n):
            self(f"v_and_b32 v{8 + i}, 1, v{8 + i}\nv_cmp_eq_u32 {M[i]}, 1, v{8 + i}")
        self("""
            s_mov_b64 exec, -1
            s_lshr_b32 s11, s11, 1
            s_xor_b32 s11, s11, s4
            s_lshl_b32 s10, s6, 2
            s_add_u32 s10, s10, s5
            s_lshl_b32 s10, s10, 3
            s_add_u32 s10, s10, 1
            v_and_b32 v8, 3, v16
            v_lshl_add_u32 v8, v8, 1, s10
            v_mul_u32_u24 v8, 3, v8
            v_lshrrev_b32 v8, 6, v8
            v_lshrrev_b32 v9, 4, v8
            v_bfe_u32 v10, v16, 2, 3
            v_mad_u32_u24 v9, v10, 3, v9
            v_mul_u32_u24 v10, 43, v9
            v_lshrrev_b32 v10, 8, v10
            v_mul_u32_u24 v11, 6, v10
            v_sub_u32 v9, v9, v11
            v_mul_u32_u24 v9, 10, v9
            v_mov_b32 v14, s52
            v_mov_b32 v15, s53""")
        for i in range(1, n):
            lo = int(M[i][2:M[i].index(":")])
            self(f"""
                v_cmp_eq_u32 vcc, {i}, v10
                v_mov_b32 v12, s{lo}
                v_mov_b32 v13, s{lo + 1}
                v_cndmask_b32 v14, v14, v12, vcc
                v_cndmask_b32 v15, v15, v13, vcc""")
        self("""
            v_lshrrev_b64 v[14:15], v9, v[14:15]
            v_and_b32 v14, 0x3ff, v14
            v_bcnt_u32_b32 v14, v14, 10
            v_lshrrev_b32 v14, 4, v14
            v_xor_b32 v14, v14, v8
            v_xor_b32 v14, s11, v14
            v_and_b32 v14, 1, v14
            v_cmp_eq_u32 vcc, 1, v14
            s_mov_b32 s59, vcc_lo""")
        if o["numa"] == "far":
            self("s_not_b32 s59, s59")
        elif o["numa"] == "mix":
            self("s_xor_b32 s10, s4, s6\ns_bitcmp1_b32 s10, 0\ns_cselect_b32 s59, -1, 0\ns_xor_b32 s59, s59, 0x33335555")
        self(f"""
            v_mov_b32 v6, 1
            v_mov_b32 v7, s59
            ds_write_b64 v1, v[6:7] offset:{C_VOTE2 if full else C_VOTE}""")

    def series(self):
        if self.o["series"]:
            self(f"""
                s_memrealtime s[78:79]
                s_lshl_b32 s10, s3, 5
                s_add_u32 s10, s10, s58
                s_lshl_b32 s10, s10, 2
                v_mov_b32 v6, s10
                s_waitcnt lgkmcnt(0)
                v_mov_b32 v7, s78
                ds_write_b32 v6, v7 offset:{L_SER}""")

    def advance_window(self, may_jump):
        self.series()
        self(f"s_add_u32 s58, s58, 1\ns_add_u32 s57, s57, {WIN}")
        if may_jump:
            self(f"""
                s_bitcmp1_b32 s58, 1
                s_cselect_b32 s10, 0, {BATCH - 4 * WIN}
                s_add_u32 s57, s57, s10
                s_cmp_eq_u32 s58, 16
                s_cselect_b32 s57, s56, s57
                s_cselect_b32 s40, s20, s40
                s_cselect_b32 s41, s63, s41""")
        self("s_bitcmp1_b32 s59, s58\ns_cselect_b64 s[60:61], -1, 0")

    def issue(self, t, slot, wait):
        vo = 2 + (slot & 1)
        self(f"v_cndmask_b32 v{vo}, v{48 + t}, v{56 + t}, s[60:61]")
        if wait == "ctl":
            go = self.lab("go")
            self(f"""
                s_waitcnt vmcnt(6)
                s_add_u32 s70, s70, s68
                s_cbranch_scc1 {go}
                s_waitcnt vmcnt(3)
                s_add_u32 s71, s71, s69
                s_cbranch_scc0 {go}
                s_waitcnt vmcnt(0)
                {go}:""")
        elif wait is not None:
            self(f"s_waitcnt vmcnt({wait})")
        for j in range(3):
            r = 64 + slot * 12 + j * 4
            self(f"buffer_load_dwordx4 v[{r}:{r+3}], v{vo}, s[40:43], s57 offen offset:{128 * j} nt")

    def consume_k(self, slot):
        t = slot & 7
        r = 64 + slot * 12
        for i in range(12):
            c = "0" if i == 0 else f"v{20 + t}"
            self(f"v_dot2_f32_bf16 v{20 + t}, v{r + i}, v{8 + i}, {c}")
        if t == 7:
            self("s_nop 2")
            for k in range(4):
                self(f"v_add_f32_dpp v{20 + k}, v{20 + k}, v{20 + k} row_shl:4 row_mask:0xf bank_mask:0x5")
            for k in range(4):
                self(f"v_add_f32_dpp v{20 + k}, v{24 + k}, v{24 + k} row_shr:4 row_mask:0xf bank_mask:0xa")
            for k in range(4):
                self(f"v_add_f32_dpp v{24 + k}, v{20 + k}, v{20 + k} quad_perm:[2,3,0,1] row_mask:0xf bank_mask:0xf")
            self("""
                v_cndmask_b32 v20, v24, v26, s[64:65]
                v_cndmask_b32 v21, v25, v27, s[64:65]
                s_nop 0
                v_add_f32_dpp v24, v20, v20 quad_perm:[1,0,3,2] row_mask:0xf bank_mask:0xf
                v_add_f32_dpp v25, v21, v21 quad_perm:[1,0,3,2] row_mask:0xf bank_mask:0xf
                v_cndmask_b32 v28, v24, v25, s[66:67]""")
            self.bf16_round(28)
            self(f"""
                v_mul_f32 v28, {f32(192 ** -0.5)}, v28
                v_cvt_pk_bf16_f32 v28, v28, v28
                ds_write_b16 v4, v28 offset:{L_S + (slot >> 3) * 512}""")

    def consume_v(self, slot):
        t = slot & 7
        r = 64 + slot * 12
        a = 28 + (slot & 1) * 4
        if t == 0:
            self("s_waitcnt lgkmcnt(0)")
        for w in range(4):
            self(f"v_perm_b32 v{a + w}, v{36 + (t >> 1)}, v{36 + (t >> 1)}, v{20 + (t & 1) * 4 + w}")
        self("s_nop 1")
        for j in range(3):
            self(f"v_mfma_f32_16x16x32_bf16 v[{8 + 4*j}:{11 + 4*j}], v[{a}:{a+3}], v[{r + 4*j}:{r + 4*j + 3}], v[{8 + 4*j}:{11 + 4*j}]")

    def flush_acc(self):
        self(f"""
            s_mov_b32 exec_lo, 0x00ff00ff
            s_mov_b32 exec_hi, 0xff00ff00
            s_nop 5
            ds_write_b128 v40, v[8:11] offset:{L_ORED}
            ds_write_b128 v40, v[12:15] offset:{L_ORED + 256}
            ds_write_b128 v40, v[16:19] offset:{L_ORED + 512}""")

    def publish_o(self, r, va, vo, scale, tag, fl="sc1"):
        self("s_mov_b32 exec_hi, 0xffff")
        for k in range(8):
            self(f"ds_read_b128 v[{r + 4*k}:{r + 3 + 4*k}], {va} offset:{L_ORED + 768 * k}")
        for k in range(4):
            self(f"s_waitcnt lgkmcnt({6 - 2*k})")
            for e in range(4):
                self(f"v_add_f32 v{r + 8*k + e}, v{r + 8*k + e}, v{r + 4 + 8*k + e}")
        for e in range(4):
            self(f"v_add_f32 v{r + e}, v{r + e}, v{r + 8 + e}\nv_add_f32 v{r + 16 + e}, v{r + 16 + e}, v{r + 24 + e}")
        for e in range(4):
            self(f"v_add_f32 v{r + e}, v{r + e}, v{r + 16 + e}")
        for e in range(4):
            self(f"v_mul_f32 v{r + e}, {scale}, v{r + e}")
        self.tag_data(r, tag)
        self(f"buffer_store_dwordx4 v[{r}:{r+3}], {vo}, s[44:47], s13 offen {fl}\ns_mov_b64 exec, -1")

    def streamer(self):
        o = self.o
        W = "ctl" if o["ctl"] else 3
        self(f"""
            s_getpc_b64 s[14:15]
            L_pc:
            s_add_u32 s14, s14, L_table-L_pc
            s_addc_u32 s15, s15, 0
            v_lshrrev_b32 v8, 3, v0
            v_lshlrev_b32 v8, 5, v8
            s_mul_i32 s56, s6, {REGION}
            s_mul_i32 s10, s5, {4 * WIN}
            s_add_u32 s56, s56, s10
            s_mul_i32 s12, s2, 205
            s_lshr_b32 s12, s12, 11
            s_min_u32 s12, s12, 23
            s_cmp_ge_u32 s12, 12
            s_cselect_b32 s13, 12, 0
            s_sub_u32 s10, s12, s13
            s_lshl_b32 s10, s10, 3
            s_and_b32 s11, s2, 7
            s_add_u32 s10, s10, s11
            s_lshl_b32 s10, s10, 22
            s_and_b32 s11, s2, 63
            s_lshl_b32 s11, s11, 7
            s_add_u32 s10, s10, s11
            s_add_u32 s10, s10, 0x80000
            s_add_u32 s11, s10, 0x2000
            s_mov_b32 s54, {KV_BYTES}
            s_mov_b32 s55, 0x20000
            v_lshrrev_b32 v9, 4, v2
            v_mul_u32_u24 v9, 1280, v9
            v_and_b32 v10, 15, v2
            v_lshl_add_u32 v9, v10, 4, v9
            s_setprio 2""")
        self.args_ready()
        self(f"""
            s_cmp_lg_u32 s3, 0
            s_cbranch_scc1 L_noprobe
            s_cmp_eq_u32 s13, 0
            s_cselect_b32 s52, s18, s20
            s_cselect_b32 s53, s19, s21
            s_and_b32 s53, s53, 0xffff
            s_mov_b64 exec, 1
            buffer_load_dword v6, v1, s[52:55], s10 offen nt
            buffer_load_dword v7, v1, s[52:55], s11 offen nt
            s_mov_b64 exec, -1
            s_waitcnt vmcnt(1)
            s_memtime s[10:11]
            s_waitcnt vmcnt(0)
            s_memtime s[12:13]
            L_noprobe:
            s_barrier""")
        for i in range(4):
            self(f"global_load_dwordx4 v[{48 + 4*i}:{51 + 4*i}], v8, s[14:15] offset:{(i >> 1) * 1024 + (i & 1) * 16}")
        self.srd(44, 36, WS_END)
        self("s_cmp_lg_u32 s3, 0\ns_cbranch_scc1 L_tile")
        self(f"""
            s_waitcnt lgkmcnt(0)
            s_sub_u32 s10, s12, s10
            s_cmp_le_u32 s10, {o["gap"]}
            s_cselect_b32 s62, 1, 0
            s_xor_b32 s62, s62, s9""")
        for k in range(o["ntry"]):
            self(f"""
                s_load_dword s92, s[34:35], {64 * k}
                s_waitcnt lgkmcnt(0)
                s_cmp_lg_u32 s92, 0
                s_cbranch_scc1 L_ndone
                s_sleep {o["nsleep"]}""")
        self(f"""
            s_mov_b32 s12, 0x4000
            L_npoll:
            global_load_dword v5, v1, s[34:35] sc1
            s_waitcnt vmcnt(0)
            v_readfirstlane_b32 s92, v5
            s_cmp_lg_u32 s92, 0
            s_cbranch_scc1 L_ndone
            s_sleep 4
            s_sub_u32 s12, s12, 1
            s_cbranch_scc0 L_npoll
            s_branch L_end
            L_ndone:
            s_lshl_b32 s11, s9, 1
            s_or_b32 s10, s62, s11
            s_and_b32 s11, s92, -4
            s_or_b32 s10, s10, s11
            s_lshl_b32 s11, s2, 7
            s_add_u32 s11, s11, {VR}
            v_mov_b32 v5, s10
            v_mov_b32 v6, s92
            v_lshlrev_b32 v7, 2, v2
            s_mov_b32 exec_hi, 0
            buffer_store_dword v5, v7, s[44:47], s11 offen sc1
            ds_write_b32 v1, v6 offset:{C_NONCE}
            s_mov_b64 exec, -1""")
        self.stamp(1)
        if o["ackfirst"]:
            self("s_waitcnt vmcnt(0)")
        self.vote(False)
        self("s_branch L_notile")
        self(f"""
            L_tile:
            s_cmp_ge_u32 s76, 2
            s_cbranch_scc1 L_notile
            s_mov_b32 s42, {1536 * 1280}
            s_cmp_eq_u32 s76, 0
            s_cselect_b32 s40, s24, s30
            s_cselect_b32 s41, s25, s31
            s_cselect_b32 s42, {6144 * 1280}, s42
            s_and_b32 s41, s41, 0xffff
            s_mov_b32 s43, 0x20000
            s_and_b32 s13, s77, 31
            s_mul_i32 s13, s13, 3
            s_add_u32 s13, s13, s3
            s_sub_u32 s13, s13, 1
            s_mul_i32 s13, s13, {64 * 1280}
            s_lshl_b32 s10, s39, 8
            s_add_u32 s13, s13, s10
            s_lshl_b32 s12, s3, 14
            s_add_u32 m0, s12, {L_WT - 16384}""")
        for i in range(16):
            if i >= o["tdepth"]:
                self(f"s_waitcnt vmcnt({o['tdepth'] - 1})")
            else:
                self("s_nop 0")
            self("buffer_load_dwordx4 v9, s[40:43], s13 offen nt lds")
            self(f"s_add_u32 s13, s13, {4 * 1280}\ns_add_u32 m0, m0, 1024")
        self.stamp(1)
        self("""
            s_waitcnt vmcnt(16)
            s_branch L_tabok
            L_notile:
            s_waitcnt vmcnt(0)
            L_tabok:
            v_and_b32 v40, 7, v0
            v_lshlrev_b32 v40, 4, v40""")
        for i in range(16):
            self(f"v_add_u32 v{48 + i}, v{48 + i}, v40")
        self.srd(40, 18, KV_BYTES)
        self("""
            s_and_b32 s63, s21, 0xffff
            v_lshlrev_b32 v4, 1, v0
            v_mov_b32 v41, 0
            s_mov_b32 s57, s56
            s_mov_b32 s58, 0
            s_mov_b32 s68, 0
            s_mov_b32 s69, 0
            s_lshl_b32 s70, s3, 30
            s_lshl_b32 s71, s3, 30
            s_mov_b32 s72, 0
            s_mov_b32 s93, 1""")
        self("s_lshr_b32 s10, s3, 1\ns_cmp_lg_u32 s10, s4\ns_cselect_b64 s[60:61], -1, 0")
        for t in range(9):
            if t == o["agn"]:
                self.spin_lds(C_VOTE, 1, sleep=0, wide=True)
                self("s_mov_b32 s59, s11\ns_bitcmp1_b32 s59, 0\ns_cselect_b64 s[60:61], -1, 0")
                self.stamp(2)
            if t == 8:
                break
            self.issue(t, t, 3)
            if t == 1:
                self.lds_inc(C_WRDY)
        self.advance_window(False)
        for t in range(7):
            self.issue(t, 8 + t, 3)
        self.stamp(3)
        self.spin_lds(C_VOTE2, 1, wide=True)
        self("s_mov_b32 s59, s11\ns_mov_b32 s62, 0")

        def progress():
            sk = self.lab("pg")
            self(f"""
                s_cmp_lg_u32 s3, 0
                s_cbranch_scc1 {sk}
                s_memrealtime s[10:11]
                s_add_u32 s72, s72, 4
                v_mov_b32 v6, s72
                s_waitcnt lgkmcnt(0)
                s_or_b32 s10, s10, 1
                v_mov_b32 v7, s10
                ds_write_b32 v6, v7 offset:{C_T}
                {sk}:
                v_add_u32 v4, 1024, v4
                s_add_u32 s62, s62, 1""")

        def body(consume, last=False, vphase=False):
            for i in range(16):
                if o["ctl"] and not last and i % 4 == 2:
                    self(f"ds_read_b64 v[6:7], v1 offset:{C_CTL}")
                    if o["ctl"] == 2:
                        self("s_memrealtime s[74:75]")
                if o["ctl"] and not last and i % 4 == 3:
                    self("s_waitcnt lgkmcnt(0)\nv_readfirstlane_b32 s68, v6\nv_readfirstlane_b32 s69, v7")
                    if o["ctl"] == 2:
                        self(f"""
                            s_lshl_b32 s10, s74, 5
                            s_mul_i32 s11, s69, s93
                            s_add_u32 s93, s93, 2
                            s_sub_u32 s10, s10, s68
                            s_sub_u32 s10, s10, s11
                            s_cmp_eq_u32 s69, 0
                            s_cselect_b32 s10, 0, s10""")
                        self.levels("s68", "s69")
                if vphase and i in (0, 8):
                    self(f"ds_read_b128 v[36:39], v4 offset:{L_P + (i >> 3) * 512}")
                if not last or i == 0:
                    if i in (1, 9):
                        self.advance_window(i == 1)
                    self.issue((i - 1) & 7, (i - 1) & 15, 6 if last else W)
                elif i >= 13:
                    self(f"s_waitcnt vmcnt({3 * (15 - i)})")
                consume(i)

        self.spin_lds(C_QRDY, 3)
        self("L_kbatch:")
        for j in range(3):
            self(f"ds_read_b128 v[{8 + 4*j}:{11 + 4*j}], v40 offset:{L_Q + 128 * j}")
        self("v_add_u32 v40, 384, v40\ns_waitcnt lgkmcnt(0)")
        if o["stamps"]:
            self("s_cmp_lg_u32 s62, 0\ns_cbranch_scc1 L_kloop")
            self.stamp(4)
        self("L_kloop:")
        body(self.consume_k)
        progress()
        self("""
            s_bitcmp1_b32 s62, 0
            s_cbranch_scc1 L_kloop
            s_bitcmp1_b32 s62, 1
            s_cbranch_scc1 L_kbatch""")
        self.lds_inc(C_KSEG)
        self("s_cmp_lt_u32 s62, 8\ns_cbranch_scc1 L_kbatch")
        self.stamp(5)
        self("v_and_b32 v5, 7, v0\nv_mov_b32 v28, 0x0c0c0c0c")
        for par, (lo_sel, hi_sel) in enumerate(((0x0c0c0100, 0x01000c0c), (0x0c0c0302, 0x03020c0c))):
            self(f"v_mov_b32 v29, 0x{lo_sel:08x}\nv_mov_b32 v30, 0x{hi_sel:08x}")
            for w in range(4):
                r = 20 + par * 4 + w
                self(f"""
                    v_cmp_eq_u32 vcc, {2*w}, v5
                    v_cmp_eq_u32 s[10:11], {2*w + 1}, v5
                    s_nop 0
                    v_cndmask_b32 v{r}, v28, v29, vcc
                    v_cndmask_b32 v{r}, v{r}, v30, s[10:11]""")
        self("""
            v_lshrrev_b32 v4, 3, v0
            v_lshlrev_b32 v4, 4, v4
            v_lshlrev_b32 v40, 5, v5
            v_bfe_u32 v41, v0, 4, 1
            v_lshl_add_u32 v40, v41, 4, v40
            v_lshrrev_b32 v41, 5, v0
            v_mul_u32_u24 v41, 768, v41
            v_add_u32 v40, v40, v41
            v_mov_b32 v41, 0
            s_mov_b32 s62, 0
            s_mov_b32 s73, 4
            L_vseg:""")
        self.spin_lds(C_PRDY, "s73")
        self("s_mov_b32 s73, 8")
        self("L_vbatch:")
        for i in range(12):
            self(f"v_mov_b32 v{8 + i}, 0")
        self("L_vloop:")
        body(self.consume_v, vphase=True)
        progress()
        self("""
            s_cmp_eq_u32 s62, 7
            s_cbranch_scc1 L_vlast
            s_bitcmp1_b32 s62, 0
            s_cbranch_scc1 L_vloop""")
        self.flush_acc()
        self.lds_inc(C_OCNT, addr="v41")
        self("""
            v_add_u32 v40, 6144, v40
            v_add_u32 v41, 4, v41
            s_cmp_eq_u32 s62, 4
            s_cbranch_scc1 L_vseg
            s_branch L_vbatch
            L_vlast:""")
        self.spin_lds(C_SC + 24, 1, wide=True)
        self(f"""
            s_mov_b32 s73, s11
            ds_read_b32 v43, v1 offset:{C_NONCE}
            v_and_b32 v42, 63, v0
            v_lshlrev_b32 v42, 4, v42
            s_lshl_b32 s13, s6, 5
            s_add_u32 s13, s13, s8
            s_lshl_b32 s13, s13, 10
            s_add_u32 s13, s13, {OP + 3 * 8192}
            s_waitcnt lgkmcnt(0)
            v_readfirstlane_b32 s92, v43
            v_add_u32 v43, {3 * 6144}, v42""")
        self.tags(44)
        body(self.consume_v, last=True, vphase=True)
        self.flush_acc()
        if o["series"]:
            self("s_mov_b64 exec, -1")
            self.series()
            self(f"""
                v_and_b32 v6, 31, v0
                v_lshlrev_b32 v6, 2, v6
                s_lshl_b32 s10, s3, 7
                v_add_u32 v6, s10, v6
                ds_read_b32 v7, v6 offset:{L_SER}
                s_lshl_b32 s10, s2, 9
                s_add_u32 s10, s10, {STAMPS + 0x100000}
                v_add_u32 v6, s10, v6
                s_waitcnt lgkmcnt(0)
                global_store_dword v6, v7, s[36:37]""")
        self.lds_inc(C_OCNT, ret=True, addr="v41")
        self.stamp(7)
        self("s_cmp_lg_u32 s10, 3\ns_cbranch_scc1 L_end")
        self.publish_o(64, "v43", "v42", "s73", 44)
        self.stamp(8)
        self("s_branch L_end")

    def item_loads(self, part):
        if part < 2:
            for rho in range(8):
                r = 48 + (part * 8 + rho) * 2
                self(f"buffer_load_dwordx2 v[{r}:{r+1}], v44, s[40:43], s13 offen nt")
                self(f"s_add_u32 s13, s13, {'s71' if rho == 7 else 's70'}")
        else:
            for rho in range(4):
                r = 80 + rho * 2
                self(f"buffer_load_dwordx2 v[{r}:{r+1}], v45, s[40:43], s13 offen nt")
                if rho < 3:
                    self("s_add_u32 s13, s13, s70")

    def frag_norm(self):
        for i in range(10):
            self(f"v_lshlrev_b32 v{8 + 2*i}, 16, v{28 + i}\nv_and_b32 v{9 + 2*i}, 0xffff0000, v{28 + i}")
        self("s_waitcnt lgkmcnt(0)")
        for i in range(20):
            self(f"v_sub_f32 v{8 + i}, v{8 + i}, v40")
        for i in range(10):
            self(f"v_cvt_pk_bf16_f32 v{28 + i}, v{8 + 2*i}, v{9 + 2*i}")
        for i in range(10):
            self(f"v_lshlrev_b32 v{8 + 2*i}, 16, v{28 + i}\nv_and_b32 v{9 + 2*i}, 0xffff0000, v{28 + i}")
        for i in range(20):
            self(f"v_mul_f32 v{8 + i}, v{8 + i}, v41")
        for i in range(10):
            self(f"v_cvt_pk_bf16_f32 v{144 + i}, v{8 + 2*i}, v{9 + 2*i}")

    def item_compute(self):
        for s in range(3):
            self(f"s_waitcnt vmcnt({(12, 4, 0)[s]})")
            nm = 4 if s < 2 else 2
            for e in range(4):
                for m in range(nm):
                    lo = 48 + (s * 8 + 2 * m) * 2 + (e >> 1)
                    self(f"v_perm_b32 v{88 + s*16 + e*nm + m}, v{lo + 2}, v{lo}, s{68 + (e & 1)}")
            self("s_nop 1")
            for e in range(4):
                a = 88 + s * 16 + e * nm
                d = 128 + e * 4
                c = "0" if s == 0 else f"v[{d}:{d+3}]"
                if s < 2:
                    self(f"v_mfma_f32_16x16x32_bf16 v[{d}:{d+3}], v[{a}:{a+3}], v[{144 + 4*s}:{147 + 4*s}], {c}")
                else:
                    self(f"v_mfma_f32_16x16x16_bf16 v[{d}:{d+3}], v[{a}:{a+1}], v[152:153], {c}")
        self("s_nop 7")
        for r in range(4):
            self(f"v_cndmask_b32 v{128 + r}, v{128 + r}, v{132 + r}, s[66:67]")
            self(f"v_cndmask_b32 v{136 + r}, v{136 + r}, v{140 + r}, s[66:67]")
        for r in range(4):
            self(f"v_cndmask_b32 v{128 + r}, v{128 + r}, v{136 + r}, s[64:65]")
        self(f"ds_write_b128 v46, v[128:131] offset:{L_ORED}")

    def gather_tile(self, slot, sleep, silu, dst):
        self(f"""
            s_lshl_b32 s13, {slot}, 3
            s_add_u32 s13, s13, s72
            s_lshl_b32 s13, s13, 10""")
        self.poll([(8, "buffer_load_dwordx4 v[8:11], v229, s[44:47], s13 offen sc1"),
                   (12, "buffer_load_dwordx4 v[12:15], v229, s[44:47], s13 offen offset:3072 sc1")], sleep)
        for e in range(4):
            self(f"v_add_f32 v{8 + e}, v{8 + e}, v{12 + e}")
        if silu:
            for e in range(4):
                self.bf16_round(8 + e)
            for e in range(4):
                self(f"v_mul_f32 v{12 + e}, {f32(-1.4426950408889634)}, v{8 + e}")
            for e in range(4):
                self(f"v_exp_f32 v{12 + e}, v{12 + e}")
            for e in range(4):
                self(f"v_add_f32 v{12 + e}, 1.0, v{12 + e}")
            for e in range(4):
                self(f"v_rcp_f32 v{12 + e}, v{12 + e}")
            for e in range(4):
                self(f"v_mul_f32 v{8 + e}, v{8 + e}, v{12 + e}")
        self(f"""
            v_cvt_pk_bf16_f32 v8, v8, v9
            v_cvt_pk_bf16_f32 v10, v10, v11
            ds_write_b16 v233, v8 offset:{dst}
            ds_write_b16_d16_hi v233, v8 offset:{dst + 8}
            ds_write_b16 v233, v10 offset:{dst + 16}
            ds_write_b16_d16_hi v233, v10 offset:{dst + 24}""")

    def gather_o(self, batches, sleep, fl="sc1"):
        loads = []
        for n, b in enumerate(batches):
            for i in range(2):
                r = 8 + 8 * n + 4 * i
                self(f"s_add_u32 s{16 + 2*n + i}, s62, {8192 * b + 4096 * i}")
                loads.append((r, f"buffer_load_dwordx4 v[{r}:{r+3}], v47, s[44:47], s{16 + 2*n + i} offen {fl}"))
        self.poll(loads, sleep)
        for n, b in enumerate(batches):
            r = 8 + 8 * n
            for e in range(4):
                self(f"v_add_f32 v{r + e}, v{r + e}, v{r + 4 + e}")
            self.rows4_reduce(r)
            self(f"v_cvt_pk_bf16_f32 v{r}, v{r}, v{r}\nds_write_b16 v44, v{r} offset:{L_OBUF + 384 * b}")

    def project(self):
        self.lds_inc(C_HS)
        self.spin_lds(C_HS, 4, sleep=0)
        for s in range(6):
            self(f"ds_read_b128 v[{8 + 4*s}:{11 + 4*s}], v228 offset:{L_OBUF + 64 * s}")
        for s in range(6):
            self(f"s_waitcnt lgkmcnt({5 - s})")
            for e in range(2):
                b = 180 + s * 8 + e * 4
                d = 32 + e * 4
                c = "0" if s == 0 else f"v[{d}:{d+3}]"
                self(f"v_mfma_f32_16x16x32_bf16 v[{d}:{d+3}], v[{8 + 4*s}:{11 + 4*s}], v[{b}:{b+3}], {c}")
        self("s_mov_b32 vcc_lo, 0xffff0000\ns_mov_b32 vcc_hi, 0\ns_nop 6")
        for r in range(4):
            self(f"v_cndmask_b32 v{32 + r}, v{32 + r}, v{36 + r}, vcc")
        self.tag_data(32, 236)
        self("""
            s_mov_b32 exec_hi, 0
            buffer_store_dwordx4 v[32:35], v229, s[44:47], s75 offen sc1
            s_mov_b64 exec, -1""")

    def prep(self, g):
        o = self.o
        lp, dn, keep = self.lab("fl"), self.lab("fd"), self.lab("fk")
        AGN = "s_mov_b64 s[60:61], s[52:53]\ns_mov_b64 s[54:55], s[52:53]"
        if g == 0 and o["agn"]:
            AGN = """
                s_lshr_b32 s10, s59, 16
                s_xor_b32 s10, s10, s4
                s_bitcmp1_b32 s10, 0
                s_cselect_b32 s54, -1, 0
                s_xor_b32 s54, s54, 0xffff0000
                s_cmp_eq_u32 s72, 0
                s_cselect_b32 s54, s54, s52
                s_mov_b32 s55, s53
                s_or_b64 s[60:61], s[52:53], s[54:55]"""
        self.spin_lds(C_KSEG, 4 * (g + 1), sleep=8)
        self(f"""
            ds_read_b128 v[32:35], v230 offset:{L_S + 4096 * g}
            s_lshr_b32 s62, s59, 16
            s_xor_b32 s62, s62, s59
            s_lshl_b32 s11, s72, 1
            s_add_u32 s11, s11, {8 * g}
            s_lshr_b32 s10, s62, s11
            s_bitcmp1_b32 s10, 0
            s_cselect_b32 s52, -1, 0
            s_bitcmp1_b32 s10, 1
            s_cselect_b32 s53, -1, 0
            {AGN}
            s_lshl_b32 s13, s2, 13
            s_add_u32 s13, s13, {SC + 4096 * g}
            s_xor_b32 s14, s13, {4 << 13}
            s_lshl_b32 s15, s2, 8
            s_add_u32 s15, s15, {FL + 128 * g}
            s_waitcnt lgkmcnt(0)
            s_cmp_eq_u64 s[60:61], 0
            s_cbranch_scc1 {keep}s
            s_mov_b64 exec, s[60:61]
            buffer_store_dwordx4 v[32:35], v230, s[44:47], s13 offen {o["scst"]}
            s_waitcnt vmcnt(0)
            {keep}s:""")
        self.lds_inc(C_FCNT, ret=True)
        self(f"""
            s_cmp_lg_u32 s10, {4 * g + 3}
            s_cbranch_scc1 {keep}f
            s_bfe_u32 s10, s62, {(8 << 16) | (8 * g)}
            {"" if (g == 0 and o["agn"]) else f"s_cbranch_scc0 {keep}f"}
            v_mov_b32 v5, s92
            v_lshlrev_b32 v6, 2, v2
            s_mov_b32 exec_hi, 0
            buffer_store_dword v5, v6, s[44:47], s15 offen sc1
            s_mov_b32 exec_hi, -1
            {keep}f:
            s_cmp_eq_u64 s[60:61], 0
            s_cbranch_scc1 {keep}
            s_xor_b32 s15, s15, {4 << 8}
            s_mov_b32 s12, 0x4000
            s_mov_b64 exec, 1
            {lp}:
            s_sleep {o["fsleep"]}
            buffer_load_dword v6, v1, s[44:47], s15 offen sc1
            s_waitcnt vmcnt(0)
            v_readfirstlane_b32 s10, v6
            s_cmp_eq_u32 s10, s92
            s_cbranch_scc1 {dn}
            s_sub_u32 s12, s12, 1
            s_cbranch_scc0 {lp}
            s_branch L_end
            {dn}:
            s_mov_b64 exec, s[60:61]
            buffer_load_dwordx4 v[36:39], v230, s[44:47], s14 offen {o["scld"]}
            s_mov_b64 exec, -1
            s_waitcnt vmcnt(0)""")
        for i in range(4):
            self(f"v_cndmask_b32 v{32 + i}, v{32 + i}, v{36 + i}, {'s[54:55]' if 2 * i < o['agn'] else 's[52:53]'}")
        self(f"{keep}:")
        for i in range(4):
            self(f"v_lshlrev_b32 v{8 + 2*i}, 16, v{32 + i}\nv_and_b32 v{9 + 2*i}, 0xffff0000, v{32 + i}")
        self("v_max3_f32 v24, v8, v9, v10\nv_max3_f32 v24, v24, v11, v12\nv_max3_f32 v24, v24, v13, v14\nv_max_f32 v24, v24, v15")
        self.wave_allreduce("v_max_f32", 24, 25)
        self(f"""
            s_lshl_b32 s10, s72, 2
            v_mov_b32 v26, s10
            ds_write_b32 v26, v24 offset:{C_MAX + 16 * g}
            v_xor_b32 v26, 4, v26""")
        self.lds_inc(C_MAXC)
        self.spin_lds(C_MAXC, 4 * (g + 1), sleep=2)
        self(f"""
            ds_read_b32 v25, v26 offset:{C_MAX + 16 * g}
            s_mov_b32 s10, {f32(1.4426950408889634)}
            s_waitcnt lgkmcnt(0)
            v_max_f32 v24, v24, v25""")
        for i in range(8):
            self(f"v_sub_f32 v{8 + i}, v{8 + i}, v24")
        for i in range(8):
            self(f"v_mul_f32 v{8 + i}, s10, v{8 + i}")
        for i in range(8):
            self(f"v_exp_f32 v{8 + i}, v{8 + i}")
        for i in range(4):
            self(f"v_cvt_pk_bf16_f32 v{32 + i}, v{8 + 2*i}, v{9 + 2*i}")
        self(f"ds_write_b128 v230, v[32:35] offset:{L_P + 4096 * g}")
        self.lds_inc(C_PRDY)
        for step in (4, 2, 1):
            for i in range(step):
                self(f"v_add_f32 v{8 + i}, v{8 + i}, v{8 + step + i}")
        self.wave_allreduce("v_add_f32", 8, 9)
        self(f"""
            v_mov_b32 v25, s92
            v_mov_b32 v26, v8
            v_mov_b32 v27, s92
            v_lshlrev_b32 v9, 2, v231
            s_mov_b64 exec, 1
            ds_write_b128 v9, v[24:27] offset:{L_STAT + 64 * g}
            s_mov_b64 exec, -1""")
        if g == 1:
            self.lds_inc(C_SCNT, ret=True)
            self(f"""
                s_cmp_lg_u32 s10, 3
                s_cbranch_scc1 L_nostat
                s_mov_b64 exec, 0xff
                ds_read_b128 v[24:27], v229 offset:{L_STAT}
                s_lshl_b32 s13, s6, 3
                s_add_u32 s13, s13, s8
                s_lshl_b32 s13, s13, 7
                s_add_u32 s13, s13, {ST}
                s_waitcnt lgkmcnt(0)
                buffer_store_dwordx4 v[24:27], v229, s[44:47], s13 offen sc1
                s_mov_b64 exec, -1
                L_nostat:""")

    def scale(self):
        lp, dn = self.lab("sl"), self.lab("sd")
        self(f"""
            v_bfe_u32 v12, v2, 1, 3
            v_lshlrev_b32 v12, 7, v12
            v_lshl_add_u32 v12, v4, 5, v12
            v_and_b32 v13, 1, v2
            v_lshl_add_u32 v12, v13, 4, v12
            s_lshl_b32 s13, s6, 10
            s_add_u32 s13, s13, {ST}
            s_mov_b32 s12, 0x4000
            {lp}:
            buffer_load_dwordx4 v[8:11], v12, s[44:47], s13 offen sc1
            s_waitcnt vmcnt(0)
            v_xor_b32 v13, s92, v9
            v_bitop3_b32 v13, v13, v11, s92 bitop3:0xf6
            v_cmp_ne_u32 vcc, 0, v13
            s_cmp_eq_u64 vcc, 0
            s_cbranch_scc1 {dn}
            s_sleep 24
            s_sub_u32 s12, s12, 1
            s_cbranch_scc0 {lp}
            s_branch L_end
            {dn}:
            v_mov_b32 v9, v8""")
        self.row16_allreduce("v_max_f32", 9)
        self(f"""
            v_sub_f32 v8, v8, v9
            v_mul_f32 v8, {f32(1.4426950408889634)}, v8
            v_exp_f32 v8, v8
            s_lshl_b32 s10, s8, 1
            v_mul_f32 v10, v10, v8""")
        self.row16_allreduce("v_add_f32", 10)
        self(f"""
            v_rcp_f32 v10, v10
            v_lshlrev_b32 v11, 3, v4
            v_mul_f32 v9, v8, v10
            v_mov_b32 v8, 1
            s_lshl_b32 exec_lo, 0x10001, s10
            s_mov_b32 exec_hi, exec_lo
            ds_write_b64 v11, v[8:9] offset:{C_SC}
            s_mov_b64 exec, -1""")

    def levels(self, up, down):
        o = self.o
        self(f"""
            s_min_i32 s10, s10, {(o["cmax"] << 22) // o["gain"]}
            s_max_i32 s10, s10, {-((o["cmaxs"] << 22) // o["gains"])}
            s_max_i32 {up}, s10, 0
            s_sub_i32 {down}, 0, s10
            s_max_i32 {down}, {down}, 0
            s_mul_i32 {up}, {up}, {o["gain"] << 6}
            s_mul_i32 {down}, {down}, {o["gains"] << 6}""")

    def control(self, last, check=True):
        o = self.o
        if not o["ctl"]:
            return
        lp, dn, np_, nc = self.lab("cl"), self.lab("cd"), self.lab("cp"), self.lab("cn")
        if check:
            self(f"s_cmp_lg_u32 s72, 3\ns_cbranch_scc1 {dn}")
        self(f"""
            {lp}:
            s_add_u32 s96, s96, 1
            s_lshl_b32 s10, s96, 2
            v_mov_b32 v9, s10""")
        self.spin_lds(C_T, 1, sleep=4, addr="v9")
        self(f"""
            s_mov_b32 s97, s10
            s_lshl_b32 s13, s96, 12
            s_add_u32 s13, s13, {CT - 4096}
            v_lshlrev_b32 v9, 7, v2
            s_mov_b32 exec_hi, 0
            buffer_load_dwordx2 v[10:11], v9, s[44:47], s13 offen sc1
            s_cmp_ge_u32 s99, 32
            s_cbranch_scc1 {np_}
            s_lshl_b32 s14, s99, 7
            s_add_u32 s14, s14, s13
            s_add_u32 s14, s14, 4096
            v_mov_b32 v12, s92
            v_mov_b32 v13, s97
            v_lshlrev_b32 v14, 3, v2
            s_mov_b32 exec_lo, 0xffff
            buffer_store_dwordx2 v[12:13], v14, s[44:47], s14 offen sc1
            s_mov_b32 exec_lo, -1
            s_waitcnt vmcnt(1)
            s_branch {np_}w
            {np_}:
            s_waitcnt vmcnt(0)
            {np_}w:
            v_cmp_eq_u32 vcc, s92, v10
            v_sub_u32 v11, s97, v11
            s_nop 0
            v_cndmask_b32 v11, 0, v11, vcc""")
        self.row16_allreduce("v_add_u32", 11)
        self(f"""
            s_nop 0
            v_readlane_b32 s10, v11, 0
            v_readlane_b32 s11, v11, 16
            s_mov_b64 exec, -1
            s_add_u32 s10, s10, s11
            s_lshl_b32 s11, s97, 5
            s_sub_u32 s11, s11, s10
            s_sub_u32 s12, s11, s98
            s_mov_b32 s98, s11
            s_cmp_lt_u32 s96, 3
            s_cbranch_scc1 {nc}""")
        if o["pmin"]:
            self("s_min_u32 s14, s12, s100\ns_mov_b32 s100, s12\ns_mov_b32 s12, s14")
        if o["ctl"] == 2:
            self(f"""
                s_lshr_b32 s12, s12, 3
                s_sub_u32 s10, s96, 1
                s_mul_i32 s10, s10, s12
                s_lshl_b32 s10, s10, 3
                s_sub_u32 s11, s11, s10
                s_sub_u32 s11, s11, {(o["bias"] * 32) & 0xffffffff}""")
        else:
            self(f"s_sub_i32 s10, s10, s12\ns_add_i32 s10, s10, {o['bias'] * 32}")
            self.levels("s11", "s12")
        self(f"""
            v_mov_b32 v12, s11
            v_mov_b32 v13, s12
            ds_write_b64 v1, v[12:13] offset:{C_CTL}
            {nc}:
            s_cmp_lt_u32 s96, {last}
            s_cbranch_scc1 {lp}
            {dn}:""")

    def helper(self):
        o = self.o
        self.in_helper = True
        self(f"""
            L_helper:
            s_sub_u32 s72, s3, 4
            s_sub_u32 s74, s38, 48
            s_mul_i32 s61, s74, 43
            s_lshr_b32 s61, s61, 8
            s_mul_i32 s10, s61, 6
            s_sub_u32 s73, s74, s10
            s_add_u32 s61, s61, 32
            s_cmp_lt_u32 s8, 6
            s_cselect_b32 s61, s6, s61
            s_cselect_b32 s73, s8, s73
            s_cselect_b32 s74, 0, s74
            s_cselect_b32 s70, 12, 3
            s_lshl_b32 s70, s70, 10
            s_mul_i32 s71, s70, 25
            s_cmp_ge_u32 s73, 3
            s_cselect_b32 s14, 4, 0
            s_cselect_b32 s10, 3, 0
            s_add_u32 s14, s14, s72
            s_mul_i32 s14, s14, 80
            s_sub_u32 s10, s73, s10
            s_and_b32 s11, s61, 31
            s_mul_i32 s11, s11, 3
            s_add_u32 s10, s10, s11
            s_lshl_b32 s10, s10, 7
            s_mul_i32 s13, s14, s70
            s_add_u32 s13, s13, s10
            s_lshl_b32 s14, s14, 1
            v_and_b32 v3, 15, v2
            v_lshrrev_b32 v4, 4, v2
            v_mul_u32_u24 v5, 1280, v4
            v_lshl_add_u32 v5, v3, 4, v5
            v_lshrrev_b32 v6, 2, v3
            v_mul_u32_u24 v7, 1280, v6
            v_lshl_add_u32 v38, v4, 3, v7
            v_lshl_add_u32 v7, v4, 4, v7
            v_mul_u32_u24 v45, s70, v4
            v_add_lshl_u32 v44, v45, v3, 3
            v_lshlrev_b32 v45, 2, v45
            v_lshl_add_u32 v45, v3, 3, v45
            s_or_b32 s10, s2, s72""")
        self.args_ready()
        self(f"""
            s_cmp_lg_u32 s10, 0
            s_cbranch_scc1 L_nononce
            s_lshl_b32 s10, s94, 2
            s_or_b32 s10, s10, 1
            v_mov_b32 v47, s10
            v_lshlrev_b32 v46, 2, v2
            global_store_dword v46, v47, s[34:35] sc1
            L_nononce:
            s_mov_b32 s42, {640 * 1536 * 2}
            s_cmp_lt_u32 s8, 6
            s_cselect_b32 s40, s22, s28
            s_cselect_b32 s41, s23, s29
            s_cselect_b32 s42, {640 * 6144 * 2}, s42
            s_and_b32 s41, s41, 0xffff
            s_mov_b32 s43, 0x20000""")
        self.srd(48, 16, 5120)
        self.srd(44, 36, WS_END)
        self.stamp(1, 2)
        self("s_barrier")
        self.stamp(2, 2)
        self("s_cmp_ge_u32 s74, 48\ns_cbranch_scc1 L_noloads")
        for i in range(5):
            self(f"buffer_load_dwordx4 v[{8 + 4*i}:{11 + 4*i}], v5, s[48:51], 0 offen offset:{256 * i}")
        self("""
            buffer_load_dwordx4 v[28:31], v7, s[48:51], s14 offen
            buffer_load_dwordx4 v[32:35], v7, s[48:51], s14 offen offset:64
            buffer_load_dwordx2 v[36:37], v38, s[48:51], s14 offen offset:128""")
        first = (3, 1, 2)[o["hsplit"]]
        for p in range(first):
            self.item_loads(p)
        self("L_noloads:")
        self.stamp(3, 2)
        self(f"""
            s_lshl_b32 s10, s39, 2
            s_add_u32 s10, s10, s72
            s_lshl_b32 s10, s10, 9
            s_mul_i32 s75, s77, 10240
            s_add_u32 s75, s75, s10
            s_add_u32 s75, s75, {YP}
            s_mov_b32 s68, 0x05040100
            s_mov_b32 s69, 0x07060302
            v_lshlrev_b32 v229, 4, v2
            v_and_b32 v47, 3, v2
            v_mul_u32_u24 v228, 384, v47
            v_lshl_add_u32 v228, v4, 4, v228
            v_mul_u32_u24 v233, 384, v4
            v_lshl_add_u32 v233, v6, 5, v233
            v_lshl_add_u32 v233, v47, 1, v233
            s_lshl_b32 s10, s72, 7
            v_add_u32 v233, s10, v233
            s_lshl_b32 s10, s72, 10
            v_add_u32 v230, s10, v229
            v_lshl_add_u32 v46, v6, 8, s10
            v_lshl_add_u32 v46, v4, 6, v46
            v_lshl_add_u32 v46, v47, 4, v46
            s_lshl_b32 s10, s72, 2
            v_mov_b32 v231, s10
            s_mov_b32 s60, 0
            s_cmp_ge_u32 s74, 48
            s_cbranch_scc1 L_noitem
            v_lshlrev_b32 v47, 6, v6
            s_mov_b32 s10, 0x3f803f80
            s_waitcnt vmcnt({(20, 8, 16)[o["hsplit"]]})""")
        self.stamp(4, 2)
        for i in range(20):
            self(f"v_dot2_f32_bf16 v40, v{8 + i}, s10, {'0' if i == 0 else 'v40'}")
        self("s_nop 1")
        self.row16_allreduce("v_add_f32", 40)
        self(f"v_mul_f32 v40, {f32(1 / 640)}, v40")
        for p in range(first, 3):
            self.item_loads(p)
        self("v_mov_b32 v41, 0\nv_mov_b32 v42, 0")
        for i in range(20):
            self(f"""
                v_lshlrev_b32 v38, 16, v{8 + i}
                v_and_b32 v39, 0xffff0000, v{8 + i}
                v_sub_f32 v38, v38, v40
                v_sub_f32 v39, v39, v40
                v_fmac_f32 v41, v38, v38
                v_fmac_f32 v42, v39, v39""")
        self("v_add_f32 v41, v41, v42")
        self.row16_allreduce("v_add_f32", 41)
        self(f"v_mul_f32 v41, {f32(1 / 640)}, v41")
        self.bf16_round(41)
        self(f"v_add_f32 v41, {f32(1e-5)}, v41")
        self.bf16_round(41)
        self("v_sqrt_f32 v41, v41\ns_nop 0")
        self.bf16_round(41)
        self("v_rcp_f32 v41, v41")
        self.bf16_round(40)
        self("ds_bpermute_b32 v40, v47, v40\nds_bpermute_b32 v41, v47, v41")
        self.frag_norm()
        self.stamp(5, 2)
        self.item_compute()
        self.lds_inc(C_ICNT, ret=True)
        self("s_mov_b32 s60, s10\nL_noitem:")
        self.stamp(1)
        self.stamp(6, 2)
        self.spin_lds(C_NONCE, 1, sleep=0)
        self("s_mov_b32 s92, s10")
        self.tags(236)
        self("s_cmp_lg_u32 s60, 3\ns_cbranch_scc1 L_nopub")
        for k in range(4):
            self(f"ds_read_b128 v[{8 + 4*k}:{11 + 4*k}], v229 offset:{L_ORED + 1024 * k}")
        self("""
            s_lshl_b32 s13, s61, 3
            s_add_u32 s13, s13, s73
            s_lshl_b32 s13, s13, 10
            s_waitcnt lgkmcnt(0)""")
        for e in range(4):
            self(f"v_add_f32 v{8 + e}, v{8 + e}, v{12 + e}\nv_add_f32 v{16 + e}, v{16 + e}, v{20 + e}")
        for e in range(4):
            self(f"v_add_f32 v{24 + e}, v{8 + e}, v{16 + e}")
        self.tag_data(24, 236)
        self(f"buffer_store_dwordx4 v[24:27], v229, s[44:47], s13 offen {o['qst']}\nL_nopub:")
        self.stamp(2)
        self.stamp(7, 2)
        self("s_cmp_lg_u32 s72, 3\ns_cbranch_scc1 L_novote")
        self.spin_lds(C_VOTE, 1, sleep=4)
        self.vote(True)
        self("s_branch L_qdone\nL_novote:")
        if o["qdelay"]:
            self(f"s_sleep {o['qdelay']}")
        self.gather_tile("s6", o["qsleep"], False, L_Q)
        self.lds_inc(C_QRDY)
        self("L_qdone:")
        self.stamp(4)
        self.stamp(9, 2)
        self("s_cmp_ge_u32 s76, 2\ns_cbranch_scc1 L_noproj")
        self.spin_lds(C_WRDY, 4)
        self(f"""
            v_lshlrev_b32 v44, 11, v4
            v_lshl_add_u32 v44, v3, 2, v44
            s_lshl_b32 s10, s72, 6
            s_add_u32 s10, s10, {L_WT}
            v_add_u32 v44, s10, v44""")
        for s in range(6):
            for rho in range(8):
                self(f"ds_read_b32 v{132 + rho}, v44 offset:{(32 * s + rho) * 256}")
            self("s_waitcnt lgkmcnt(0)")
            for e in range(2):
                for m in range(4):
                    self(f"v_perm_b32 v{180 + s*8 + e*4 + m}, v{133 + 2*m}, v{132 + 2*m}, s{68 + e}")
        self("s_cmp_eq_u32 s76, 0\ns_cbranch_scc1 L_noproj")
        self("s_cmp_eq_u32 s72, 3\ns_cbranch_scc1 L_noh")
        self.gather_tile("s77", 16, True, L_OBUF)
        self("L_noh:")
        self.project()
        self("L_noproj:")
        self.stamp(5)
        self.stamp(10, 2)
        self.spin_lds(C_VOTE2, 1, wide=True)
        self("""
            s_mov_b32 s59, s11
            s_mov_b32 s96, 0
            s_mov_b32 s98, 0
            s_mov_b32 s100, -1
            s_lshr_b32 s10, s2, 3
            s_mul_i32 s11, s10, 57
            s_lshr_b32 s11, s11, 9
            s_mul_i32 s12, s11, 9
            s_sub_u32 s12, s10, s12
            s_lshl_b32 s11, s11, 3
            s_and_b32 s99, s2, 7
            s_add_u32 s99, s99, s11
            s_cmp_eq_u32 s12, 1
            s_cselect_b32 s99, s99, 64""")
        self.control(4)
        self.prep(0)
        self.stamp(6)
        self.control(8)
        self.prep(1)
        self.stamp(7)
        self("s_cmp_lg_u32 s72, 3\ns_cbranch_scc1 L_pubo")
        self.control(o["sit"], check=False)
        self.scale()
        self.control(14, check=False)
        self("s_cmp_eq_u32 s76, 3\ns_cbranch_scc1 L_reduce\ns_cmp_lg_u32 s76, 0\ns_cbranch_scc1 L_end")
        self.spin_lds(C_OCNT + 12, 1, sleep=o["tsleep"])
        self("s_setprio 3\ns_branch L_proj")
        self(f"""
            L_pubo:
            s_mul_i32 s10, s72, 6144
            v_add_u32 v44, s10, v229
            s_lshl_b32 s13, s6, 2
            s_add_u32 s13, s13, s72
            s_lshl_b32 s13, s13, 3
            s_add_u32 s13, s13, s8
            s_lshl_b32 s13, s13, 10
            s_add_u32 s13, s13, {OP}
            v_lshlrev_b32 v45, 1, v231""")
        self.spin_lds(C_SC, 1, sleep=16, wide=True, addr="v45")
        self("s_mov_b32 s63, s11")
        self.spin_lds(C_OCNT + (8 if o["latepub"] else 0), 4, sleep=8, addr="v1" if o["latepub"] else "v231")
        if o["latepub"] == 2:
            self.spin_lds(C_T + 60, 1, sleep=4)
        elif o["pdelay"]:
            self(f"s_sleep {o['pdelay']}")
        self.publish_o(8, "v44", "v229", "s63", 236, o["ost"])
        self.stamp(8)
        self(f"""
            s_cmp_lg_u32 s76, 0
            s_cbranch_scc1 L_end
            s_lshl_b32 s62, s6, 15
            s_lshl_b32 s10, s72, 8
            s_add_u32 s62, s62, s10
            s_add_u32 s62, s62, {OP}
            v_lshlrev_b32 v47, 10, v4
            v_lshl_add_u32 v47, v3, 4, v47
            v_lshlrev_b32 v44, 3, v3
            v_lshl_add_u32 v44, v4, 1, v44
            s_lshl_b32 s10, s72, 7
            v_add_u32 v44, s10, v44""")
        if o["oit"] < 16:
            self.spin_lds(C_T + 4 * o["oit"], 1, sleep=8)
            if o["odelay"]:
                self(f"s_sleep {o['odelay']}")
            self.gather_o((0, 1, 2), o["osleep"], o["old"])
        self.spin_lds(C_OCNT + 12, o["ostart"], sleep=o["tsleep"])
        self("s_setprio 3")
        if o["oit"] == 16:
            self.gather_o((0, 1, 2), o["osleep"], o["old"])
        self.gather_o((3,), o["psleep"])
        self.stamp(9)
        self("L_proj:")
        self.project()
        self.stamp(10)
        self("s_branch L_end")
        self("L_reduce:")
        self.srd(52, 32, 5120)
        self(f"""
            v_mul_u32_u24 v44, 10240, v4
            v_bfe_u32 v5, v2, 3, 1
            v_lshl_add_u32 v44, v5, 8, v44
            v_and_b32 v6, 7, v2
            v_lshl_add_u32 v44, v6, 4, v44
            v_mul_u32_u24 v45, 1280, v4
            v_lshl_add_u32 v45, v6, 2, v45
            v_lshl_add_u32 v45, v5, 1, v45
            s_lshr_b32 s10, s77, 1
            s_lshl_b32 s13, s10, 9
            s_and_b32 s11, s77, 1
            s_lshl_b32 s11, s11, 7
            s_add_u32 s13, s13, s11
            s_add_u32 s13, s13, {YP}
            s_lshl_b32 s62, s77, 5
            buffer_load_ushort v46, v45, s[48:51], s62 offen""")
        for i in range(10):
            self(f"s_add_u32 s{16 + i}, s13, {40960 * i}")
        self.poll([(40, "buffer_load_dwordx4 v[40:43], v44, s[44:47], s24 offen sc1"),
                   (48, "buffer_load_dwordx4 v[48:51], v44, s[44:47], s25 offen sc1")], 16)
        for e in range(4):
            self(f"v_add_f32 v{40 + e}, v{40 + e}, v{48 + e}")
        self.rows4_reduce(40)
        self.bf16_round(40)
        self("v_lshlrev_b32 v46, 16, v46")
        self.spin_lds(C_OCNT + 12, o["ostart"], sleep=o["tsleep"])
        self("s_setprio 3")
        self.poll([(8 + 4*i, f"buffer_load_dwordx4 v[{8 + 4*i}:{11 + 4*i}], v44, s[44:47], s{16 + i} offen sc1")
                   for i in range(8)], o["psleep"])
        self.stamp(9)
        for step in (16, 8, 4):
            for i in range(step):
                self(f"v_add_f32 v{8 + i}, v{8 + i}, v{8 + step + i}")
        self.rows4_reduce(8)
        self.bf16_round(8)
        self("v_add_f32 v8, v46, v8")
        self.bf16_round(8)
        self("""
            v_add_f32 v8, v8, v40
            v_cvt_pk_bf16_f32 v8, v8, v8
            buffer_store_short v8, v45, s[52:55], s62 offen""")
        self.stamp(10)

    def finish(self):
        self("L_end:")
        if self.o["stamps"]:
            self(f"""
                s_waitcnt vmcnt(0)
                s_memrealtime s[78:79]
                s_getreg_b32 s101, hwreg(HW_REG_XCC_ID)
                s_waitcnt lgkmcnt(0)
                s_mov_b32 s91, s78
                s_mov_b64 exec, 1
                s_lshl_b32 s10, s2, 3
                s_add_u32 s10, s10, s3
                s_lshl_b32 s10, s10, 6
                s_add_u32 s10, s10, {STAMPS}
                v_mov_b32 v5, s10""")
            for i in range(12):
                self(f"v_mov_b32 v{8 + i}, s{80 + i}")
            self("v_mov_b32 v20, s101\nv_mov_b32 v21, s59\nv_mov_b32 v22, s6\nv_mov_b32 v23, s76")
            for i in range(4):
                self(f"global_store_dwordx4 v5, v[{8 + 4*i}:{11 + 4*i}], s[36:37] offset:{16 * i}")
        if self.o["enc"]:
            wave, idx, mult = (int(x) for x in self.o["enc"].split("x"))
            self(f"""
                s_cmp_lg_u32 s3, {wave}
                s_cbranch_scc1 L_exit
                s_sub_u32 s10, s{80 + idx}, s80
                s_mul_i32 s10, s10, {mult}
                s_min_u32 s10, s10, 40000
                s_add_u32 s10, s10, 20000
                L_encl:
                s_memrealtime s[78:79]
                s_waitcnt lgkmcnt(0)
                s_sub_u32 s11, s78, s80
                s_cmp_lt_u32 s11, s10
                s_cbranch_scc1 L_encl""")
        self("L_exit:\ns_endpgm")

    def build(self):
        head = open(f"cdna_kernels/{NAME}.s.ref").read().split("\n") if self.o["head"] else []
        out = [ln for ln in head if ln.startswith(";") and "@launch" not in ln][:14]
        out.append(f"; @launch grid=(256,1,1) block=(512,1,1) lds={LDS_BYTES}")
        out.append(DOC.strip("\n"))
        out += ['.amdgcn_target "amdgcn-amd-amdhsa--gfx950"', ".text", f".globl {NAME}_kernel", ".p2align 8",
                f".type {NAME}_kernel,@function", f"{NAME}_kernel:"]
        self.entry()
        self.streamer()
        self.helper()
        self.finish()
        out += self.L
        out += [".p2align 8", ".type L_table,@object", "L_table:"]
        T = row_table()
        for sig in range(2):
            for w in range(4):
                for g in range(8):
                    out.append("  .long " + ", ".join(str(T[sig][w][g][t] * 384) for t in range(8)))
        out.append(".size L_table, 2048")
        out += ['.section .rodata,"a"', ".p2align 6", f".amdhsa_kernel {NAME}_kernel",
                "  .amdhsa_next_free_vgpr 256", "  .amdhsa_next_free_sgpr 102", "  .amdhsa_accum_offset 256",
                "  .amdhsa_group_segment_fixed_size 0", "  .amdhsa_kernarg_size 88", "  .amdhsa_user_sgpr_count 2",
                "  .amdhsa_user_sgpr_kernarg_segment_ptr 1", "  .amdhsa_system_sgpr_workgroup_id_x 1",
                ".end_amdhsa_kernel"]
        return "\n".join(out) + "\n"


DOC = """
"""

DEFAULTS = dict(stamps=0, head=1, gap=40, numa="near", scst="sc1 nt", scld="sc1 nt", qst="sc1", asleep=2, qsleep=8,
                tsleep=2, psleep=0, fsleep=24, ntry=4, nsleep=2, enc="", series=0, ctl=2, gain=10000, gains=10000,
                cmax=15, bias=0, tdepth=8, hsplit=0, ackfirst=0, oit=16, odelay=0, ost="sc1", old="sc1", agn=2, qdelay=0, sit=10, latepub=2, pdelay=0, osleep=4, cmaxs=15, pmin=0, ostart=1)

if __name__ == "__main__":
    opt = dict(DEFAULTS)
    for kv in sys.argv[2:]:
        k, v = kv.split("=")
        assert k in opt, k
        opt[k] = int(v) if isinstance(DEFAULTS[k], int) else v.replace("+", " ")
    open(sys.argv[1], "w").write(Gen(opt).build())
```

```python
import struct
import sys

NAME = "parallel_sum__mha_block_cached__dense_activation_silu__decode"
KV_BYTES = 4 * 32 * 8192 * 192 * 2
REGION = 3 << 20
WIN = 196608

QP, YP, FL, VR, ST, CT, SC, OP, WS_END = (
    0x0, 0x140000, 0x1E0000, 0x1B8000, 0x1C0000, 0x1D0000, 0x200000, 0x400000, 0x500000)
STAMPS = 0x1000000
L_S, L_P, L_ORED, L_OBUF, L_Q, L_C, L_SER, L_WT = 0x0, 0x2000, 0x4000, 0xA000, 0xA600, 0xAC00, 0xAE00, 0xB000
C_NONCE, C_WRDY, C_VOTE, C_KSEG, C_PRDY, C_MAXC, C_HS, C_SC3 = (
    L_C + 0, L_C + 4, L_C + 8, L_C + 16, L_C + 20, L_C + 24, L_C + 28, L_C + 32)
C_CTL, C_QRDY, C_ICNT, C_OCNT, C_MAX, C_MARK, C_T = L_C + 40, L_C + 48, L_C + 52, L_C + 64, L_C + 80, L_C + 112, L_C + 128
C_FCNT, C_SCNT, C_ISS, C_SC, L_STAT = L_C + 56, L_C + 60, L_C + 120, L_C + 192, 0xAD00
TROW = 1088
LDS_BYTES = 0xB000 + 48 * TROW
BATCH = 32 * REGION


def f32(x):
    return "0x%08x" % struct.unpack("<I", struct.pack("<f", x))[0]


def block_rows(b):
    t, r = divmod(b, 3)
    lo, hi = ((0, 21), (21, 43), (43, 64))[r]
    return list(range(64 * t + lo, 64 * t + hi))


def row_table():
    T = []
    for sig in range(2):
        lo = sum((block_rows(sig + o) for o in (0, 2, 8, 10, 16, 18)), [])
        up = sum((block_rows(sig + o + 4) for o in (0, 2, 8, 10, 16, 18)), [])
        T.append([[[(lo if g < 4 else up)[4 * (8 * w + t) + (g & 3)] for t in range(8)]
                   for g in range(8)] for w in range(4)])
    return T


class Gen:
    def __init__(self, opt):
        self.o = opt
        self.L = []
        self.nlab = 0
        self.in_helper = False

    def __call__(self, text):
        for line in text.strip("\n").split("\n"):
            line = line.strip()
            if line:
                self.L.append(line if line.endswith(":") else "  " + line)

    def lab(self, base):
        self.nlab += 1
        return f"L_{base}{self.nlab}"

    def stamp(self, idx, mode=1):
        if self.o["stamps"] == mode or (self.o["stamps"] and not self.in_helper):
            self(f"s_memrealtime s[78:79]\ns_waitcnt lgkmcnt(0)\ns_mov_b32 s{80 + idx}, s78")

    def spin_lds(self, off, target, sleep=1, wide=False, addr="v1"):
        lp, dn = self.lab("sp"), self.lab("sd")
        self("s_mov_b32 s12, 0x40000")
        self(f"{lp}:")
        if wide:
            self(f"ds_read_b64 v[6:7], {addr} offset:{off}")
        else:
            self(f"ds_read_b32 v6, {addr} offset:{off}")
        self("s_waitcnt lgkmcnt(0)\nv_readfirstlane_b32 s10, v6")
        if wide:
            self("v_readfirstlane_b32 s11, v7")
        self(f"""
            s_cmp_ge_u32 s10, {target}
            s_cbranch_scc1 {dn}
            s_sleep {sleep}
            s_sub_u32 s12, s12, 1
            s_cbranch_scc0 {lp}
            s_branch L_end
            {dn}:""")

    def lds_inc(self, off, ret=False, addr="v1"):
        self("s_mov_b64 exec, 1\nv_mov_b32 v5, 1")
        if ret:
            self(f"ds_add_rtn_u32 v6, {addr}, v5 offset:{off}\ns_waitcnt lgkmcnt(0)\nv_readfirstlane_b32 s10, v6")
        else:
            self(f"ds_add_u32 {addr}, v5 offset:{off}")
        self("s_mov_b64 exec, -1")

    def tags(self, t):
        self(f"""
            s_mul_i32 s10, s92, 0x9e3779b1
            s_mul_hi_u32 s11, s92, 0x85ebca6b
            s_mul_i32 s12, s92, 0xc2b2ae35
            s_xor_b32 s11, s11, s12
            v_mov_b32 v{t}, s10
            v_mov_b32 v{t+1}, s11
            v_and_b32 v{t+2}, 1, v0
            v_cndmask_b32 v{t}, v{t}, v{t+1}, s[64:65]
            v_lshlrev_b32 v{t+2}, 4, v{t+2}
            v_lshrrev_b32 v{t}, v{t+2}, v{t}
            v_lshrrev_b32 v{t+1}, 4, v{t}
            v_lshrrev_b32 v{t+2}, 8, v{t}
            v_lshrrev_b32 v{t+3}, 12, v{t}""")

    def tag_data(self, r, t):
        for e in range(4):
            self(f"v_bfi_b32 v{r + e}, 15, v{t + e}, v{r + e}")

    def poll(self, loads, sleep, t=236, half=(), hook=None):
        lp, dn = self.lab("pl"), self.lab("pd")
        n = len(loads)
        self("s_mov_b32 s12, 0x4000")
        self(f"{lp}:")
        for i, (r, ins) in enumerate(loads):
            if i in half:
                self(f"s_mov_b32 exec_hi, 0\n{ins}\ns_mov_b32 exec_hi, -1")
            else:
                self(ins)
        if hook:
            hook()
        for i, (r, ins) in enumerate(loads):
            self(f"s_waitcnt vmcnt({n - 1 - i})")
            if i in half:
                self("s_mov_b32 exec_hi, 0")
            for e in range(4):
                if i == 0 and e == 0:
                    self(f"v_xor_b32 v5, v{r}, v{t}")
                else:
                    self(f"v_bitop3_b32 v5, v5, v{r + e}, v{t + e} bitop3:0xf6")
            for e in range(4):
                self(f"v_and_b32 v{r + e}, -16, v{r + e}")
            if i in half:
                self("s_mov_b32 exec_hi, -1")
        self(f"""
            v_and_b32 v5, 15, v5
            v_cmp_ne_u32 vcc, 0, v5
            s_cmp_eq_u64 vcc, 0
            s_cbranch_scc1 {dn}""")
        if sleep:
            self(f"s_sleep {sleep}")
        self(f"""
            s_sub_u32 s12, s12, 1
            s_cbranch_scc0 {lp}
            s_branch L_end
            {dn}:""")

    def rows4_reduce(self, r):
        self(f"""
            s_nop 1
            v_permlane16_swap_b32 v{r}, v{r+1}
            v_permlane16_swap_b32 v{r+2}, v{r+3}
            s_nop 1
            v_add_f32 v{r}, v{r}, v{r+1}
            v_add_f32 v{r+2}, v{r+2}, v{r+3}
            s_nop 1
            v_permlane32_swap_b32 v{r}, v{r+2}
            s_nop 1
            v_add_f32 v{r}, v{r}, v{r+2}""")

    def row16_allreduce(self, op, r):
        for ctl in ("quad_perm:[1,0,3,2]", "quad_perm:[2,3,0,1]", "row_half_mirror", "row_mirror"):
            self(f"s_nop 1\n{op}_dpp v{r}, v{r}, v{r} {ctl} row_mask:0xf bank_mask:0xf")

    def wave_allreduce(self, op, r, t):
        self.row16_allreduce(op, r)
        for sw in ("v_permlane16_swap_b32", "v_permlane32_swap_b32"):
            self(f"v_mov_b32 v{t}, v{r}\ns_nop 1\n{sw} v{r}, v{t}\ns_nop 1\n{op} v{r}, v{r}, v{t}")

    def bf16_round(self, r):
        self(f"v_cvt_pk_bf16_f32 v{r}, v{r}, v{r}\nv_lshlrev_b32 v{r}, 16, v{r}")

    def srd(self, d, p, size):
        self(f"s_mov_b32 s{d}, s{p}\ns_and_b32 s{d+1}, s{p+1}, 0xffff\ns_mov_b32 s{d+2}, {size}\ns_mov_b32 s{d+3}, 0x20000")

    def entry(self):
        o = self.o
        PF = ""
        if o["pf"]:
            PF = f"""
                s_cmp_ge_u32 s2, 16
                s_cbranch_scc1 L_nopf
                s_getpc_b64 s[14:15]
                L_pfpc:
                v_lshlrev_b32 v3, 6, v0
                v_min_u32 v3, L_table+2044-L_pfpc, v3
                global_load_dword v254, v3, s[14:15]
                L_nopf:"""
        self(f"""
            s_cmp_ge_u32 s2, 256
            s_cbranch_scc1 L_exit
            s_load_dwordx16 s[16:31], s[0:1], 0
            {PF}
            s_load_dwordx4 s[32:35], s[0:1], 64
            s_load_dwordx2 s[36:37], s[0:1], 80
            s_memrealtime s[94:95]
            v_lshrrev_b32 v2, 6, v0
            v_mov_b32 v1, 0
            v_readfirstlane_b32 s3, v2
            v_and_b32 v2, 63, v0
            v_lshlrev_b32 v5, 2, v2
            ds_write_b32 v5, v1 offset:{L_C}
            s_getreg_b32 s9, hwreg(HW_REG_XCC_ID)
            s_bfe_u32 s9, s9, 0x10002
            s_bfe_u32 s4, s2, 0x10002
            s_bfe_u32 s5, s2, 0x20003
            s_and_b32 s11, s2, 3
            s_lshr_b32 s10, s2, 5
            s_lshl_b32 s6, s11, 3
            s_add_u32 s6, s6, s10
            s_lshl_b32 s8, s5, 1
            s_add_u32 s8, s8, s4""")
        self("""
            s_lshl_b32 s38, s10, 2
            s_add_u32 s38, s38, s11
            s_sub_u32 s11, s8, 5
            s_lshl_b32 s11, s11, 5
            s_add_u32 s38, s38, s11""")
        if o["stamps"]:
            for i in range(1, 12):
                self(f"s_mov_b32 s{80 + i}, 0")
        self("s_cmp_ge_u32 s3, 4\ns_cbranch_scc1 L_helper")

    def roles(self):
        self("""
            s_mov_b32 s64, 0xcccccccc
            s_mov_b32 s65, 0xcccccccc
            s_mov_b32 s66, 0xaaaaaaaa
            s_mov_b32 s67, 0xaaaaaaaa
            s_mul_i32 s11, s38, 52
            s_lshr_b32 s11, s11, 8
            s_mul_i32 s39, s11, 5
            s_sub_u32 s39, s38, s39
            s_add_u32 s11, s11, 32
            s_sub_u32 s77, s38, 56
            s_cmp_ge_u32 s38, 56
            s_cselect_b32 s76, 3, 2
            s_cmp_lt_u32 s38, 40
            s_cselect_b32 s76, 1, s76
            s_cselect_b32 s77, s11, s77
            s_cmp_lt_u32 s8, 5
            s_cselect_b32 s76, 0, s76
            s_cselect_b32 s77, s6, s77
            s_cselect_b32 s39, s8, s39""")

    def args_ready(self):
        self("s_waitcnt lgkmcnt(0)")
        if self.o["stamps"]:
            self("s_mov_b32 s80, s94")

    def vote_load(self):
        self(f"""
            s_lshl_b32 s14, s6, 2
            s_add_u32 s14, s14, s5
            s_lshl_b32 s14, s14, 3
            s_add_u32 s10, s14, 4
            s_mul_i32 s10, s10, 3
            s_lshr_b32 s10, s10, 10
            s_mul_i32 s10, s10, 10
            s_add_u32 s10, s10, 16
            s_andn2_b32 s11, s2, 4
            v_bfe_u32 v9, v0, 3, 3
            v_and_b32 v10, 7, v0
            v_mad_u32_u24 v9, v9, 30, v10
            v_cmp_eq_u32 vcc, 7, v10
            v_add_u32 v9, s10, v9
            v_mov_b32 v10, s11
            v_cndmask_b32 v9, v9, v10, vcc
            v_lshlrev_b32 v9, 7, v9
            s_mov_b32 s15, {VR}
            buffer_load_dword v8, v9, s[44:47], s15 offen sc1""")

    def vote_eval(self):
        o = self.o
        self.spin_lds(C_NONCE, 1, sleep=0)
        self(f"""
            s_mov_b32 s92, s10
            s_mov_b32 s12, 0x4000
            L_vchk:
            v_xor_b32 v10, s92, v8
            v_cmp_lt_u32 vcc, 3, v10
            s_cmp_eq_u64 vcc, 0
            s_cbranch_scc1 L_vok
            s_sleep {o["asleep"]}
            buffer_load_dword v8, v9, s[44:47], s15 offen sc1
            s_waitcnt vmcnt(0)
            s_sub_u32 s12, s12, 1
            s_cbranch_scc0 L_vchk
            s_branch L_end
            L_vok:
            v_readlane_b32 s11, v8, 7
            v_and_b32 v8, 1, v8
            v_cmp_eq_u32 vcc, 1, v8
            v_and_b32 v10, 3, v0
            s_add_u32 s14, s14, 1
            v_lshl_add_u32 v10, v10, 1, s14
            v_mul_u32_u24 v10, 3, v10
            v_lshrrev_b32 v10, 6, v10
            s_lshr_b32 s11, s11, 1
            s_xor_b32 s11, s11, s4
            v_bfe_u32 v11, v0, 2, 3
            v_lshlrev_b32 v11, 3, v11
            v_lshrrev_b64 v[8:9], v11, vcc
            v_and_b32 v8, 0x7f, v8
            v_bcnt_u32_b32 v8, v8, 0
            v_lshrrev_b32 v8, 2, v8
            v_xor_b32 v8, v8, v10
            v_xor_b32 v8, s11, v8
            v_and_b32 v8, 1, v8
            v_cmp_eq_u32 vcc, 1, v8
            s_mov_b32 s59, vcc_lo""")
        if o["numa"] == "far":
            self("s_not_b32 s59, s59")
        elif o["numa"] == "mix":
            self("s_xor_b32 s10, s4, s6\ns_bitcmp1_b32 s10, 0\ns_cselect_b32 s59, -1, 0\ns_xor_b32 s59, s59, 0x33335555")
        self(f"""
            v_mov_b32 v6, 1
            v_mov_b32 v7, s59
            ds_write_b64 v1, v[6:7] offset:{C_VOTE}""")

    def series(self):
        if self.o["series"]:
            self(f"""
                s_memrealtime s[78:79]
                s_lshl_b32 s10, s3, 5
                s_add_u32 s10, s10, s58
                s_lshl_b32 s10, s10, 2
                v_mov_b32 v6, s10
                s_waitcnt lgkmcnt(0)
                v_mov_b32 v7, s78
                ds_write_b32 v6, v7 offset:{L_SER}""")

    def advance_window(self, may_jump):
        self.series()
        self(f"s_add_u32 s58, s58, 1\ns_add_u32 s57, s57, {WIN}")
        if may_jump:
            self(f"""
                s_bitcmp1_b32 s58, 1
                s_cselect_b32 s10, 0, {BATCH - 4 * WIN}
                s_add_u32 s57, s57, s10
                s_cmp_eq_u32 s58, 16
                s_cselect_b32 s57, s56, s57
                s_cselect_b32 s40, s20, s40
                s_cselect_b32 s41, s63, s41""")
        self("s_bitcmp1_b32 s59, s58\ns_cselect_b64 s[60:61], -1, 0")

    def issue(self, t, slot, wait):
        vo = 2 + (slot & 1)
        self(f"v_cndmask_b32 v{vo}, v{48 + t}, v{56 + t}, s[60:61]")
        if wait == "ctl":
            go = self.lab("go")
            self(f"""
                s_waitcnt vmcnt(6)
                s_add_u32 s70, s70, s68
                s_cbranch_scc1 {go}
                s_waitcnt vmcnt(3)
                s_add_u32 s71, s71, s69
                s_cbranch_scc0 {go}
                s_waitcnt vmcnt(0)
                {go}:""")
        elif wait is not None:
            self(f"s_waitcnt vmcnt({wait})")
        for j in range(3):
            r = 64 + slot * 12 + j * 4
            self(f"buffer_load_dwordx4 v[{r}:{r+3}], v{vo}, s[40:43], s57 offen offset:{128 * j} nt")

    def consume_k(self, slot):
        t = slot & 7
        r = 64 + slot * 12
        for i in range(12):
            c = "0" if i == 0 else f"v{20 + t}"
            self(f"v_dot2_f32_bf16 v{20 + t}, v{r + i}, v{8 + i}, {c}")
        if t == 7:
            self("s_nop 2")
            for k in range(4):
                self(f"v_add_f32_dpp v{20 + k}, v{20 + k}, v{20 + k} row_shl:4 row_mask:0xf bank_mask:0x5")
            for k in range(4):
                self(f"v_add_f32_dpp v{20 + k}, v{24 + k}, v{24 + k} row_shr:4 row_mask:0xf bank_mask:0xa")
            for k in range(4):
                self(f"v_add_f32_dpp v{24 + k}, v{20 + k}, v{20 + k} quad_perm:[2,3,0,1] row_mask:0xf bank_mask:0xf")
            self("""
                v_cndmask_b32 v20, v24, v26, s[64:65]
                v_cndmask_b32 v21, v25, v27, s[64:65]
                s_nop 0
                v_add_f32_dpp v24, v20, v20 quad_perm:[1,0,3,2] row_mask:0xf bank_mask:0xf
                v_add_f32_dpp v25, v21, v21 quad_perm:[1,0,3,2] row_mask:0xf bank_mask:0xf
                v_cndmask_b32 v28, v24, v25, s[66:67]""")
            self.bf16_round(28)
            self(f"""
                v_mul_f32 v28, {f32(192 ** -0.5)}, v28
                v_cvt_pk_bf16_f32 v28, v28, v28
                ds_write_b16 v4, v28 offset:{L_S + (slot >> 3) * 512}""")

    def consume_v(self, slot):
        t = slot & 7
        r = 64 + slot * 12
        a = 20 + (slot & 1) * 4
        if t == 0:
            self("s_waitcnt lgkmcnt(0)")
        for w in range(4):
            self(f"v_perm_b32 v{a + w}, v{28 + (t >> 1)}, v{28 + (t >> 1)}, v{32 + (t & 1) * 4 + w}")
        self("s_nop 1")
        for j in range(3):
            self(f"v_mfma_f32_16x16x32_bf16 v[{8 + 4*j}:{11 + 4*j}], v[{a}:{a+3}], v[{r + 4*j}:{r + 4*j + 3}], v[{8 + 4*j}:{11 + 4*j}]")

    def flush_acc(self):
        self(f"""
            s_mov_b32 exec_lo, 0x00ff00ff
            s_mov_b32 exec_hi, 0xff00ff00
            s_nop 5
            ds_write_b128 v41, v[8:11] offset:{L_ORED}
            ds_write_b128 v41, v[12:15] offset:{L_ORED + 256}
            ds_write_b128 v41, v[16:19] offset:{L_ORED + 512}""")

    def publish_o(self):
        r = 64
        self("L_pub:\ns_mov_b32 exec_hi, 0xffff")
        for k in range(8):
            self(f"ds_read_b128 v[{r + 4*k}:{r + 3 + 4*k}], v40 offset:{L_ORED + 768 * k}")
        for k in range(4):
            self(f"s_waitcnt lgkmcnt({6 - 2*k})")
            for e in range(4):
                self(f"v_add_f32 v{r + 8*k + e}, v{r + 8*k + e}, v{r + 4 + 8*k + e}")
        for e in range(4):
            self(f"v_add_f32 v{r + e}, v{r + e}, v{r + 8 + e}\nv_add_f32 v{r + 16 + e}, v{r + 16 + e}, v{r + 24 + e}")
        for e in range(4):
            self(f"v_add_f32 v{r + e}, v{r + e}, v{r + 16 + e}")
        for e in range(4):
            self(f"v_mul_f32 v{r + e}, s73, v{r + e}")
        self.tag_data(r, 44)
        self(f"""
            buffer_store_dwordx4 v[{r}:{r+3}], v42, s[44:47], s13 offen {self.o["tst"]}
            s_mov_b64 exec, -1
            s_cmp_ge_u32 s3, 4
            s_cbranch_scc1 L_pubdone""")

    def streamer(self):
        o = self.o
        W = "ctl" if o["ctl"] else 3
        self(f"""
            s_getpc_b64 s[14:15]
            L_pc:
            s_add_u32 s14, s14, L_table-L_pc
            s_addc_u32 s15, s15, 0
            v_lshrrev_b32 v8, 3, v0
            v_lshlrev_b32 v8, 5, v8
            s_mul_i32 s56, s6, {REGION}
            s_mul_i32 s10, s5, {4 * WIN}
            s_add_u32 s56, s56, s10
            s_max_u32 s12, s2, 16
            s_sub_u32 s12, s12, 16
            s_mul_i32 s12, s12, 205
            s_lshr_b32 s12, s12, 11
            s_cmp_ge_u32 s12, 12
            s_cselect_b32 s13, 12, 0
            s_sub_u32 s10, s12, s13
            s_lshl_b32 s10, s10, 3
            s_and_b32 s11, s2, 7
            s_add_u32 s10, s10, s11
            s_lshl_b32 s10, s10, 22
            s_and_b32 s11, s2, 63
            s_lshl_b32 s11, s11, 7
            s_add_u32 s10, s10, s11
            s_add_u32 s10, s10, 0x80000
            s_add_u32 s11, s10, 0x2000
            s_mov_b32 s54, {KV_BYTES}
            s_mov_b32 s55, 0x20000
            s_setprio 2""")
        self.args_ready()
        TIME = "s_waitcnt vmcnt({})\ns_memtime s[10:11]\ns_waitcnt vmcnt({})\ns_memtime s[12:13]"
        self(f"""
            s_cmp_eq_u32 s13, 0
            s_cselect_b32 s52, s18, s20
            s_cselect_b32 s53, s19, s21
            s_and_b32 s53, s53, 0xffff
            {"s_barrier" if o["bar2"] else ""}
            s_cmp_lg_u32 s3, 0
            s_cbranch_scc1 L_noprobe
            s_mov_b64 exec, 1
            buffer_load_dword v6, v1, s[52:55], s10 offen nt
            buffer_load_dword v7, v1, s[52:55], s11 offen nt
            s_mov_b64 exec, -1
            {"" if o["bar2"] else TIME.format(1, 0)}
            L_noprobe:
            s_barrier""")
        for i in range(4):
            self(f"global_load_dwordx4 v[{48 + 4*i}:{51 + 4*i}], v8, s[14:15] offset:{(i >> 1) * 1024 + (i & 1) * 16}")
        self.srd(44, 36, WS_END)
        self("s_cmp_lg_u32 s3, 0\ns_cbranch_scc1 L_pre")
        self(f"""
            {TIME.format(5, 4) if o["bar2"] else ""}
            s_waitcnt lgkmcnt(0)
            s_sub_u32 s10, s12, s10
            s_cmp_le_u32 s10, {o["gap"]}
            s_cselect_b32 s62, 1, 0
            s_xor_b32 s62, s62, s9""")
        for k in range(o["ntry"]):
            self(f"""
                s_load_dword s92, s[34:35], {64 * k}
                s_waitcnt lgkmcnt(0)
                s_cmp_lg_u32 s92, 0
                s_cbranch_scc1 L_ndone
                s_sleep {o["nsleep"]}""")
        self(f"""
            s_mov_b32 s12, 0x4000
            L_npoll:
            global_load_dword v5, v1, s[34:35] sc1
            s_waitcnt vmcnt(0)
            v_readfirstlane_b32 s92, v5
            s_cmp_lg_u32 s92, 0
            s_cbranch_scc1 L_ndone
            s_sleep 4
            s_sub_u32 s12, s12, 1
            s_cbranch_scc0 L_npoll
            s_branch L_end
            L_ndone:
            s_lshl_b32 s11, s9, 1
            s_or_b32 s10, s62, s11
            s_and_b32 s11, s92, -4
            s_or_b32 s10, s10, s11
            s_lshl_b32 s11, s2, 7
            s_add_u32 s11, s11, {VR}
            v_mov_b32 v5, s10
            v_mov_b32 v6, s92
            v_lshlrev_b32 v7, 2, v2
            s_mov_b32 exec_hi, 0
            buffer_store_dword v5, v7, s[44:47], s11 offen sc1
            ds_write_b32 v1, v6 offset:{C_NONCE}
            s_mov_b64 exec, -1""")
        self.stamp(1)
        self("""
            s_waitcnt vmcnt(1)
            s_branch L_tabok
            L_pre:
            s_waitcnt vmcnt(0)
            L_tabok:
            v_mov_b32 v9, 0
            v_and_b32 v40, 7, v0
            v_lshlrev_b32 v40, 4, v40""")
        for i in range(16):
            self(f"v_add_u32 v{48 + i}, v{48 + i}, v40")
        self.srd(40, 18, KV_BYTES)
        self("""
            s_and_b32 s63, s21, 0xffff
            v_lshlrev_b32 v4, 1, v0
            s_mov_b32 s57, s56
            s_mov_b32 s58, 0
            s_mov_b32 s68, 0
            s_mov_b32 s69, 0
            s_lshl_b32 s70, s3, 30
            s_lshl_b32 s71, s3, 30
            s_mov_b32 s72, 0
            s_mov_b32 s93, 1""")
        self("s_lshr_b32 s10, s3, 1\ns_cmp_lg_u32 s10, s4\ns_cselect_b64 s[60:61], -1, 0")

        def selectors(par):
            lo_sel, hi_sel = ((0x0c0c0100, 0x01000c0c), (0x0c0c0302, 0x03020c0c))[par]
            self(f"v_and_b32 v5, 7, v0\nv_mov_b32 v28, 0x0c0c0c0c\nv_mov_b32 v29, 0x{lo_sel:08x}\nv_mov_b32 v30, 0x{hi_sel:08x}")
            for w in range(4):
                r = 32 + par * 4 + w
                self(f"""
                    v_cmp_eq_u32 vcc, {2*w}, v5
                    v_cmp_eq_u32 s[10:11], {2*w + 1}, v5
                    s_nop 0
                    v_cndmask_b32 v{r}, v28, v29, vcc
                    v_cndmask_b32 v{r}, v{r}, v30, s[10:11]""")

        def addresses():
            self(f"""
                v_lshlrev_b32 v41, 1, v40
                v_bfe_u32 v6, v0, 4, 1
                v_lshl_add_u32 v41, v6, 4, v41
                v_lshrrev_b32 v6, 5, v0
                v_mul_u32_u24 v6, 768, v6
                v_add_u32 v41, v41, v6
                v_and_b32 v42, 63, v0
                v_lshlrev_b32 v42, 4, v42
                s_lshl_b32 s13, s6, 5
                s_add_u32 s13, s13, s8
                s_lshl_b32 s13, s13, 10
                s_add_u32 s13, s13, {OP + 3 * 8192}""")

        def nonce_tags():
            self(f"ds_read_b32 v6, v1 offset:{C_NONCE}\ns_waitcnt lgkmcnt(0)\nv_readfirstlane_b32 s92, v6")
            self.tags(44)

        def only(wave, code):
            sk = self.lab("on")
            self(f"s_cmp_lg_u32 s3, {wave}\ns_cbranch_scc1 {sk}")
            code()
            self(f"{sk}:")

        idle = [self.roles, lambda: selectors(0), lambda: selectors(1), addresses, nonce_tags]
        assert o["vat"] + 2 < o["agn"] <= 8
        for n in range(15):
            if n == o["agn"]:
                self.spin_lds(C_VOTE, 1, sleep=0, wide=True)
                self("s_mov_b32 s59, s11\ns_bitcmp1_b32 s59, 0\ns_cselect_b64 s[60:61], -1, 0")
                self.stamp(2)
            if n == 8:
                self.advance_window(False)
            self.issue(n & 7, n, None if n < 2 else o["w0"] if n < o["agn"] else 3)
            if n == o["vat"]:
                only(1, self.vote_load)
            if n == o["vat"] + 2:
                only(1, lambda: (self("s_waitcnt vmcnt(6)"), self.vote_eval()))
            if n == o["qat"]:
                only(2, lambda: self.lds_inc(C_MARK))
            if 8 <= n < 8 + len(idle):
                idle[n - 8]()
        self.stamp(3)
        self("s_mov_b32 s62, 0")

        def progress():
            sk = self.lab("pg")
            self(f"""
                s_cmp_lg_u32 s3, 0
                s_cbranch_scc1 {sk}
                s_memrealtime s[10:11]
                s_add_u32 s72, s72, 4
                v_mov_b32 v6, s72
                s_waitcnt lgkmcnt(0)
                s_or_b32 s10, s10, 1
                v_mov_b32 v7, s10
                ds_write_b32 v6, v7 offset:{C_T}
                {sk}:
                v_add_u32 v4, 1024, v4
                s_add_u32 s62, s62, 1""")

        def body(consume, vphase=False):
            for i in range(16):
                if vphase and i in (0, 8):
                    self(f"ds_read_b128 v[28:31], v4 offset:{L_P + (i >> 3) * 512}")
                if vphase and i > 0:
                    self(f"s_cbranch_vccnz L_dr{i}" if (i >= 13 or i == 1) else f"s_cbranch_vccnz L_cons{i}")
                if o["ctl"] and i % 4 == 2:
                    self(f"ds_read_b64 v[6:7], v1 offset:{C_CTL}\ns_memrealtime s[74:75]")
                if o["ctl"] and i % 4 == 3:
                    self(f"""
                        s_waitcnt lgkmcnt(0)
                        v_readfirstlane_b32 s68, v6
                        v_readfirstlane_b32 s69, v7
                        s_lshl_b32 s10, s74, 5
                        s_mul_i32 s11, s69, s93
                        s_add_u32 s93, s93, 2
                        s_sub_u32 s10, s10, s68
                        s_sub_u32 s10, s10, s11
                        s_cmp_eq_u32 s69, 0
                        s_cselect_b32 s10, 0, s10""")
                    self.levels("s68", "s69")
                if vphase and i == o["mat"]:
                    self("s_lshl_b32 s10, s3, 4\ns_or_b32 s10, s10, s62\ns_cmp_lg_u32 s10, 0x26\ns_cbranch_scc1 L_nomark")
                    self.lds_inc(C_MARK)
                    self("L_nomark:")
                if i in (1, 9):
                    self.advance_window(i == 1)
                self.issue((i - 1) & 7, (i - 1) & 15, W)
                if vphase:
                    self(f"L_cons{i}:")
                consume(i)

        self.spin_lds(C_QRDY, 3)
        self("L_kbatch:")
        for j in range(3):
            self(f"ds_read_b128 v[{8 + 4*j}:{11 + 4*j}], v40 offset:{L_Q + 128 * j}")
        self("v_add_u32 v40, 384, v40\ns_waitcnt lgkmcnt(0)")
        if o["stamps"]:
            self("s_cmp_lg_u32 s62, 0\ns_cbranch_scc1 L_kloop")
            self.stamp(4)
        self("L_kloop:")
        body(self.consume_k)
        progress()
        self("""
            s_bitcmp1_b32 s62, 0
            s_cbranch_scc1 L_kloop
            s_bitcmp1_b32 s62, 1
            s_cbranch_scc1 L_kbatch""")
        self.lds_inc(C_KSEG)
        self("s_cmp_lt_u32 s62, 8\ns_cbranch_scc1 L_kbatch")
        self.stamp(5)
        self(f"""
            v_lshrrev_b32 v4, 3, v0
            v_lshlrev_b32 v4, 4, v4
            v_add_u32 v40, {3 * 6144}, v42
            s_mov_b32 s62, 0
            s_mov_b32 s73, 4
            s_mov_b64 vcc, 0
            L_vseg:""")
        self.spin_lds(C_PRDY, "s73")
        self("s_mov_b32 s73, 8")
        self("L_vbatch:")
        for i in range(12):
            self(f"v_mov_b32 v{8 + i}, 0")
        self("L_vloop:")
        body(self.consume_v, vphase=True)
        self("s_cbranch_vccnz L_vflush")
        progress()
        self("""
            s_cmp_eq_u32 s62, 7
            s_cselect_b64 vcc, -1, 0
            s_bitcmp1_b32 s62, 0
            s_cbranch_scc1 L_vloop
            s_sub_u32 s62, s62, 1
            L_vflush:""")
        self.flush_acc()
        self("s_lshl_b32 s10, s62, 1\nv_mov_b32 v7, s10")
        self.lds_inc(C_OCNT - 2, ret=True, addr="v7")
        self("""
            s_cbranch_vccnz L_vlast
            s_add_u32 s62, s62, 1
            v_add_u32 v41, 6144, v41
            s_cmp_eq_u32 s62, 4
            s_cbranch_scc1 L_vseg
            s_branch L_vbatch""")
        self("L_dr1:")
        self.lds_inc(C_ISS)
        self.spin_lds(C_SC + 24, 1, wide=True)
        self("s_mov_b32 s73, s11\ns_branch L_cons1")
        for i in (13, 14, 15):
            self(f"L_dr{i}:\ns_waitcnt vmcnt({3 * (15 - i)})\ns_branch L_cons{i}")
        self("L_vlast:")
        self.stamp(7)
        self("s_cmp_lg_u32 s10, 3\ns_cbranch_scc1 L_nolast")
        self.publish_o()
        self.stamp(8)
        self("L_nolast:")
        if o["series"]:
            self(f"""
                s_lshl_b32 s10, s3, 7
                v_mov_b32 v6, s10
                v_mov_b32 v7, s87
                ds_write_b32 v6, v7 offset:{L_SER + 124}
                v_and_b32 v6, 31, v0
                v_lshlrev_b32 v6, 2, v6
                v_add_u32 v6, s10, v6
                ds_read_b32 v7, v6 offset:{L_SER}
                s_lshl_b32 s10, s2, 9
                s_add_u32 s10, s10, {STAMPS + 0x100000}
                v_add_u32 v6, s10, v6
                s_waitcnt lgkmcnt(0)
                global_store_dword v6, v7, s[36:37]""")
        self("s_branch L_end")

    def item_loads(self, part):
        if part < 2:
            for rho in range(8):
                r = 48 + (part * 8 + rho) * 2
                self(f"buffer_load_dwordx2 v[{r}:{r+1}], v44, s[40:43], s13 offen nt")
                self(f"s_add_u32 s13, s13, {'s71' if rho == 7 else 's70'}")
        else:
            for rho in range(4):
                r = 80 + rho * 2
                self(f"buffer_load_dwordx2 v[{r}:{r+1}], v45, s[40:43], s13 offen nt")
                if rho < 3:
                    self("s_add_u32 s13, s13, s70")

    def frag_norm(self):
        for i in range(10):
            self(f"v_lshlrev_b32 v{8 + 2*i}, 16, v{28 + i}\nv_and_b32 v{9 + 2*i}, 0xffff0000, v{28 + i}")
        self("s_waitcnt lgkmcnt(0)")
        for i in range(20):
            self(f"v_sub_f32 v{8 + i}, v{8 + i}, v40")
        for i in range(10):
            self(f"v_cvt_pk_bf16_f32 v{28 + i}, v{8 + 2*i}, v{9 + 2*i}")
        for i in range(10):
            self(f"v_lshlrev_b32 v{8 + 2*i}, 16, v{28 + i}\nv_and_b32 v{9 + 2*i}, 0xffff0000, v{28 + i}")
        for i in range(20):
            self(f"v_mul_f32 v{8 + i}, v{8 + i}, v41")
        for i in range(10):
            self(f"v_cvt_pk_bf16_f32 v{144 + i}, v{8 + 2*i}, v{9 + 2*i}")

    def item_compute(self):
        for s in range(3):
            self(f"s_waitcnt vmcnt({(12, 4, 0)[s]})")
            nm = 4 if s < 2 else 2
            for e in range(4):
                for m in range(nm):
                    lo = 48 + (s * 8 + 2 * m) * 2 + (e >> 1)
                    self(f"v_perm_b32 v{88 + s*16 + e*nm + m}, v{lo + 2}, v{lo}, s{68 + (e & 1)}")
            self("s_nop 1")
            for e in range(4):
                a = 88 + s * 16 + e * nm
                d = 128 + e * 4
                c = "0" if s == 0 else f"v[{d}:{d+3}]"
                if s < 2:
                    self(f"v_mfma_f32_16x16x32_bf16 v[{d}:{d+3}], v[{a}:{a+3}], v[{144 + 4*s}:{147 + 4*s}], {c}")
                else:
                    self(f"v_mfma_f32_16x16x16_bf16 v[{d}:{d+3}], v[{a}:{a+1}], v[152:153], {c}")
        self("s_nop 7")
        for r in range(4):
            self(f"v_cndmask_b32 v{128 + r}, v{128 + r}, v{132 + r}, s[66:67]")
            self(f"v_cndmask_b32 v{136 + r}, v{136 + r}, v{140 + r}, s[66:67]")
        for r in range(4):
            self(f"v_cndmask_b32 v{128 + r}, v{128 + r}, v{136 + r}, s[64:65]")
        self(f"ds_write_b128 v46, v[128:131] offset:{L_ORED}")

    def gather_tile(self, slot, sleep, silu, dst):
        self(f"""
            s_lshl_b32 s13, {slot}, 3
            s_add_u32 s13, s13, s72
            s_lshl_b32 s13, s13, 10""")
        self.poll([(8, "buffer_load_dwordx4 v[8:11], v229, s[44:47], s13 offen sc1"),
                   (12, "buffer_load_dwordx4 v[12:15], v229, s[44:47], s13 offen offset:3072 sc1")], sleep)
        for e in range(4):
            self(f"v_add_f32 v{8 + e}, v{8 + e}, v{12 + e}")
        if silu:
            for e in range(4):
                self.bf16_round(8 + e)
            for e in range(4):
                self(f"v_mul_f32 v{12 + e}, {f32(-1.4426950408889634)}, v{8 + e}")
            for e in range(4):
                self(f"v_exp_f32 v{12 + e}, v{12 + e}")
            for e in range(4):
                self(f"v_add_f32 v{12 + e}, 1.0, v{12 + e}")
            for e in range(4):
                self(f"v_rcp_f32 v{12 + e}, v{12 + e}")
            for e in range(4):
                self(f"v_mul_f32 v{8 + e}, v{8 + e}, v{12 + e}")
        self(f"""
            v_cvt_pk_bf16_f32 v8, v8, v9
            v_cvt_pk_bf16_f32 v10, v10, v11
            ds_write_b16 v233, v8 offset:{dst}
            ds_write_b16_d16_hi v233, v8 offset:{dst + 8}
            ds_write_b16 v233, v10 offset:{dst + 16}
            ds_write_b16_d16_hi v233, v10 offset:{dst + 24}""")

    def gather_o(self, batches, sleep, fl="sc1", hook=None):
        loads = []
        for n, b in enumerate(batches):
            for i in range(2):
                r = 8 + 8 * n + 4 * i
                self(f"s_add_u32 s{16 + 2*n + i}, s62, {8192 * b + 4096 * i}")
                loads.append((r, f"buffer_load_dwordx4 v[{r}:{r+3}], v47, s[44:47], s{16 + 2*n + i} offen {fl}"))
        self.poll(loads, sleep, hook=hook)
        for n, b in enumerate(batches):
            r = 8 + 8 * n
            for e in range(4):
                self(f"v_add_f32 v{r + e}, v{r + e}, v{r + 4 + e}")
            self.rows4_reduce(r)
            self(f"v_cvt_pk_bf16_f32 v{r}, v{r}, v{r}\nds_write_b16 v44, v{r} offset:{L_OBUF + 384 * b}")

    def tile_setup(self):
        self(f"""
            s_mov_b32 s42, {1536 * 1280}
            s_cmp_eq_u32 s76, 0
            s_cselect_b32 s40, s24, s30
            s_cselect_b32 s41, s25, s31
            s_cselect_b32 s42, {6144 * 1280}, s42
            s_and_b32 s41, s41, 0xffff
            s_mov_b32 s43, 0x20000
            s_and_b32 s70, s77, 31
            s_mul_i32 s70, s70, {192 * 1280}
            s_lshl_b32 s10, s39, 8
            s_add_u32 s70, s70, s10
            s_add_u32 s71, s70, {192 * 1280}
            s_mov_b32 m0, {L_WT}
            v_lshlrev_b32 v7, 1, v4
            v_xor_b32 v7, v7, v3
            v_mul_u32_u24 v232, 1280, v4
            v_lshl_add_u32 v232, v7, 4, v232
            v_bfe_u32 v234, v2, 1, 1
            v_lshl_add_u32 v234, s72, 2, v234
            v_bfe_u32 v235, v2, 2, 2
            v_lshlrev_b32 v7, 1, v235
            v_xor_b32 v234, v234, v7
            v_lshlrev_b32 v234, 4, v234
            v_lshl_add_u32 v234, v235, 8, v234
            v_and_b32 v235, 1, v2
            v_lshl_add_u32 v234, v235, 3, v234
            v_xor_b32 v235, 32, v234
            v_mul_u32_u24 v7, {2 * TROW}, v4
            v_add_u32 v7, {L_WT}, v7
            v_add_u32 v234, v234, v7
            v_add_u32 v235, v235, v7""")

    def tile_issue(self, limit, depth):
        lp = self.lab("tl")
        self(f"""
            {lp}:
            s_waitcnt vmcnt({depth - 1})
            buffer_load_dwordx4 v232, s[40:43], s70 offen nt lds
            s_add_u32 m0, m0, {TROW}
            s_add_u32 s70, s70, {4 * 1280}
            s_cmp_lt_u32 s70, {limit}
            s_cbranch_scc1 {lp}""")

    def fragments(self):
        for s in range(6):
            for e in range(2):
                for hf in range(2):
                    r = 180 + s * 8 + e * 4 + hf * 2
                    self(f"ds_read_b64_tr_b16 v[{r}:{r+1}], v{234 + e} offset:{(8 * s + hf) * TROW}")

    def project(self):
        self("s_waitcnt lgkmcnt(0)\ns_barrier")
        for s in range(6):
            self(f"ds_read_b128 v[{8 + 4*s}:{11 + 4*s}], v228 offset:{L_OBUF + 64 * s}")
        for s in range(6):
            self(f"s_waitcnt lgkmcnt({5 - s})")
            for e in range(2):
                b = 180 + s * 8 + e * 4
                d = 32 + e * 4
                c = "0" if s == 0 else f"v[{d}:{d+3}]"
                self(f"v_mfma_f32_16x16x32_bf16 v[{d}:{d+3}], v[{8 + 4*s}:{11 + 4*s}], v[{b}:{b+3}], {c}")
        self("s_mov_b32 vcc_lo, 0xffff0000\ns_mov_b32 vcc_hi, 0\ns_nop 6")
        for r in range(4):
            self(f"v_cndmask_b32 v{32 + r}, v{32 + r}, v{36 + r}, vcc")
        self.tag_data(32, 236)
        self(f"""
            s_mov_b32 exec_hi, 0
            buffer_store_dwordx4 v[32:35], v229, s[44:47], s75 offen {self.o["tst"]}
            s_mov_b64 exec, -1""")

    def prep(self, g):
        o = self.o
        lp, dn, keep = self.lab("fl"), self.lab("fd"), self.lab("fk")
        AGN = "s_mov_b64 s[60:61], s[52:53]\ns_mov_b64 s[54:55], s[52:53]"
        if g == 0 and o["agn"]:
            AGN = """
                s_lshr_b32 s10, s59, 16
                s_xor_b32 s10, s10, s4
                s_bitcmp1_b32 s10, 0
                s_cselect_b32 s54, -1, 0
                s_xor_b32 s54, s54, 0xffff0000
                s_cmp_eq_u32 s72, 0
                s_cselect_b32 s54, s54, s52
                s_mov_b32 s55, s53
                s_or_b64 s[60:61], s[52:53], s[54:55]"""
        self.spin_lds(C_KSEG, 4 * (g + 1), sleep=8)
        self(f"""
            ds_read_b128 v[32:35], v230 offset:{L_S + 4096 * g}
            s_lshr_b32 s62, s59, 16
            s_xor_b32 s62, s62, s59
            s_lshl_b32 s11, s72, 1
            s_add_u32 s11, s11, {8 * g}
            s_lshr_b32 s10, s62, s11
            s_bitcmp1_b32 s10, 0
            s_cselect_b32 s52, -1, 0
            s_bitcmp1_b32 s10, 1
            s_cselect_b32 s53, -1, 0
            {AGN}
            s_lshl_b32 s13, s2, 13
            s_add_u32 s13, s13, {SC + 4096 * g}
            s_xor_b32 s14, s13, {4 << 13}
            s_lshl_b32 s15, s2, 8
            s_add_u32 s15, s15, {FL + 128 * g}
            s_waitcnt lgkmcnt(0)
            s_cmp_eq_u64 s[60:61], 0
            s_cbranch_scc1 {keep}s
            s_mov_b64 exec, s[60:61]
            buffer_store_dwordx4 v[32:35], v230, s[44:47], s13 offen {o["scst"]}
            s_waitcnt vmcnt(0)
            {keep}s:""")
        self.lds_inc(C_FCNT, ret=True)
        self(f"""
            s_cmp_lg_u32 s10, {4 * g + 3}
            s_cbranch_scc1 {keep}f
            s_bfe_u32 s10, s62, {(8 << 16) | (8 * g)}
            {"" if (g == 0 and o["agn"]) else f"s_cbranch_scc0 {keep}f"}
            v_mov_b32 v5, s92
            v_lshlrev_b32 v6, 2, v2
            s_mov_b32 exec_hi, 0
            buffer_store_dword v5, v6, s[44:47], s15 offen sc1
            s_mov_b32 exec_hi, -1
            {keep}f:
            s_xor_b32 s56, s15, {4 << 8}
            s_mov_b32 s57, s14""")
        self.control(4 * g + 5)
        self(f"s_cmp_eq_u64 s[60:61], 0\ns_cbranch_scc1 {keep}")
        self.spin_lds(C_T + 4 * (4 * g + 5), 1, sleep=16)
        self(f"""
            s_mov_b32 s12, 0x4000
            s_mov_b64 exec, 1
            {lp}:
            buffer_load_dword v6, v1, s[44:47], s56 offen sc1
            s_waitcnt vmcnt(0)
            v_readfirstlane_b32 s10, v6
            s_cmp_eq_u32 s10, s92
            s_cbranch_scc1 {dn}
            s_sleep {o["fsleep"]}
            s_sub_u32 s12, s12, 1
            s_cbranch_scc0 {lp}
            s_branch L_end
            {dn}:
            s_mov_b64 exec, s[60:61]
            buffer_load_dwordx4 v[36:39], v230, s[44:47], s57 offen {o["scld"]}
            s_mov_b64 exec, -1
            s_waitcnt vmcnt(0)""")
        for i in range(4):
            self(f"v_cndmask_b32 v{32 + i}, v{32 + i}, v{36 + i}, {'s[54:55]' if 2 * i < o['agn'] else 's[52:53]'}")
        self(f"{keep}:")
        for i in range(4):
            self(f"v_lshlrev_b32 v{8 + 2*i}, 16, v{32 + i}\nv_and_b32 v{9 + 2*i}, 0xffff0000, v{32 + i}")
        self("v_max3_f32 v24, v8, v9, v10\nv_max3_f32 v24, v24, v11, v12\nv_max3_f32 v24, v24, v13, v14\nv_max_f32 v24, v24, v15")
        self.wave_allreduce("v_max_f32", 24, 25)
        self(f"""
            s_lshl_b32 s10, s72, 2
            v_mov_b32 v26, s10
            ds_write_b32 v26, v24 offset:{C_MAX + 16 * g}
            v_xor_b32 v26, 4, v26""")
        self.lds_inc(C_MAXC)
        self.spin_lds(C_MAXC, 4 * (g + 1), sleep=2)
        self(f"""
            ds_read_b32 v25, v26 offset:{C_MAX + 16 * g}
            s_mov_b32 s10, {f32(1.4426950408889634)}
            s_waitcnt lgkmcnt(0)
            v_max_f32 v24, v24, v25""")
        for i in range(8):
            self(f"v_sub_f32 v{8 + i}, v{8 + i}, v24")
        for i in range(8):
            self(f"v_mul_f32 v{8 + i}, s10, v{8 + i}")
        for i in range(8):
            self(f"v_exp_f32 v{8 + i}, v{8 + i}")
        for i in range(4):
            self(f"v_cvt_pk_bf16_f32 v{32 + i}, v{8 + 2*i}, v{9 + 2*i}")
        self(f"ds_write_b128 v230, v[32:35] offset:{L_P + 4096 * g}")
        self.lds_inc(C_PRDY)
        for step in (4, 2, 1):
            for i in range(step):
                self(f"v_add_f32 v{8 + i}, v{8 + i}, v{8 + step + i}")
        self.wave_allreduce("v_add_f32", 8, 9)
        self(f"""
            v_mov_b32 v25, s92
            v_mov_b32 v26, v8
            v_mov_b32 v27, s92
            v_lshlrev_b32 v9, 2, v231
            s_mov_b64 exec, 1
            ds_write_b128 v9, v[24:27] offset:{L_STAT + 64 * g}
            s_mov_b64 exec, -1""")
        if g == 1:
            self.lds_inc(C_SCNT, ret=True)
            self(f"""
                s_cmp_lg_u32 s10, 3
                s_cbranch_scc1 L_nostat
                s_mov_b64 exec, 0xff
                ds_read_b128 v[24:27], v229 offset:{L_STAT}
                s_lshl_b32 s13, s6, 3
                s_add_u32 s13, s13, s8
                s_lshl_b32 s13, s13, 7
                s_add_u32 s13, s13, {ST}
                s_waitcnt lgkmcnt(0)
                buffer_store_dwordx4 v[24:27], v229, s[44:47], s13 offen sc1
                s_mov_b64 exec, -1
                L_nostat:""")

    def scale(self):
        lp, dn = self.lab("sl"), self.lab("sd")
        self(f"""
            v_bfe_u32 v12, v2, 1, 3
            v_lshlrev_b32 v12, 7, v12
            v_lshl_add_u32 v12, v4, 5, v12
            v_and_b32 v13, 1, v2
            v_lshl_add_u32 v12, v13, 4, v12
            s_lshl_b32 s13, s6, 10
            s_add_u32 s13, s13, {ST}
            s_mov_b32 s12, 0x4000
            {lp}:
            buffer_load_dwordx4 v[8:11], v12, s[44:47], s13 offen sc1
            s_waitcnt vmcnt(0)
            v_xor_b32 v13, s92, v9
            v_bitop3_b32 v13, v13, v11, s92 bitop3:0xf6
            v_cmp_ne_u32 vcc, 0, v13
            s_cmp_eq_u64 vcc, 0
            s_cbranch_scc1 {dn}
            s_sleep 24
            s_sub_u32 s12, s12, 1
            s_cbranch_scc0 {lp}
            s_branch L_end
            {dn}:
            v_mov_b32 v9, v8""")
        self.row16_allreduce("v_max_f32", 9)
        self(f"""
            v_sub_f32 v8, v8, v9
            v_mul_f32 v8, {f32(1.4426950408889634)}, v8
            v_exp_f32 v8, v8
            s_lshl_b32 s10, s8, 1
            v_mul_f32 v10, v10, v8""")
        self.row16_allreduce("v_add_f32", 10)
        self(f"""
            v_rcp_f32 v10, v10
            v_lshlrev_b32 v11, 3, v4
            v_mul_f32 v9, v8, v10
            v_mov_b32 v8, 1
            s_lshl_b32 exec_lo, 0x10001, s10
            s_mov_b32 exec_hi, exec_lo
            ds_write_b64 v11, v[8:9] offset:{C_SC}
            s_mov_b64 exec, -1""")

    def levels(self, up, down):
        o = self.o
        self(f"""
            s_min_i32 s10, s10, {(o["cmax"] << 22) // o["gain"]}
            s_max_i32 s10, s10, {-((o["cmaxs"] << 22) // o["gains"])}
            s_max_i32 {up}, s10, 0
            s_sub_i32 {down}, 0, s10
            s_max_i32 {down}, {down}, 0
            s_mul_i32 {up}, {up}, {o["gain"] << 6}
            s_mul_i32 {down}, {down}, {o["gains"] << 6}""")

    def control(self, last, check=True):
        o = self.o
        if not o["ctl"]:
            return
        lp, dn, np_, nc = self.lab("cl"), self.lab("cd"), self.lab("cp"), self.lab("cn")
        if check:
            self(f"s_cmp_lg_u32 s72, 3\ns_cbranch_scc1 {dn}")
        self(f"""
            {lp}:
            s_add_u32 s96, s96, 1
            s_lshl_b32 s10, s96, 2
            v_mov_b32 v9, s10""")
        self.spin_lds(C_T, 1, sleep=4, addr="v9")
        self(f"""
            s_mov_b32 s97, s10
            s_lshl_b32 s13, s96, 12
            s_add_u32 s13, s13, {CT - 4096}
            s_cmp_eq_u32 s96, 1
            s_cselect_b32 s10, 0x80000000, 0
            v_lshl_or_b32 v9, v2, 7, s10
            s_mov_b32 exec_hi, 0
            buffer_load_dwordx2 v[10:11], v9, s[44:47], s13 offen sc1
            s_cmp_ge_u32 s99, 32
            s_cbranch_scc1 {np_}
            s_lshl_b32 s14, s99, 7
            s_add_u32 s14, s14, s13
            s_add_u32 s14, s14, 4096
            v_mov_b32 v12, s92
            v_mov_b32 v13, s97
            v_lshlrev_b32 v14, 3, v2
            s_mov_b32 exec_lo, 0xffff
            buffer_store_dwordx2 v[12:13], v14, s[44:47], s14 offen sc1
            s_mov_b32 exec_lo, -1
            s_waitcnt vmcnt(1)
            s_branch {np_}w
            {np_}:
            s_waitcnt vmcnt(0)
            {np_}w:
            v_cmp_eq_u32 vcc, s92, v10
            v_sub_u32 v11, s97, v11
            s_nop 0
            v_cndmask_b32 v11, 0, v11, vcc""")
        self.row16_allreduce("v_add_u32", 11)
        self(f"""
            s_nop 0
            v_readlane_b32 s10, v11, 0
            v_readlane_b32 s11, v11, 16
            s_mov_b64 exec, -1
            s_add_u32 s10, s10, s11
            s_lshl_b32 s11, s97, 5
            s_sub_u32 s11, s11, s10
            s_sub_u32 s12, s11, s98
            s_mov_b32 s98, s11
            s_cmp_lt_u32 s96, 3
            s_cbranch_scc1 {nc}""")
        if o["pmin"]:
            self("s_min_u32 s14, s12, s100\ns_mov_b32 s100, s12\ns_mov_b32 s12, s14")
        if o["ctl"] == 2:
            self(f"""
                s_lshr_b32 s12, s12, 3
                s_sub_u32 s10, s96, 1
                s_mul_i32 s10, s10, s12
                s_lshl_b32 s10, s10, 3
                s_sub_u32 s11, s11, s10
                s_sub_u32 s11, s11, {(o["bias"] * 32) & 0xffffffff}""")
        else:
            self(f"s_sub_i32 s10, s10, s12\ns_add_i32 s10, s10, {o['bias'] * 32}")
            self.levels("s11", "s12")
        self(f"""
            v_mov_b32 v12, s11
            v_mov_b32 v13, s12
            ds_write_b64 v1, v[12:13] offset:{C_CTL}
            {nc}:
            s_cmp_lt_u32 s96, {last}
            s_cbranch_scc1 {lp}
            {dn}:""")

    def helper(self):
        o = self.o
        self.in_helper = True
        self(f"""
            L_helper:
            s_sub_u32 s72, s3, 4
            s_sub_u32 s74, s38, 48
            s_mul_i32 s61, s74, 43
            s_lshr_b32 s61, s61, 8
            s_mul_i32 s10, s61, 6
            s_sub_u32 s73, s74, s10
            s_add_u32 s61, s61, 32
            s_cmp_lt_u32 s8, 6
            s_cselect_b32 s61, s6, s61
            s_cselect_b32 s73, s8, s73
            s_cselect_b32 s74, 0, s74
            s_cselect_b32 s70, 12, 3
            s_lshl_b32 s70, s70, 10
            s_mul_i32 s71, s70, 25
            s_cmp_ge_u32 s73, 3
            s_cselect_b32 s14, 4, 0
            s_cselect_b32 s10, 3, 0
            s_add_u32 s14, s14, s72
            s_mul_i32 s14, s14, 80
            s_sub_u32 s10, s73, s10
            s_and_b32 s11, s61, 31
            s_mul_i32 s11, s11, 3
            s_add_u32 s10, s10, s11
            s_lshl_b32 s10, s10, 7
            s_mul_i32 s13, s14, s70
            s_add_u32 s13, s13, s10
            s_lshl_b32 s14, s14, 1
            v_and_b32 v3, 15, v2
            v_lshrrev_b32 v4, 4, v2
            v_mul_u32_u24 v5, 1280, v4
            v_lshl_add_u32 v5, v3, 4, v5
            v_lshrrev_b32 v6, 2, v3
            v_mul_u32_u24 v7, 1280, v6
            v_lshl_add_u32 v38, v4, 3, v7
            v_lshl_add_u32 v7, v4, 4, v7
            v_mul_u32_u24 v45, s70, v4
            v_add_lshl_u32 v44, v45, v3, 3
            v_lshlrev_b32 v45, 2, v45
            v_lshl_add_u32 v45, v3, 3, v45
            s_or_b32 s10, s2, s72""")
        self.args_ready()
        self(f"""
            s_cmp_lg_u32 s10, 0
            s_cbranch_scc1 L_nononce
            s_lshl_b32 s10, s94, 2
            s_or_b32 s10, s10, 1
            v_mov_b32 v47, s10
            v_lshlrev_b32 v46, 2, v2
            global_store_dword v46, v47, s[34:35] sc1
            L_nononce:
            s_mov_b32 s42, {640 * 1536 * 2}
            s_cmp_lt_u32 s8, 6
            s_cselect_b32 s40, s22, s28
            s_cselect_b32 s41, s23, s29
            s_cselect_b32 s42, {640 * 6144 * 2}, s42
            s_and_b32 s41, s41, 0xffff
            s_mov_b32 s43, 0x20000""")
        self.srd(48, 16, 5120)
        self.srd(44, 36, WS_END)
        self.stamp(1, 2)
        self("s_barrier\ns_barrier" if o["bar2"] else "s_barrier")
        self.stamp(2, 2)
        self("s_cmp_ge_u32 s74, 48\ns_cbranch_scc1 L_noloads")
        for i in range(5):
            self(f"buffer_load_dwordx4 v[{8 + 4*i}:{11 + 4*i}], v5, s[48:51], 0 offen offset:{256 * i}")
        self("""
            buffer_load_dwordx4 v[28:31], v7, s[48:51], s14 offen
            buffer_load_dwordx4 v[32:35], v7, s[48:51], s14 offen offset:64
            buffer_load_dwordx2 v[36:37], v38, s[48:51], s14 offen offset:128""")
        first = (3, 1, 2)[o["hsplit"]]
        for p in range(first):
            self.item_loads(p)
        self("L_noloads:")
        self.stamp(3, 2)
        self.roles()
        self(f"""
            s_lshl_b32 s10, s39, 2
            s_add_u32 s10, s10, s72
            s_lshl_b32 s10, s10, 9
            s_mul_i32 s75, s77, 10240
            s_add_u32 s75, s75, s10
            s_add_u32 s75, s75, {YP}
            s_mov_b32 s68, 0x05040100
            s_mov_b32 s69, 0x07060302
            v_lshlrev_b32 v229, 4, v2
            v_and_b32 v47, 3, v2
            v_mul_u32_u24 v228, 384, v47
            v_lshl_add_u32 v228, v4, 4, v228
            v_mul_u32_u24 v233, 384, v4
            v_lshl_add_u32 v233, v6, 5, v233
            v_lshl_add_u32 v233, v47, 1, v233
            s_lshl_b32 s10, s72, 7
            v_add_u32 v233, s10, v233
            s_lshl_b32 s10, s72, 10
            v_add_u32 v230, s10, v229
            v_lshl_add_u32 v46, v6, 8, s10
            v_lshl_add_u32 v46, v4, 6, v46
            v_lshl_add_u32 v46, v47, 4, v46
            s_lshl_b32 s10, s72, 2
            v_mov_b32 v231, s10
            s_mov_b32 s60, 0
            s_cmp_ge_u32 s74, 48
            s_cbranch_scc1 L_noitem
            v_lshlrev_b32 v47, 6, v6
            s_mov_b32 s10, 0x3f803f80
            s_waitcnt vmcnt({(20, 8, 16)[o["hsplit"]]})""")
        self.stamp(4, 2)
        for i in range(20):
            self(f"v_dot2_f32_bf16 v40, v{8 + i}, s10, {'0' if i == 0 else 'v40'}")
        self("s_nop 1")
        self.row16_allreduce("v_add_f32", 40)
        self(f"v_mul_f32 v40, {f32(1 / 640)}, v40")
        for p in range(first, 3):
            self.item_loads(p)
        self("v_mov_b32 v41, 0\nv_mov_b32 v42, 0")
        for i in range(20):
            self(f"""
                v_lshlrev_b32 v38, 16, v{8 + i}
                v_and_b32 v39, 0xffff0000, v{8 + i}
                v_sub_f32 v38, v38, v40
                v_sub_f32 v39, v39, v40
                v_fmac_f32 v41, v38, v38
                v_fmac_f32 v42, v39, v39""")
        self("v_add_f32 v41, v41, v42")
        self.row16_allreduce("v_add_f32", 41)
        self(f"v_mul_f32 v41, {f32(1 / 640)}, v41")
        self.bf16_round(41)
        self(f"v_add_f32 v41, {f32(1e-5)}, v41")
        self.bf16_round(41)
        self("v_sqrt_f32 v41, v41\ns_nop 0")
        self.bf16_round(41)
        self("v_rcp_f32 v41, v41")
        self.bf16_round(40)
        self("ds_bpermute_b32 v40, v47, v40\nds_bpermute_b32 v41, v47, v41")
        self.frag_norm()
        self.stamp(5, 2)
        self.item_compute()
        self.lds_inc(C_ICNT, ret=True)
        self("s_mov_b32 s60, s10\nL_noitem:")
        self.stamp(1)
        self.stamp(6, 2)
        self.spin_lds(C_NONCE, 1, sleep=0)
        self("s_mov_b32 s92, s10")
        self.tags(236)
        self("s_cmp_lg_u32 s60, 3\ns_cbranch_scc1 L_nopub")
        for k in range(4):
            self(f"ds_read_b128 v[{8 + 4*k}:{11 + 4*k}], v229 offset:{L_ORED + 1024 * k}")
        self("""
            s_lshl_b32 s13, s61, 3
            s_add_u32 s13, s13, s73
            s_lshl_b32 s13, s13, 10
            s_waitcnt lgkmcnt(0)""")
        for e in range(4):
            self(f"v_add_f32 v{8 + e}, v{8 + e}, v{12 + e}\nv_add_f32 v{16 + e}, v{16 + e}, v{20 + e}")
        for e in range(4):
            self(f"v_add_f32 v{24 + e}, v{8 + e}, v{16 + e}")
        self.tag_data(24, 236)
        self(f"buffer_store_dwordx4 v[24:27], v229, s[44:47], s13 offen {o['qst']}\nL_nopub:")
        self.stamp(2)
        self.stamp(7, 2)
        self("s_cmp_eq_u32 s72, 3\ns_cbranch_scc1 L_noproj")
        self.spin_lds(C_MARK, 1, sleep=2)
        self.gather_tile("s6", o["qsleep"], False, L_Q)
        self.lds_inc(C_QRDY)
        self.stamp(4)
        self.stamp(9, 2)
        self("s_cmp_lg_u32 s76, 1\ns_cbranch_scc1 L_noproj")
        self.spin_lds(C_T + 4, 1, sleep=16)
        self.gather_tile("s77", 16, True, L_OBUF)
        self("L_noproj:")
        self.tile_setup()
        if o["tearly"]:
            self(f"""
                s_cmp_ge_u32 s76, 2
                s_cbranch_scc1 L_noearly
                s_cmp_lg_u32 s72, 3
                s_cbranch_scc1 L_noearly
                s_add_u32 s14, s70, {o['tearly'] * 4 * 1280}""")
            self.tile_issue("s14", o["tdepth0"])
            self("L_noearly:")
        self.stamp(5)
        self.stamp(10, 2)
        self.spin_lds(C_VOTE, 1, sleep=4, wide=True)
        self("""
            s_mov_b32 s59, s11
            s_mov_b32 s96, 0
            s_mov_b32 s98, 0
            s_mov_b32 s100, -1
            s_lshr_b32 s10, s2, 3
            s_mul_i32 s11, s10, 57
            s_lshr_b32 s11, s11, 9
            s_mul_i32 s12, s11, 9
            s_sub_u32 s12, s10, s12
            s_lshl_b32 s11, s11, 3
            s_and_b32 s99, s2, 7
            s_add_u32 s99, s99, s11
            s_cmp_eq_u32 s12, 1
            s_cselect_b32 s99, s99, 64""")
        self.control(4)
        self.prep(0)
        self.stamp(6)
        self.control(8)
        self.prep(1)
        self.stamp(7)
        self("s_cmp_lg_u32 s72, 3\ns_cbranch_scc1 L_pubo")
        self.control(o["sit"], check=False)
        self.scale()
        self.control(13, check=False)
        if o["pf"] == 2:
            self("""
                s_cmp_ge_u32 s2, 16
                s_cbranch_scc1 L_nopf2
                s_getpc_b64 s[14:15]
                L_pf2pc:
                s_sub_u32 s14, s14, L_pf2pc-L_vflush
                s_subb_u32 s15, s15, 0
                v_lshlrev_b32 v9, 7, v2
                v_min_u32 v10, L_helper-L_vflush, v9
                v_add_u32 v9, L_pf2pc-L_vflush, v9
                v_min_u32 v9, L_table-L_vflush, v9
                global_load_dword v254, v10, s[14:15]
                global_load_dword v254, v9, s[14:15]
                L_nopf2:""")
        self.control(14, check=False)
        self("s_cmp_eq_u32 s76, 3\ns_cbranch_scc1 L_reduce\ns_cmp_eq_u32 s76, 2\ns_cbranch_scc1 L_end")
        trig = {"iss": (C_ISS, 4), "o1": (C_OCNT + 12, 1), "o4": (C_OCNT + 12, 4), "w": (C_WRDY, 1), "t15": (C_T + 60, 1),
                "m2": (C_MARK, 2)}
        self.spin_lds(*trig[o["trig"]], sleep=o["tsleep"])
        self("s_setprio 3")
        if o["tearly"] < 48:
            self.tile_issue("s71", o["tdepth"])
        self("s_waitcnt vmcnt(0)")
        self.lds_inc(C_WRDY)
        self.stamp(8)
        self("s_branch L_frag")
        self(f"""
            L_pubo:
            s_mul_i32 s10, s72, 6144
            v_add_u32 v40, s10, v229
            v_mov_b32 v42, v229
            s_lshl_b32 s13, s6, 2
            s_add_u32 s13, s13, s72
            s_lshl_b32 s13, s13, 3
            s_add_u32 s13, s13, s8
            s_lshl_b32 s13, s13, 10
            s_add_u32 s13, s13, {OP}
            v_lshlrev_b32 v45, 1, v231""")
        self.spin_lds(C_SC, 1, sleep=16, wide=True, addr="v45")
        self("s_mov_b32 s73, s11\nv_mov_b32 v44, v236\nv_mov_b32 v45, v237\nv_mov_b32 v46, v238\nv_mov_b32 v47, v239")
        self.spin_lds(C_OCNT + (8 if o["latepub"] else 0), 4, sleep=8, addr="v1" if o["latepub"] else "v231")
        if o["latepub"] == 2:
            self.spin_lds(C_T + 60, 1, sleep=4)
        elif o["latepub"] == 3:
            self.spin_lds(C_MARK, 2, sleep=4)
        elif o["pdelay"]:
            self(f"s_sleep {o['pdelay']}")
        self("s_branch L_pub\nL_pubdone:")
        self.stamp(8)
        self(f"""
            s_cmp_ge_u32 s76, 2
            s_cbranch_scc1 L_end
            s_cmp_eq_u32 s76, 1
            s_cbranch_scc1 L_fragwait
            s_mov_b32 s63, 0
            s_lshl_b32 s62, s6, 15
            s_lshl_b32 s10, s72, 8
            s_add_u32 s62, s62, s10
            s_add_u32 s62, s62, {OP}
            v_lshlrev_b32 v47, 10, v4
            v_lshl_add_u32 v47, v3, 4, v47
            v_lshlrev_b32 v44, 3, v3
            v_lshl_add_u32 v44, v4, 1, v44
            s_lshl_b32 s10, s72, 7
            v_add_u32 v44, s10, v44""")
        self.spin_lds(*trig[o["gtrig"]], sleep=o["tsleep"])
        self("s_setprio 3")
        if not o["g4"]:
            self.gather_o((0, 1, 2), o["osleep"], o["old"])
            if o["g3trig"]:
                self.spin_lds(*trig[o["g3trig"]], sleep=1)

        def early_fragments():
            self(f"""
                s_cmp_lg_u32 s63, 0
                s_cbranch_scc1 L_nofrag
                ds_read_b32 v6, v1 offset:{C_WRDY}
                s_waitcnt lgkmcnt(0)
                v_readfirstlane_b32 s63, v6
                s_cmp_eq_u32 s63, 0
                s_cbranch_scc1 L_nofrag""")
            self.fragments()
            self("L_nofrag:")

        self.gather_o((0, 1, 2, 3) if o["g4"] else (3,), o["psleep"], o["tld"], hook=early_fragments)
        self.stamp(9)
        self("s_cmp_lg_u32 s63, 0\ns_cbranch_scc1 L_proj\nL_fragwait:")
        self.spin_lds(C_WRDY, 1, sleep=o["wsleep"])
        self("L_frag:")
        self.fragments()
        self("L_proj:")
        self.project()
        self.stamp(10)
        self("s_branch L_end")
        self("L_reduce:")
        self.srd(52, 32, 5120)
        self(f"""
            v_mul_u32_u24 v52, 10240, v4
            v_lshl_add_u32 v52, v3, 4, v52
            v_mul_u32_u24 v53, 1280, v4
            v_lshl_add_u32 v53, v3, 1, v53
            s_lshl_b32 s13, s77, 8
            s_add_u32 s13, s13, {YP}
            s_lshl_b32 s62, s77, 5
            buffer_load_ushort v54, v53, s[48:51], s62 offen""")
        for i in range(10):
            self(f"s_add_u32 s{16 + i}, s13, {40960 * i}")
        self.spin_lds(C_OCNT + 12, o["ostart"], sleep=o["tsleep"])
        self("s_setprio 3")
        if o["rdelay"]:
            self(f"s_sleep {o['rdelay']}")
        self.poll([(40, f"buffer_load_dwordx4 v[40:43], v52, s[44:47], s24 offen {o['tld']}"),
                   (44, f"buffer_load_dwordx4 v[44:47], v52, s[44:47], s25 offen {o['tld']}")], 2)
        for e in range(4):
            self(f"v_add_f32 v{40 + e}, v{40 + e}, v{44 + e}")
        self.rows4_reduce(40)
        self.bf16_round(40)
        self("v_lshlrev_b32 v46, 16, v54")
        self.poll([(8 + 4*i, f"buffer_load_dwordx4 v[{8 + 4*i}:{11 + 4*i}], v52, s[44:47], s{16 + i} offen {o['tld']}")
                   for i in range(8)], o["psleep"])
        self.stamp(9)
        for step in (16, 8, 4):
            for i in range(step):
                self(f"v_add_f32 v{8 + i}, v{8 + i}, v{8 + step + i}")
        self.rows4_reduce(8)
        self.bf16_round(8)
        self("v_add_f32 v8, v46, v8")
        self.bf16_round(8)
        self(f"""
            v_add_f32 v8, v8, v40
            v_cvt_pk_bf16_f32 v8, v8, v8
            buffer_store_short v8, v53, s[52:55], s62 offen {o["outst"]}""")
        self.stamp(10)

    def finish(self):
        self("L_end:")
        if self.o["stamps"]:
            self(f"""
                s_waitcnt vmcnt(0)
                s_memrealtime s[78:79]
                s_getreg_b32 s101, hwreg(HW_REG_XCC_ID)
                s_waitcnt lgkmcnt(0)
                s_mov_b32 s91, s78
                s_mov_b64 exec, 1
                s_lshl_b32 s10, s2, 3
                s_add_u32 s10, s10, s3
                s_lshl_b32 s10, s10, 6
                s_add_u32 s10, s10, {STAMPS}
                v_mov_b32 v5, s10""")
            for i in range(12):
                self(f"v_mov_b32 v{8 + i}, s{80 + i}")
            self("v_mov_b32 v20, s101\nv_mov_b32 v21, s59\nv_mov_b32 v22, s6\nv_mov_b32 v23, s76")
            for i in range(4):
                self(f"global_store_dwordx4 v5, v[{8 + 4*i}:{11 + 4*i}], s[36:37] offset:{16 * i}")
        if self.o["enc"]:
            wave, idx, mult = (int(x) for x in self.o["enc"].split("x"))
            self(f"""
                s_cmp_lg_u32 s3, {wave}
                s_cbranch_scc1 L_exit
                s_sub_u32 s10, s{80 + idx}, s80
                s_mul_i32 s10, s10, {mult}
                s_min_u32 s10, s10, 40000
                s_add_u32 s10, s10, 20000
                L_encl:
                s_memrealtime s[78:79]
                s_waitcnt lgkmcnt(0)
                s_sub_u32 s11, s78, s80
                s_cmp_lt_u32 s11, s10
                s_cbranch_scc1 L_encl""")
        self("L_exit:\ns_endpgm")

    def build(self):
        head = open(f"cdna_kernels/{NAME}.s.ref").read().split("\n") if self.o["head"] else []
        out = [ln for ln in head if ln.startswith(";") and "@launch" not in ln][:14]
        out.append(f"; @launch grid=(256,1,1) block=(512,1,1) lds={LDS_BYTES}")
        out.append(DOC.strip("\n"))
        out += ['.amdgcn_target "amdgcn-amd-amdhsa--gfx950"', ".text", f".globl {NAME}_kernel", ".p2align 8",
                f".type {NAME}_kernel,@function", f"{NAME}_kernel:"]
        self.entry()
        self.streamer()
        self.helper()
        self.finish()
        out += self.L
        out += [".p2align 8", ".type L_table,@object", "L_table:"]
        T = row_table()
        for sig in range(2):
            for w in range(4):
                for g in range(8):
                    out.append("  .long " + ", ".join(str(T[sig][w][g][t] * 384) for t in range(8)))
        out.append(".size L_table, 2048")
        out += ['.section .rodata,"a"', ".p2align 6", f".amdhsa_kernel {NAME}_kernel",
                "  .amdhsa_next_free_vgpr 256", "  .amdhsa_next_free_sgpr 102", "  .amdhsa_accum_offset 256",
                "  .amdhsa_group_segment_fixed_size 0", "  .amdhsa_kernarg_size 88", "  .amdhsa_user_sgpr_count 2",
                "  .amdhsa_user_sgpr_kernarg_segment_ptr 1", "  .amdhsa_system_sgpr_workgroup_id_x 1",
                ".end_amdhsa_kernel"]
        return "\n".join(out) + "\n"


DOC = """
"""

DEFAULTS = dict(stamps=0, head=1, gap=40, numa="near", scst="sc1 nt", scld="sc1 nt", qst="sc1", asleep=8, qsleep=8,
                tsleep=2, psleep=0, fsleep=24, ntry=4, nsleep=2, enc="", series=0, ctl=2, gain=10000, gains=10000,
                cmax=15, bias=0, tdepth=32, hsplit=1, ackfirst=0, oit=16, odelay=0, ost="sc1", old="sc1", agn=8, qdelay=0, sit=11, latepub=2, pdelay=0, osleep=4, cmaxs=15, pmin=0, ostart=1, tst="sc1", tld="sc1", outst="", pf=2, bar2=1, tat=1, wsleep=0, w0=3, trig="iss", gtrig="o1", tearly=0, tdepth0=8, vat=4, qat=10, mat=8, g4=0, g3trig="", rdelay=40)

if __name__ == "__main__":
    opt = dict(DEFAULTS)
    for kv in sys.argv[2:]:
        k, v = kv.split("=")
        assert k in opt, k
        opt[k] = int(v) if isinstance(DEFAULTS[k], int) else v.replace("+", " ")
    open(sys.argv[1], "w").write(Gen(opt).build())
```

```python
import struct
import sys

NAME = "parallel_sum__mha_block_cached__dense_activation_silu__decode"
KV_BYTES = 4 * 32 * 8192 * 192 * 2
REGION = 3 << 20
WIN = 196608

QP, YP, FL, VR, ST, CT, SC, OP, WS_END = (
    0x0, 0x140000, 0x1E0000, 0x1B8000, 0x1C0000, 0x1D0000, 0x200000, 0x400000, 0x500000)
STAMPS = 0x1000000
L_S, L_P, L_ORED, L_OBUF, L_Q, L_C, L_SER, L_WT = 0x0, 0x2000, 0x4000, 0xA000, 0xA600, 0xAC00, 0xAE00, 0xB000
C_NONCE, C_WRDY, C_VOTE, C_KSEG, C_PRDY, C_MAXC, C_HS, C_SC3 = (
    L_C + 0, L_C + 4, L_C + 8, L_C + 16, L_C + 20, L_C + 24, L_C + 28, L_C + 32)
C_CTL, C_QRDY, C_ICNT, C_OCNT, C_MAX, C_MARK, C_T = L_C + 40, L_C + 48, L_C + 52, L_C + 64, L_C + 80, L_C + 112, L_C + 128
C_EARLY, C_FCNT, C_SCNT, C_ISS, C_SC, L_STAT = L_C + 124, L_C + 56, L_C + 60, L_C + 120, L_C + 192, 0xAD00
TROW = 1088
LDS_BYTES = 0xB000 + 48 * TROW
BATCH = 32 * REGION


def f32(x):
    return "0x%08x" % struct.unpack("<I", struct.pack("<f", x))[0]


def block_rows(b):
    t, r = divmod(b, 3)
    lo, hi = ((0, 21), (21, 43), (43, 64))[r]
    return list(range(64 * t + lo, 64 * t + hi))


def row_table():
    T = []
    for sig in range(2):
        lo = sum((block_rows(sig + o) for o in (0, 8, 16, 10, 18, 2)), [])
        up = sum((block_rows(sig + o + 4) for o in (0, 8, 16, 10, 18, 2)), [])
        T.append([[[(lo if g < 4 else up)[4 * (16 * (w >> 1) + 2 * t + (w & 1)) + (g & 3)] for t in range(8)]
                   for g in range(8)] for w in range(4)])
    assert sorted(r for s in T for w in s for g in w for r in g) == list(range(512))
    return T


class Gen:
    def __init__(self, opt):
        self.o = opt
        self.L = []
        self.nlab = 0
        self.in_helper = False

    def __call__(self, text):
        for line in text.strip("\n").split("\n"):
            line = line.strip()
            if line:
                self.L.append(line if line.endswith(":") else "  " + line)

    def lab(self, base):
        self.nlab += 1
        return f"L_{base}{self.nlab}"

    def stamp(self, idx, mode=1):
        if self.o["stamps"] == mode or (self.o["stamps"] and not self.in_helper):
            self(f"s_memrealtime s[78:79]\ns_waitcnt lgkmcnt(0)\ns_mov_b32 s{80 + idx}, s78")

    def spin_lds(self, off, target, sleep=1, wide=False, addr="v1"):
        lp, dn = self.lab("sp"), self.lab("sd")
        self("s_mov_b32 s12, 0x100000")
        self(f"{lp}:")
        if wide:
            self(f"ds_read_b64 v[6:7], {addr} offset:{off}")
        else:
            self(f"ds_read_b32 v6, {addr} offset:{off}")
        self("s_waitcnt lgkmcnt(0)\nv_readfirstlane_b32 s10, v6")
        if wide:
            self("v_readfirstlane_b32 s11, v7")
        self(f"""
            s_cmp_ge_u32 s10, {target}
            s_cbranch_scc1 {dn}
            s_sleep {sleep}
            s_sub_u32 s12, s12, 1
            s_cbranch_scc0 {lp}
            s_branch L_end
            {dn}:""")

    def lds_inc(self, off, ret=False, addr="v1"):
        self("s_mov_b64 exec, 1\nv_mov_b32 v5, 1")
        if ret:
            self(f"ds_add_rtn_u32 v6, {addr}, v5 offset:{off}\ns_waitcnt lgkmcnt(0)\nv_readfirstlane_b32 s10, v6")
        else:
            self(f"ds_add_u32 {addr}, v5 offset:{off}")
        self("s_mov_b64 exec, -1")

    def tags(self, t):
        self(f"""
            s_mul_i32 s10, s92, 0x9e3779b1
            s_mul_hi_u32 s11, s92, 0x85ebca6b
            s_mul_i32 s12, s92, 0xc2b2ae35
            s_xor_b32 s11, s11, s12
            v_mov_b32 v{t}, s10
            v_mov_b32 v{t+1}, s11
            v_and_b32 v{t+2}, 1, v0
            v_cndmask_b32 v{t}, v{t}, v{t+1}, s[64:65]
            v_lshlrev_b32 v{t+2}, 4, v{t+2}
            v_lshrrev_b32 v{t}, v{t+2}, v{t}
            v_lshrrev_b32 v{t+1}, 4, v{t}
            v_lshrrev_b32 v{t+2}, 8, v{t}
            v_lshrrev_b32 v{t+3}, 12, v{t}""")

    def tag_data(self, r, t):
        for e in range(4):
            self(f"v_bfi_b32 v{r + e}, 15, v{t + e}, v{r + e}")

    def poll(self, loads, sleep, t=236, half=(), hook=None, inner=None):
        lp, dn = self.lab("pl"), self.lab("pd")
        n = len(loads)
        self("s_mov_b32 s12, 0x40000")
        self(f"{lp}:")
        for i, (r, ins) in enumerate(loads):
            if i in half:
                self(f"s_mov_b32 exec_hi, 0\n{ins}\ns_mov_b32 exec_hi, -1")
            else:
                self(ins)
        if hook:
            hook()
        for i, (r, ins) in enumerate(loads):
            self(f"s_waitcnt vmcnt({n - 1 - i})")
            if i in half:
                self("s_mov_b32 exec_hi, 0")
            for e in range(4):
                if i == 0 and e == 0:
                    self(f"v_xor_b32 v5, v{r}, v{t}")
                else:
                    self(f"v_bitop3_b32 v5, v5, v{r + e}, v{t + e} bitop3:0xf6")
            for e in range(4):
                self(f"v_and_b32 v{r + e}, -16, v{r + e}")
            if i in half:
                self("s_mov_b32 exec_hi, -1")
        self("v_and_b32 v5, 15, v5\nv_cmp_ne_u32 vcc, 0, v5")
        if inner:
            inner()
        self(f"""
            s_cmp_eq_u64 vcc, 0
            s_cbranch_scc1 {dn}""")
        if sleep:
            self(f"s_sleep {sleep}")
        self(f"""
            s_sub_u32 s12, s12, 1
            s_cbranch_scc0 {lp}
            s_branch L_end
            {dn}:""")

    def rows4_reduce(self, r):
        self(f"""
            s_nop 1
            v_permlane16_swap_b32 v{r}, v{r+1}
            v_permlane16_swap_b32 v{r+2}, v{r+3}
            s_nop 1
            v_add_f32 v{r}, v{r}, v{r+1}
            v_add_f32 v{r+2}, v{r+2}, v{r+3}
            s_nop 1
            v_permlane32_swap_b32 v{r}, v{r+2}
            s_nop 1
            v_add_f32 v{r}, v{r}, v{r+2}""")

    def row16_allreduce(self, op, r):
        for ctl in ("quad_perm:[1,0,3,2]", "quad_perm:[2,3,0,1]", "row_half_mirror", "row_mirror"):
            self(f"s_nop 1\n{op}_dpp v{r}, v{r}, v{r} {ctl} row_mask:0xf bank_mask:0xf")

    def wave_allreduce(self, op, r, t):
        self.row16_allreduce(op, r)
        for sw in ("v_permlane16_swap_b32", "v_permlane32_swap_b32"):
            self(f"v_mov_b32 v{t}, v{r}\ns_nop 1\n{sw} v{r}, v{t}\ns_nop 1\n{op} v{r}, v{r}, v{t}")

    def bf16_round(self, r):
        self(f"v_cvt_pk_bf16_f32 v{r}, v{r}, v{r}\nv_lshlrev_b32 v{r}, 16, v{r}")

    def srd(self, d, p, size):
        self(f"s_mov_b32 s{d}, s{p}\ns_and_b32 s{d+1}, s{p+1}, 0xffff\ns_mov_b32 s{d+2}, {size}\ns_mov_b32 s{d+3}, 0x20000")

    def entry(self):
        o = self.o
        PF = ""
        if o["pf"]:
            PF = f"""
                s_cmp_ge_u32 s2, 16
                s_cbranch_scc1 L_nopf
                s_getpc_b64 s[14:15]
                L_pfpc:
                v_lshlrev_b32 v3, 6, v0
                v_min_u32 v3, L_table+4092-L_pfpc, v3
                global_load_dword v254, v3, s[14:15]
                L_nopf:"""
        self(f"""
            s_cmp_ge_u32 s2, 256
            s_cbranch_scc1 L_exit
            s_load_dwordx16 s[16:31], s[0:1], 0
            {PF}
            s_load_dwordx4 s[32:35], s[0:1], 64
            s_load_dwordx2 s[36:37], s[0:1], 80
            s_memrealtime s[94:95]
            v_lshrrev_b32 v2, 6, v0
            v_mov_b32 v1, 0
            v_readfirstlane_b32 s3, v2
            v_and_b32 v2, 63, v0
            v_lshlrev_b32 v5, 2, v2
            ds_write_b32 v5, v1 offset:{L_C}
            s_getreg_b32 s7, hwreg(HW_REG_XCC_ID, 0, 4)
            s_bfe_u32 s9, s7, 0x10002
            s_bfe_u32 s4, s2, 0x10002
            s_bfe_u32 s5, s2, 0x20003
            s_and_b32 s11, s2, 3
            s_lshr_b32 s10, s2, 5
            s_lshl_b32 s6, s11, 3
            s_add_u32 s6, s6, s10
            s_lshl_b32 s8, s5, 1
            s_add_u32 s8, s8, s4""")
        self("""
            s_lshl_b32 s38, s10, 2
            s_add_u32 s38, s38, s11
            s_sub_u32 s11, s8, 5
            s_lshl_b32 s11, s11, 5
            s_add_u32 s38, s38, s11""")
        if o["stamps"]:
            for i in range(1, 12):
                self(f"s_mov_b32 s{80 + i}, 0")
        self("s_cmp_ge_u32 s3, 4\ns_cbranch_scc1 L_helper")

    def masks(self):
        self("""
            s_mov_b32 s64, 0xcccccccc
            s_mov_b32 s65, 0xcccccccc
            s_mov_b32 s66, 0xaaaaaaaa
            s_mov_b32 s67, 0xaaaaaaaa""")

    def roles(self):
        self("""
            s_and_b32 s10, s2, 7
            s_lshr_b32 s77, s2, 3
            s_sub_u32 s11, s10, 6
            s_mul_i32 s11, s11, 20
            s_add_u32 s11, s11, s77
            s_mul_i32 s12, s11, 52
            s_lshr_b32 s12, s12, 8
            s_mul_i32 s39, s12, 5
            s_sub_u32 s39, s11, s39
            s_add_u32 s12, s12, 32
            s_cmp_lt_u32 s77, 20
            s_cselect_b32 s76, 1, 2
            s_sub_u32 s11, s10, s4
            s_cmp_lt_u32 s10, 6
            s_cselect_b32 s76, 0, s76
            s_cselect_b32 s77, s77, s12
            s_cselect_b32 s39, s11, s39
            s_cmp_eq_u32 s10, 3
            s_cselect_b32 s76, 2, s76""")

    def args_ready(self):
        self("s_waitcnt lgkmcnt(0)")
        if self.o["stamps"]:
            self("s_mov_b32 s80, s94")

    def vote_load(self):
        self(f"""
            s_lshl_b32 s14, s6, {4 if self.o["ilv"] else 2}
            s_add_u32 s14, s14, s5
            s_lshl_b32 s14, s14, {1 if self.o["ilv"] else 3}
            s_add_u32 s10, s14, {13 if self.o["ilv"] else 4}
            s_mul_i32 s10, s10, 3
            s_lshr_b32 s10, s10, 10
            s_mul_i32 s10, s10, 10
            s_add_u32 s10, s10, 16
            s_andn2_b32 s11, s2, 4
            v_bfe_u32 v9, v0, 3, 3
            v_and_b32 v10, 7, v0
            v_mad_u32_u24 v9, v9, 30, v10
            v_cmp_eq_u32 vcc, 7, v10
            v_add_u32 v9, s10, v9
            v_mov_b32 v10, s11
            v_cndmask_b32 v9, v9, v10, vcc
            v_lshlrev_b32 v9, 7, v9
            s_mov_b32 s15, {VR}
            buffer_load_dwordx2 v[12:13], v9, s[44:47], s15 offen sc1""")

    def vote_eval(self):
        o = self.o
        self.spin_lds(C_NONCE, 1, sleep=0)
        self(f"""
            s_mov_b32 s92, s10
            s_mov_b32 s12, 0x40000
            L_vchk:
            v_cmp_ne_u32 vcc, s92, v12
            s_cmp_eq_u64 vcc, 0
            s_cbranch_scc1 L_vok
            s_sleep {o["asleep"]}
            buffer_load_dwordx2 v[12:13], v9, s[44:47], s15 offen sc1
            s_waitcnt vmcnt(0)
            s_sub_u32 s12, s12, 1
            s_cbranch_scc0 L_vchk
            s_branch L_end
            L_vok:
            v_readlane_b32 s11, v13, 7
            v_and_b32 v8, 1, v13
            v_cmp_eq_u32 vcc, 1, v8
            v_and_b32 v10, 3, v0
            s_add_u32 s14, s14, 1
            v_lshl_add_u32 v10, v10, {3 if o['ilv'] else 1}, s14
            v_mul_u32_u24 v10, 3, v10
            v_lshrrev_b32 v10, 6, v10
            s_lshr_b32 s11, s11, 3
            s_xor_b32 s11, s11, s4
            v_bfe_u32 v11, v0, 2, 3
            v_lshlrev_b32 v11, 3, v11
            v_lshrrev_b64 v[8:9], v11, vcc
            v_and_b32 v8, 0x7f, v8
            v_bcnt_u32_b32 v8, v8, 0
            v_lshrrev_b32 v8, 2, v8
            v_xor_b32 v8, v8, v10
            v_xor_b32 v8, s11, v8
            v_and_b32 v8, 1, v8
            v_cmp_eq_u32 vcc, 1, v8
            s_and_b32 s50, s59, 3
            s_mov_b32 s59, vcc_lo""")
        if o["numa"] == "far":
            self("s_not_b32 s59, s59")
        elif o["numa"] == "mix":
            self("s_xor_b32 s10, s4, s6\ns_bitcmp1_b32 s10, 0\ns_cselect_b32 s59, -1, 0\ns_xor_b32 s59, s59, 0x33335555")
        if o["early"]:
            self("s_and_b32 s59, s59, -4\ns_or_b32 s59, s59, s50")
        self(f"""
            v_mov_b32 v6, 1
            v_mov_b32 v7, s59
            ds_write_b64 v1, v[6:7] offset:{C_VOTE}""")

    def series(self):
        if self.o["series"]:
            self(f"""
                s_memrealtime s[78:79]
                s_lshl_b32 s10, s3, 5
                s_add_u32 s10, s10, s58
                s_lshl_b32 s10, s10, 2
                v_mov_b32 v6, s10
                s_waitcnt lgkmcnt(0)
                v_mov_b32 v7, s78
                ds_write_b32 v6, v7 offset:{L_SER}""")

    def advance_window(self, may_jump):
        self.series()
        step = WIN * (4 if self.o["ilv"] else 1)
        self(f"s_add_u32 s58, s58, 1\ns_add_u32 s57, s57, {step}")
        if may_jump:
            self(f"""
                s_bitcmp1_b32 s58, 1
                s_cselect_b32 s10, 0, {BATCH - 4 * step}
                s_add_u32 s57, s57, s10
                s_cmp_eq_u32 s58, 16
                s_cselect_b32 s57, s56, s57
                s_cselect_b32 s40, s20, s40
                s_cselect_b32 s41, s63, s41""")
        self("s_bitcmp1_b32 s59, s58\ns_cselect_b64 s[60:61], -1, 0")

    def issue(self, t, slot, wait):
        vo = 2 + (slot & 1)
        self(f"v_cndmask_b32 v{vo}, v{48 + t}, v{56 + t}, s[60:61]")
        if wait == "ctl":
            go = self.lab("go")
            self(f"""
                s_waitcnt vmcnt({6 + self.o["wadd"]})
                s_add_u32 s70, s70, s68
                s_cbranch_scc1 {go}
                s_waitcnt vmcnt({3 + self.o["wadd"]})
                s_add_u32 s71, s71, s69
                s_cbranch_scc0 {go}
                s_waitcnt vmcnt({self.o["wadd"]})
                {go}:""")
        elif wait is not None:
            self(f"s_waitcnt vmcnt({wait})")
        for j in range(3):
            r = 64 + slot * 12 + j * 4
            self(f"buffer_load_dwordx4 v[{r}:{r+3}], v{vo}, s[40:43], s57 offen offset:{128 * j} nt")

    def consume_k(self, slot):
        t = slot & 7
        r = 64 + slot * 12
        for i in range(12):
            c = "0" if i == 0 else f"v{20 + t}"
            self(f"v_dot2_f32_bf16 v{20 + t}, v{r + i}, v{8 + i}, {c}")
        if t == 7:
            self("s_nop 2")
            for k in range(4):
                self(f"v_add_f32_dpp v{20 + k}, v{20 + k}, v{20 + k} row_shl:4 row_mask:0xf bank_mask:0x5")
            for k in range(4):
                self(f"v_add_f32_dpp v{20 + k}, v{24 + k}, v{24 + k} row_shr:4 row_mask:0xf bank_mask:0xa")
            for k in range(4):
                self(f"v_add_f32_dpp v{24 + k}, v{20 + k}, v{20 + k} quad_perm:[2,3,0,1] row_mask:0xf bank_mask:0xf")
            self("""
                v_cndmask_b32 v20, v24, v26, s[64:65]
                v_cndmask_b32 v21, v25, v27, s[64:65]
                s_nop 0
                v_add_f32_dpp v24, v20, v20 quad_perm:[1,0,3,2] row_mask:0xf bank_mask:0xf
                v_add_f32_dpp v25, v21, v21 quad_perm:[1,0,3,2] row_mask:0xf bank_mask:0xf
                v_cndmask_b32 v28, v24, v25, s[66:67]""")
            self.bf16_round(28)
            self(f"""
                v_mul_f32 v28, {f32(192 ** -0.5)}, v28
                v_cvt_pk_bf16_f32 v28, v28, v28
                ds_write_b16 v4, v28 offset:{L_S + (slot >> 3) * 512}""")

    def consume_v(self, slot):
        t = slot & 7
        r = 64 + slot * 12
        a = 20 + (slot & 1) * 4
        if t == 0:
            self("s_waitcnt lgkmcnt(0)")
        for w in range(4):
            self(f"v_perm_b32 v{a + w}, v{28 + (t >> 1)}, v{28 + (t >> 1)}, v{32 + (t & 1) * 4 + w}")
        self("s_nop 1")
        for j in range(3):
            self(f"v_mfma_f32_16x16x32_bf16 v[{8 + 4*j}:{11 + 4*j}], v[{a}:{a+3}], v[{r + 4*j}:{r + 4*j + 3}], v[{8 + 4*j}:{11 + 4*j}]")

    def flush_acc(self):
        self(f"""
            s_mov_b32 exec_lo, 0x00ff00ff
            s_mov_b32 exec_hi, 0xff00ff00
            s_nop 5
            ds_write_b128 v41, v[8:11] offset:{L_ORED}
            ds_write_b128 v41, v[12:15] offset:{L_ORED + 256}
            ds_write_b128 v41, v[16:19] offset:{L_ORED + 512}""")

    def publish_o(self):
        r = 64
        self("L_pub:\ns_mov_b32 exec_hi, 0xffff")
        for k in range(8):
            self(f"ds_read_b128 v[{r + 4*k}:{r + 3 + 4*k}], v40 offset:{L_ORED + 768 * k}")
        for k in range(4):
            self(f"s_waitcnt lgkmcnt({6 - 2*k})")
            for e in range(4):
                self(f"v_add_f32 v{r + 8*k + e}, v{r + 8*k + e}, v{r + 4 + 8*k + e}")
        for e in range(4):
            self(f"v_add_f32 v{r + e}, v{r + e}, v{r + 8 + e}\nv_add_f32 v{r + 16 + e}, v{r + 16 + e}, v{r + 24 + e}")
        for e in range(4):
            self(f"v_add_f32 v{r + e}, v{r + e}, v{r + 16 + e}")
        for e in range(4):
            self(f"v_mul_f32 v{r + e}, s73, v{r + e}")
        self.tag_data(r, 44)
        self(f"""
            buffer_store_dwordx4 v[{r}:{r+3}], v42, s[44:47], s13 offen {self.o["tst"]}
            s_mov_b64 exec, -1
            s_cmp_ge_u32 s3, 4
            s_cbranch_scc1 L_pubdone""")

    def streamer(self):
        o = self.o
        W = "ctl" if o["ctl"] else 3
        ROT = {0: "v_lshlrev_b32 v8, 6, v8",
               1: "s_lshr_b32 s10, s2, 3\ns_and_b32 s10, s10, 28\nv_lshl_add_u32 v8, v8, 6, s10",
               2: "s_lshr_b32 s10, s2, 1\ns_and_b32 s10, s10, 28\nv_lshl_add_u32 v8, v8, 6, s10",
               3: "s_and_b32 s10, s2, 3\ns_lshl_b32 s10, s10, 3\nv_lshl_add_u32 v8, v8, 6, s10"}[o["rot"]]
        self(f"""
            s_getpc_b64 s[14:15]
            L_pc:
            s_add_u32 s14, s14, L_table-L_pc
            s_addc_u32 s15, s15, 0
            v_lshrrev_b32 v8, 3, v0
            {ROT}
            s_mul_i32 s56, s6, {REGION}
            s_mul_i32 s10, s5, {WIN if o['ilv'] else 4 * WIN}
            s_add_u32 s56, s56, s10
            s_max_u32 s12, s2, 16
            s_sub_u32 s12, s12, 16
            s_mul_i32 s12, s12, 205
            s_lshr_b32 s12, s12, 11
            s_mov_b32 s50, s12
            s_cmp_ge_u32 s12, 12
            s_cselect_b32 s13, 12, 0
            s_sub_u32 s10, s12, s13
            s_lshl_b32 s10, s10, 3
            s_and_b32 s11, s2, 7
            s_add_u32 s10, s10, s11
            s_lshl_b32 s10, s10, 22
            s_and_b32 s11, s2, 63
            s_lshl_b32 s11, s11, 7
            s_add_u32 s10, s10, s11
            s_add_u32 s10, s10, 0x80000
            s_add_u32 s11, s10, 0x2000
            s_mov_b32 s54, {KV_BYTES}
            s_mov_b32 s55, 0x20000
            s_setprio 2""")
        TAB = "\n".join(f"global_load_dwordx4 v[{48 + 4*i}:{51 + 4*i}], v8, s[14:15] offset:{(i >> 1) * 2048 + (i & 1) * 16}"
                        for i in range(4))
        if o["tabe"] == 1:
            self(TAB)
        self.args_ready()
        if o["tabe"] == 2:
            self(TAB)
        TIME = "s_waitcnt vmcnt({})\ns_memtime s[10:11]\ns_waitcnt vmcnt({})\ns_memtime s[12:13]"
        self(f"""
            s_cmp_eq_u32 s13, 0
            s_cselect_b32 s52, s18, s20
            s_cselect_b32 s53, s19, s21
            s_and_b32 s53, s53, 0xffff
            {"s_barrier" if o["bar2"] else ""}
            s_cmp_lg_u32 s3, 0
            s_cbranch_scc1 L_noprobe
            s_mov_b64 exec, 1
            buffer_load_dword v6, v1, s[52:55], s10 offen nt
            buffer_load_dword v7, v1, s[52:55], s11 offen nt
            s_mov_b64 exec, -1
            {"" if o["bar2"] else TIME.format(1, 0)}
            L_noprobe:
            s_barrier""")
        if o["tabsrc"]:
            self("s_lshl_b32 s14, s2, 12\ns_add_u32 s14, s14, s26\ns_addc_u32 s15, s27, 0")
        if not o["tabe"]:
            self(TAB)
        self.srd(44, 36, WS_END)
        self("s_cmp_lg_u32 s3, 0\ns_cbranch_scc1 L_pre")
        self(f"""
            {(TIME.format(1, 0) if o["tabe"] else TIME.format(5, 4)) if o["bar2"] else ""}
            s_waitcnt lgkmcnt(0)
            s_sub_u32 s10, s12, s10
            s_cmp_le_u32 s10, {o["gap"]}
            s_cselect_b32 s62, 1, 0
            s_xor_b32 s62, s62, s9""")
        if o["early"]:
            self("""
                s_sub_u32 s10, s2, 16
                s_mul_i32 s11, s50, 10
                s_sub_u32 s11, s10, s11
                s_cmp_ge_u32 s10, 30
                s_cbranch_scc1 L_notally
                s_cmp_ge_u32 s11, 7
                s_cbranch_scc1 L_notally
                s_lshl_b32 s10, s62, 3
                s_lshl_b32 s10, 1, s10
                s_lshl_b32 s11, s50, 2
                v_mov_b32 v6, s10
                v_lshl_add_u32 v5, v2, 6, s11
                s_mov_b64 exec, 3
                global_atomic_add v5, v6, s[34:35] offset:128 sc1
                s_mov_b64 exec, -1
                L_notally:""")
        for k in range(2):
            self(f"""
                s_load_dwordx2 s[92:93], s[34:35], {64 * k}
                s_waitcnt lgkmcnt(0)
                s_cmp_lg_u32 s92, 0
                s_cbranch_scc1 L_ndone
                s_sleep {o["nsleep"]}""")
        self(f"""
            s_mov_b32 s12, 0x40000
            L_npoll:
            global_load_dwordx2 v[6:7], v1, s[34:35] sc1
            s_waitcnt vmcnt(0)
            v_readfirstlane_b32 s92, v6
            v_readfirstlane_b32 s93, v7
            s_cmp_lg_u32 s92, 0
            s_cbranch_scc1 L_ndone
            s_sleep 4
            s_sub_u32 s12, s12, 1
            s_cbranch_scc0 L_npoll
            s_branch L_end
            L_ndone:
            s_lshl_b32 s11, s7, 1
            s_or_b32 s10, s62, s11
            s_lshl_b32 s11, s2, 7
            s_add_u32 s11, s11, {VR}
            v_mov_b32 v6, s92
            v_mov_b32 v7, s10
            v_lshlrev_b32 v5, 3, v2
            s_mov_b64 exec, 0xffff
            buffer_store_dwordx2 v[6:7], v5, s[44:47], s11 offen sc1
            ds_write_b32 v1, v6 offset:{C_NONCE}
            s_mov_b64 exec, -1""")
        self.stamp(1)
        if o["early"]:
            self(f"""
                s_lshl_b32 s14, s6, 2
                s_add_u32 s14, s14, s5
                s_lshl_b32 s14, s14, 3
                s_add_u32 s15, s14, 4
                s_mul_i32 s15, s15, 3
                s_lshr_b32 s15, s15, 10
                s_lshl_b32 s15, s15, 2
                s_add_u32 s15, s15, 128
                {"s_waitcnt vmcnt(0)" if o["edelay"] == 0 else f"s_sleep {o['edelay']}"}""")
            for k in range(2):
                self(f"""
                    s_load_dword s50, s[34:35], s15
                    s_waitcnt lgkmcnt(0)
                    s_and_b32 s10, s50, 0x404
                    s_cbranch_scc1 L_edone
                    s_xor_b32 s15, s15, 64
                    s_sleep {o["esleep"]}""")
            self(f"""
                s_mov_b32 s12, 0x40000
                v_mov_b32 v5, s15
                L_epoll:
                global_load_dword v6, v5, s[34:35] sc1
                s_waitcnt vmcnt(0)
                v_readfirstlane_b32 s50, v6
                s_and_b32 s10, s50, 0x404
                s_cbranch_scc1 L_edone
                s_sleep 8
                s_sub_u32 s12, s12, 1
                s_cbranch_scc0 L_epoll
                s_branch L_end
                L_edone:
                s_lshr_b32 s50, s50, 10
                s_add_u32 s10, s2, s93
                s_lshr_b32 s10, s10, 2
                s_xor_b32 s50, s50, s10
                s_add_u32 s10, s14, 1
                s_mul_i32 s10, s10, 3
                s_lshr_b32 s10, s10, 6
                s_xor_b32 s10, s10, s50
                s_and_b32 s10, s10, 1
                s_add_u32 s11, s14, 3
                s_mul_i32 s11, s11, 3
                s_lshr_b32 s11, s11, 6
                s_xor_b32 s11, s11, s50
                s_and_b32 s11, s11, 1
                s_lshl_b32 s11, s11, 1
                s_or_b32 s10, s10, s11
                s_or_b32 s10, s10, 4
                v_mov_b32 v6, s10
                ds_write_b32 v1, v6 offset:{C_EARLY}""")
        self("""
            s_waitcnt vmcnt(1)
            s_branch L_tabok
            L_pre:
            s_waitcnt vmcnt(0)
            L_tabok:
            v_mov_b32 v9, 0
            v_and_b32 v40, 7, v0
            v_lshlrev_b32 v40, 4, v40""")
        for i in range(16):
            self(f"v_add_u32 v{48 + i}, v{48 + i}, v40")
        self.srd(40, 18, KV_BYTES)
        self(f"""
            s_and_b32 s63, s21, 0xffff
            v_lshlrev_b32 v4, 1, v0
            s_mov_b32 s57, s56
            s_mov_b32 s58, 0
            s_mov_b32 s68, {o["boost0"] << 28}
            s_mov_b32 s69, 0
            s_lshl_b32 s70, s3, 30
            s_lshl_b32 s71, s3, 30
            s_mov_b32 s72, 0
            s_mov_b32 s93, 1""")
        self("s_lshr_b32 s10, s3, 1\ns_cmp_lg_u32 s10, s4\ns_cselect_b64 s[60:61], -1, 0")

        def selectors(par):
            lo_sel, hi_sel = ((0x0c0c0100, 0x01000c0c), (0x0c0c0302, 0x03020c0c))[par]
            self(f"v_and_b32 v5, 7, v0\nv_mov_b32 v28, 0x0c0c0c0c\nv_mov_b32 v29, 0x{lo_sel:08x}\nv_mov_b32 v30, 0x{hi_sel:08x}")
            for w in range(4):
                r = 32 + par * 4 + w
                self(f"""
                    v_cmp_eq_u32 vcc, {2*w}, v5
                    v_cmp_eq_u32 s[10:11], {2*w + 1}, v5
                    s_nop 0
                    v_cndmask_b32 v{r}, v28, v29, vcc
                    v_cndmask_b32 v{r}, v{r}, v30, s[10:11]""")

        def addresses():
            self(f"""
                v_lshlrev_b32 v41, 1, v40
                v_bfe_u32 v6, v0, 4, 1
                v_lshl_add_u32 v41, v6, 4, v41
                v_lshrrev_b32 v6, 5, v0
                v_mul_u32_u24 v6, 768, v6
                v_add_u32 v41, v41, v6
                v_and_b32 v42, 63, v0
                v_lshlrev_b32 v42, 4, v42
                s_lshl_b32 s13, s6, 5
                s_add_u32 s13, s13, s8
                s_lshl_b32 s13, s13, 10
                s_add_u32 s13, s13, {OP + 3 * 8192}""")

        def nonce_tags():
            self(f"ds_read_b32 v6, v1 offset:{C_NONCE}\ns_waitcnt lgkmcnt(0)\nv_readfirstlane_b32 s92, v6")
            self.tags(44)

        def only(wave, code):
            sk = self.lab("on")
            self(f"s_cmp_lg_u32 s3, {wave}\ns_cbranch_scc1 {sk}")
            code()
            self(f"{sk}:")

        idle = [self.masks, lambda: selectors(0), lambda: selectors(1), addresses, nonce_tags]
        assert (o["agn"] <= o["vat"] < 13) if o["early"] else (o["vat"] + 2 < o["agn"] <= 8)
        for n in range(15):
            if n == o["agn"]:
                if o["early"]:
                    self.spin_lds(C_EARLY, 4, sleep=0)
                    self("s_mov_b32 s59, s10")
                else:
                    self.spin_lds(C_VOTE, 1, sleep=0, wide=True)
                    self("s_mov_b32 s59, s11")
                self("s_bitcmp1_b32 s59, 0\ns_cselect_b64 s[60:61], -1, 0")
                self.stamp(2)
            if n == 8:
                self.advance_window(False)
            self.issue(n & 7, n, None if n < 2 else o["w0"] if n < o["agn"] else o["pw"])
            if n == o["vat"]:
                only(1, self.vote_load)
            if n == o["vat"] + 2:
                only(1, lambda: (self("s_waitcnt vmcnt(6)"), self.vote_eval()))
            if n == o["qat"]:
                only(2, lambda: self.lds_inc(C_MARK))
            if 8 <= n < 8 + len(idle):
                idle[n - 8]()
        self.stamp(3)
        if o["early"]:
            self.spin_lds(C_VOTE, 1, sleep=0, wide=True)
            self("s_mov_b32 s59, s11")
        self("s_mov_b32 s62, 0")

        def progress():
            sk = self.lab("pg")
            self(f"""
                s_cmp_lg_u32 s3, 0
                s_cbranch_scc1 {sk}
                s_memrealtime s[10:11]
                s_add_u32 s72, s72, 4
                v_mov_b32 v6, s72
                s_waitcnt lgkmcnt(0)
                s_or_b32 s10, s10, 1
                v_mov_b32 v7, s10
                ds_write_b32 v6, v7 offset:{C_T}
                {sk}:
                v_add_u32 v4, 1024, v4
                s_add_u32 s62, s62, 1""")

        def body(consume, vphase=False):
            for i in range(16):
                if vphase and i in (0, 8):
                    self(f"ds_read_b128 v[28:31], v4 offset:{L_P + (i >> 3) * 512}")
                if vphase and i > 0:
                    self(f"s_cbranch_vccnz L_dr{i}" if (i >= 12 or i == 1) else f"s_cbranch_vccnz L_cons{i}")
                if o["ctl"] and i % 4 == 2:
                    self(f"ds_read_b64 v[6:7], v1 offset:{C_CTL}\ns_memrealtime s[74:75]")
                if o["ctl"] and i % 4 == 3:
                    self(f"""
                        s_waitcnt lgkmcnt(0)
                        v_readfirstlane_b32 s68, v6
                        v_readfirstlane_b32 s69, v7
                        s_lshl_b32 s10, s74, 5
                        s_mul_i32 s11, s69, s93
                        s_add_u32 s93, s93, 2
                        s_sub_u32 s10, s10, s68
                        s_sub_u32 s10, s10, s11
                        s_cmp_eq_u32 s69, 0
                        s_cselect_b32 s10, {(o["boost0"] << 22) // o["gain"]}, s10""")
                    self.levels("s68", "s69")
                if vphase and i == o["mat"]:
                    self("s_lshl_b32 s10, s3, 4\ns_or_b32 s10, s10, s62\ns_cmp_lg_u32 s10, 0x26\ns_cbranch_scc1 L_nomark")
                    self.lds_inc(C_MARK)
                    self("L_nomark:")
                if i in (1, 9):
                    self.advance_window(i == 1)
                self.issue((i - 1) & 7, (i - 1) & 15, W)
                if vphase:
                    self(f"L_cons{i}:")
                consume(i)

        self.spin_lds(C_QRDY, 3)
        self("L_kbatch:")
        for j in range(3):
            self(f"ds_read_b128 v[{8 + 4*j}:{11 + 4*j}], v40 offset:{L_Q + 128 * j}")
        self("v_add_u32 v40, 384, v40\ns_waitcnt lgkmcnt(0)")
        if o["stamps"]:
            self("s_cmp_lg_u32 s62, 0\ns_cbranch_scc1 L_kloop")
            self.stamp(4)
        self("L_kloop:")
        body(self.consume_k)
        progress()
        self("""
            s_bitcmp1_b32 s62, 0
            s_cbranch_scc1 L_kloop
            s_bitcmp1_b32 s62, 1
            s_cbranch_scc1 L_kbatch""")
        self.lds_inc(C_KSEG)
        self("s_cmp_lt_u32 s62, 8\ns_cbranch_scc1 L_kbatch")
        self.stamp(5)
        self(f"""
            v_lshrrev_b32 v4, 3, v0
            v_lshlrev_b32 v4, 4, v4
            v_add_u32 v40, {3 * 6144}, v42
            s_mov_b32 s62, 0
            s_mov_b32 s73, 4
            s_mov_b64 vcc, 0
            L_vseg:""")
        self.spin_lds(C_PRDY, "s73")
        self("s_mov_b32 s73, 8")
        self("L_vbatch:")
        for i in range(12):
            self(f"v_mov_b32 v{8 + i}, 0")
        self("L_vloop:")
        body(self.consume_v, vphase=True)
        self("s_cbranch_vccnz L_vflush")
        progress()
        self("""
            s_cmp_eq_u32 s62, 7
            s_cselect_b64 vcc, -1, 0
            s_bitcmp1_b32 s62, 0
            s_cbranch_scc1 L_vloop
            s_sub_u32 s62, s62, 1
            L_vflush:""")
        self.flush_acc()
        self("s_lshl_b32 s10, s62, 1\nv_mov_b32 v7, s10")
        self.lds_inc(C_OCNT - 2, ret=True, addr="v7")
        self("""
            s_cbranch_vccnz L_vlast
            s_add_u32 s62, s62, 1
            v_add_u32 v41, 6144, v41
            s_cmp_eq_u32 s62, 4
            s_cbranch_scc1 L_vseg
            s_branch L_vbatch""")
        self("L_dr1:")
        self.lds_inc(C_ISS)
        self.spin_lds(C_SC + 24, 1, wide=True)
        self("s_mov_b32 s73, s11\ns_branch L_cons1")
        for i in (12, 13, 14, 15):
            self(f"L_dr{i}:\ns_waitcnt vmcnt({3 * (15 - i)})\ns_branch L_cons{i}")
        self("L_vlast:")
        self.stamp(7)
        self("s_cmp_lg_u32 s10, 3\ns_cbranch_scc1 L_nolast")
        self.publish_o()
        self.stamp(8)
        self("L_nolast:")
        if o["series"]:
            self(f"""
                s_lshl_b32 s10, s3, 7
                v_mov_b32 v6, s10
                v_mov_b32 v7, s87
                ds_write_b32 v6, v7 offset:{L_SER + 124}
                v_and_b32 v6, 31, v0
                v_lshlrev_b32 v6, 2, v6
                v_add_u32 v6, s10, v6
                ds_read_b32 v7, v6 offset:{L_SER}
                s_lshl_b32 s10, s2, 9
                s_add_u32 s10, s10, {STAMPS + 0x100000}
                v_add_u32 v6, s10, v6
                s_waitcnt lgkmcnt(0)
                global_store_dword v6, v7, s[36:37]""")
        self("s_branch L_end")

    def item_loads(self, part):
        if part < 2:
            for rho in range(8):
                r = 48 + (part * 8 + rho) * 2
                self(f"buffer_load_dwordx2 v[{r}:{r+1}], v44, s[40:43], s13 offen nt")
                self(f"s_add_u32 s13, s13, {'s71' if rho == 7 else 's70'}")
        else:
            for rho in range(4):
                r = 80 + rho * 2
                self(f"buffer_load_dwordx2 v[{r}:{r+1}], v45, s[40:43], s13 offen nt")
                if rho < 3:
                    self("s_add_u32 s13, s13, s70")

    def frag_norm(self):
        for i in range(10):
            self(f"v_lshlrev_b32 v{8 + 2*i}, 16, v{28 + i}\nv_and_b32 v{9 + 2*i}, 0xffff0000, v{28 + i}")
        self("s_waitcnt lgkmcnt(0)")
        for i in range(20):
            self(f"v_sub_f32 v{8 + i}, v{8 + i}, v40")
        for i in range(10):
            self(f"v_cvt_pk_bf16_f32 v{28 + i}, v{8 + 2*i}, v{9 + 2*i}")
        for i in range(10):
            self(f"v_lshlrev_b32 v{8 + 2*i}, 16, v{28 + i}\nv_and_b32 v{9 + 2*i}, 0xffff0000, v{28 + i}")
        for i in range(20):
            self(f"v_mul_f32 v{8 + i}, v{8 + i}, v41")
        for i in range(10):
            self(f"v_cvt_pk_bf16_f32 v{144 + i}, v{8 + 2*i}, v{9 + 2*i}")

    def item_compute(self):
        for s in range(3):
            self(f"s_waitcnt vmcnt({(12, 4, 0)[s]})")
            nm = 4 if s < 2 else 2
            for e in range(4):
                for m in range(nm):
                    lo = 48 + (s * 8 + 2 * m) * 2 + (e >> 1)
                    self(f"v_perm_b32 v{88 + s*16 + e*nm + m}, v{lo + 2}, v{lo}, s{68 + (e & 1)}")
            self("s_nop 1")
            for e in range(4):
                a = 88 + s * 16 + e * nm
                d = 128 + e * 4
                c = "0" if s == 0 else f"v[{d}:{d+3}]"
                if s < 2:
                    self(f"v_mfma_f32_16x16x32_bf16 v[{d}:{d+3}], v[{a}:{a+3}], v[{144 + 4*s}:{147 + 4*s}], {c}")
                else:
                    self(f"v_mfma_f32_16x16x16_bf16 v[{d}:{d+3}], v[{a}:{a+1}], v[152:153], {c}")
        self("s_nop 7")
        for r in range(4):
            self(f"v_cndmask_b32 v{128 + r}, v{128 + r}, v{132 + r}, s[66:67]")
            self(f"v_cndmask_b32 v{136 + r}, v{136 + r}, v{140 + r}, s[66:67]")
        for r in range(4):
            self(f"v_cndmask_b32 v{128 + r}, v{128 + r}, v{136 + r}, s[64:65]")
        self(f"ds_write_b128 v46, v[128:131] offset:{L_ORED}")

    def gather_tile(self, slot, sleep, silu, dst):
        self(f"""
            s_lshl_b32 s13, {slot}, 3
            s_add_u32 s13, s13, s72
            s_lshl_b32 s13, s13, 10""")
        self.poll([(8, "buffer_load_dwordx4 v[8:11], v229, s[44:47], s13 offen sc1"),
                   (12, "buffer_load_dwordx4 v[12:15], v229, s[44:47], s13 offen offset:3072 sc1")], sleep)
        for e in range(4):
            self(f"v_add_f32 v{8 + e}, v{8 + e}, v{12 + e}")
        if silu:
            for e in range(4):
                self.bf16_round(8 + e)
            for e in range(4):
                self(f"v_mul_f32 v{12 + e}, {f32(-1.4426950408889634)}, v{8 + e}")
            for e in range(4):
                self(f"v_exp_f32 v{12 + e}, v{12 + e}")
            for e in range(4):
                self(f"v_add_f32 v{12 + e}, 1.0, v{12 + e}")
            for e in range(4):
                self(f"v_rcp_f32 v{12 + e}, v{12 + e}")
            for e in range(4):
                self(f"v_mul_f32 v{8 + e}, v{8 + e}, v{12 + e}")
        self(f"""
            v_cvt_pk_bf16_f32 v8, v8, v9
            v_cvt_pk_bf16_f32 v10, v10, v11
            ds_write_b16 v233, v8 offset:{dst}
            ds_write_b16_d16_hi v233, v8 offset:{dst + 8}
            ds_write_b16 v233, v10 offset:{dst + 16}
            ds_write_b16_d16_hi v233, v10 offset:{dst + 24}""")

    def gather_o(self, batches, sleep, fl="sc1", hook=None):
        loads = []
        for n, b in enumerate(batches):
            for i in range(2):
                r = 8 + 8 * n + 4 * i
                self(f"s_add_u32 s{16 + 2*n + i}, s62, {8192 * b + 4096 * i}")
                loads.append((r, f"buffer_load_dwordx4 v[{r}:{r+3}], v47, s[44:47], s{16 + 2*n + i} offen {fl}"))

        def finish():
            for n, b in enumerate(batches):
                r = 8 + 8 * n
                for e in range(4):
                    self(f"v_add_f32 v{r + e}, v{r + e}, v{r + 4 + e}")
                self.rows4_reduce(r)
                self(f"v_cvt_pk_bf16_f32 v{r}, v{r}, v{r}\nds_write_b16 v44, v{r} offset:{L_OBUF + 384 * b}")

        warm = self.o["warm"] and len(batches) == 1
        self.poll(loads, sleep, hook=hook, inner=finish if warm else None)
        if not warm:
            finish()

    def tile_setup(self):
        self(f"""
            s_mov_b32 s42, {1536 * 1280}
            s_cmp_eq_u32 s76, 0
            s_cselect_b32 s40, s24, s30
            s_cselect_b32 s41, s25, s31
            s_cselect_b32 s42, {6144 * 1280}, s42
            s_and_b32 s41, s41, 0xffff
            s_mov_b32 s43, 0x20000
            s_and_b32 s70, s77, 31
            s_mul_i32 s70, s70, {192 * 1280}
            s_lshl_b32 s10, s39, 8
            s_add_u32 s70, s70, s10
            s_add_u32 s71, s70, {192 * 1280}
            s_mov_b32 m0, {L_WT}
            v_lshlrev_b32 v7, 1, v4
            v_xor_b32 v7, v7, v3
            v_mul_u32_u24 v232, 1280, v4
            v_lshl_add_u32 v232, v7, 4, v232
            v_bfe_u32 v234, v2, 1, 1
            v_lshl_add_u32 v234, s72, 2, v234
            v_bfe_u32 v235, v2, 2, 2
            v_lshlrev_b32 v7, 1, v235
            v_xor_b32 v234, v234, v7
            v_lshlrev_b32 v234, 4, v234
            v_lshl_add_u32 v234, v235, 8, v234
            v_and_b32 v235, 1, v2
            v_lshl_add_u32 v234, v235, 3, v234
            v_xor_b32 v235, 32, v234
            v_mul_u32_u24 v7, {2 * TROW}, v4
            v_add_u32 v7, {L_WT}, v7
            v_add_u32 v234, v234, v7
            v_add_u32 v235, v235, v7""")

    def tile_issue(self, limit, depth):
        lp = self.lab("tl")
        self(f"""
            {lp}:
            s_waitcnt vmcnt({depth - 1})
            buffer_load_dwordx4 v232, s[40:43], s70 offen nt lds
            s_add_u32 m0, m0, {TROW}
            s_add_u32 s70, s70, {4 * 1280}
            s_cmp_lt_u32 s70, {limit}
            s_cbranch_scc1 {lp}""")

    def fragments(self):
        for s in range(6):
            for e in range(2):
                for hf in range(2):
                    r = 180 + s * 8 + e * 4 + hf * 2
                    self(f"ds_read_b64_tr_b16 v[{r}:{r+1}], v{234 + e} offset:{(8 * s + hf) * TROW}")

    def project(self, final):
        if final:
            self("s_waitcnt lgkmcnt(0)\ns_barrier")
        for s in range(6):
            self(f"ds_read_b128 v[{8 + 4*s}:{11 + 4*s}], v228 offset:{L_OBUF + 64 * s}")
        for s in range(6):
            self(f"s_waitcnt lgkmcnt({5 - s})")
            for e in range(2):
                b = 180 + s * 8 + e * 4
                d = 32 + e * 4
                c = "0" if s == 0 else f"v[{d}:{d+3}]"
                self(f"v_mfma_f32_16x16x32_bf16 v[{d}:{d+3}], v[{8 + 4*s}:{11 + 4*s}], v[{b}:{b+3}], {c}")
        self("s_mov_b32 vcc_lo, 0xffff0000\ns_mov_b32 vcc_hi, 0\ns_nop 6")
        for r in range(4):
            self(f"v_cndmask_b32 v{32 + r}, v{32 + r}, v{36 + r}, vcc")
        self.tag_data(32, 236)
        self("s_mov_b32 exec_hi, 0")
        if final and self.o["local"]:
            self("""
                s_cmp_eq_u32 s58, 0
                s_cbranch_scc1 L_ythru
                buffer_store_dwordx4 v[32:35], v229, s[44:47], s75 offen
                s_branch L_ydone
                L_ythru:""")
        self("buffer_store_dwordx4 v[32:35], v229, s[44:47], s75 offen sc1")
        self("L_ydone:\ns_mov_b64 exec, -1" if final else "s_mov_b64 exec, -1")

    def prep(self, g):
        o = self.o
        lp, dn, keep = self.lab("fl"), self.lab("fd"), self.lab("fk")
        AGN = "s_mov_b64 s[60:61], s[52:53]\ns_mov_b64 s[54:55], s[52:53]"
        if g == 0 and o["agn"]:
            AGN = """
                s_lshr_b32 s10, s59, 16
                s_xor_b32 s10, s10, s4
                s_bitcmp1_b32 s10, 0
                s_cselect_b32 s54, -1, 0
                s_xor_b32 s54, s54, 0xffff0000
                s_cmp_eq_u32 s72, 0
                s_cselect_b32 s54, s54, s52
                s_mov_b32 s55, s53
                s_or_b64 s[60:61], s[52:53], s[54:55]"""
        self.spin_lds(C_KSEG, 4 * (g + 1), sleep=8)
        self(f"""
            ds_read_b128 v[32:35], v230 offset:{L_S + 4096 * g}
            s_lshr_b32 s62, s59, 16
            s_xor_b32 s62, s62, s59
            s_lshl_b32 s11, s72, 1
            s_add_u32 s11, s11, {8 * g}
            s_lshr_b32 s10, s62, s11
            s_bitcmp1_b32 s10, 0
            s_cselect_b32 s52, -1, 0
            s_bitcmp1_b32 s10, 1
            s_cselect_b32 s53, -1, 0
            {AGN}
            s_lshl_b32 s13, s2, 13
            s_add_u32 s13, s13, {SC + 4096 * g}
            s_xor_b32 s14, s13, {4 << 13}
            s_lshl_b32 s15, s2, 8
            s_add_u32 s15, s15, {FL + 128 * g}
            s_waitcnt lgkmcnt(0)
            s_cmp_eq_u64 s[60:61], 0
            s_cbranch_scc1 {keep}s
            s_mov_b64 exec, s[60:61]
            buffer_store_dwordx4 v[32:35], v230, s[44:47], s13 offen {o["scst"]}
            s_waitcnt vmcnt(0)
            {keep}s:""")
        self.lds_inc(C_FCNT, ret=True)
        self(f"""
            s_cmp_lg_u32 s10, {4 * g + 3}
            s_cbranch_scc1 {keep}f
            s_bfe_u32 s10, s62, {(8 << 16) | (8 * g)}
            {"" if (g == 0 and o["agn"]) else f"s_cbranch_scc0 {keep}f"}
            v_mov_b32 v5, s92
            v_lshlrev_b32 v6, 2, v2
            s_mov_b32 exec_hi, 0
            buffer_store_dword v5, v6, s[44:47], s15 offen sc1
            s_mov_b32 exec_hi, -1
            {keep}f:
            s_xor_b32 s56, s15, {4 << 8}
            s_mov_b32 s57, s14""")
        self.control(4 * g + 5)
        self(f"s_cmp_eq_u64 s[60:61], 0\ns_cbranch_scc1 {keep}")
        self.spin_lds(C_T + 4 * (4 * g + 5), 1, sleep=16)
        self(f"""
            s_mov_b32 s12, 0x40000
            s_mov_b64 exec, 1
            {lp}:
            buffer_load_dword v6, v1, s[44:47], s56 offen sc1
            s_waitcnt vmcnt(0)
            v_readfirstlane_b32 s10, v6
            s_cmp_eq_u32 s10, s92
            s_cbranch_scc1 {dn}
            s_sleep {o["fsleep"]}
            s_sub_u32 s12, s12, 1
            s_cbranch_scc0 {lp}
            s_branch L_end
            {dn}:
            s_mov_b64 exec, s[60:61]
            buffer_load_dwordx4 v[36:39], v230, s[44:47], s57 offen {o["scld"]}
            s_mov_b64 exec, -1
            s_waitcnt vmcnt(0)""")
        for i in range(4):
            self(f"v_cndmask_b32 v{32 + i}, v{32 + i}, v{36 + i}, {'s[54:55]' if 2 * i < o['agn'] else 's[52:53]'}")
        self(f"{keep}:")
        for i in range(4):
            self(f"v_lshlrev_b32 v{8 + 2*i}, 16, v{32 + i}\nv_and_b32 v{9 + 2*i}, 0xffff0000, v{32 + i}")
        self("v_max3_f32 v24, v8, v9, v10\nv_max3_f32 v24, v24, v11, v12\nv_max3_f32 v24, v24, v13, v14\nv_max_f32 v24, v24, v15")
        self.wave_allreduce("v_max_f32", 24, 25)
        self(f"""
            s_lshl_b32 s10, s72, 2
            v_mov_b32 v26, s10
            ds_write_b32 v26, v24 offset:{C_MAX + 16 * g}
            v_xor_b32 v26, 4, v26""")
        self.lds_inc(C_MAXC)
        self.spin_lds(C_MAXC, 4 * (g + 1), sleep=2)
        self(f"""
            ds_read_b32 v25, v26 offset:{C_MAX + 16 * g}
            s_mov_b32 s10, {f32(1.4426950408889634)}
            s_waitcnt lgkmcnt(0)
            v_max_f32 v24, v24, v25""")
        for i in range(8):
            self(f"v_sub_f32 v{8 + i}, v{8 + i}, v24")
        for i in range(8):
            self(f"v_mul_f32 v{8 + i}, s10, v{8 + i}")
        for i in range(8):
            self(f"v_exp_f32 v{8 + i}, v{8 + i}")
        for i in range(4):
            self(f"v_cvt_pk_bf16_f32 v{32 + i}, v{8 + 2*i}, v{9 + 2*i}")
        self(f"ds_write_b128 v230, v[32:35] offset:{L_P + 4096 * g}")
        self.lds_inc(C_PRDY)
        for step in (4, 2, 1):
            for i in range(step):
                self(f"v_add_f32 v{8 + i}, v{8 + i}, v{8 + step + i}")
        self.wave_allreduce("v_add_f32", 8, 9)
        self(f"""
            v_mov_b32 v25, s92
            v_mov_b32 v26, v8
            v_mov_b32 v27, s92
            v_lshlrev_b32 v9, 2, v231
            s_mov_b64 exec, 1
            ds_write_b128 v9, v[24:27] offset:{L_STAT + 64 * g}
            s_mov_b64 exec, -1""")
        if g == 1:
            self.lds_inc(C_SCNT, ret=True)
            self(f"""
                s_cmp_lg_u32 s10, 3
                s_cbranch_scc1 L_nostat
                s_mov_b64 exec, 0xff
                ds_read_b128 v[24:27], v229 offset:{L_STAT}
                s_lshl_b32 s13, s6, 3
                s_add_u32 s13, s13, s8
                s_lshl_b32 s13, s13, 7
                s_add_u32 s13, s13, {ST}
                s_waitcnt lgkmcnt(0)
                buffer_store_dwordx4 v[24:27], v229, s[44:47], s13 offen sc1
                s_mov_b64 exec, -1
                L_nostat:""")

    def scale(self):
        lp, dn = self.lab("sl"), self.lab("sd")
        self(f"""
            v_bfe_u32 v12, v2, 1, 3
            v_lshlrev_b32 v12, 7, v12
            v_lshl_add_u32 v12, v4, 5, v12
            v_and_b32 v13, 1, v2
            v_lshl_add_u32 v12, v13, 4, v12
            s_lshl_b32 s13, s6, 10
            s_add_u32 s13, s13, {ST}
            s_mov_b32 s12, 0x40000
            {lp}:
            buffer_load_dwordx4 v[8:11], v12, s[44:47], s13 offen sc1
            s_waitcnt vmcnt(0)
            v_xor_b32 v13, s92, v9
            v_bitop3_b32 v13, v13, v11, s92 bitop3:0xf6
            v_cmp_ne_u32 vcc, 0, v13
            s_cmp_eq_u64 vcc, 0
            s_cbranch_scc1 {dn}
            s_sleep 24
            s_sub_u32 s12, s12, 1
            s_cbranch_scc0 {lp}
            s_branch L_end
            {dn}:
            v_mov_b32 v9, v8""")
        self.row16_allreduce("v_max_f32", 9)
        self(f"""
            v_sub_f32 v8, v8, v9
            v_mul_f32 v8, {f32(1.4426950408889634)}, v8
            v_exp_f32 v8, v8
            s_lshl_b32 s10, s8, 1
            v_mul_f32 v10, v10, v8""")
        self.row16_allreduce("v_add_f32", 10)
        self(f"""
            v_rcp_f32 v10, v10
            v_lshlrev_b32 v11, 3, v4
            v_mul_f32 v9, v8, v10
            v_mov_b32 v8, 1
            s_lshl_b32 exec_lo, 0x10001, s10
            s_mov_b32 exec_hi, exec_lo
            ds_write_b64 v11, v[8:9] offset:{C_SC}
            s_mov_b64 exec, -1""")

    def levels(self, up, down):
        o = self.o
        self(f"""
            s_min_i32 s10, s10, {(o["cmax"] << 22) // o["gain"]}
            s_max_i32 s10, s10, {-((o["cmaxs"] << 22) // o["gains"])}
            s_max_i32 {up}, s10, 0
            s_sub_i32 {down}, 0, s10
            s_max_i32 {down}, {down}, 0
            s_mul_i32 {up}, {up}, {o["gain"] << 6}
            s_mul_i32 {down}, {down}, {o["gains"] << 6}""")

    def control(self, last, check=True):
        o = self.o
        if not o["ctl"]:
            return
        lp, dn, np_, nc = self.lab("cl"), self.lab("cd"), self.lab("cp"), self.lab("cn")
        if check:
            self(f"s_cmp_lg_u32 s72, 3\ns_cbranch_scc1 {dn}")
        self(f"""
            {lp}:
            s_add_u32 s96, s96, 1
            s_lshl_b32 s10, s96, 2
            v_mov_b32 v9, s10""")
        self.spin_lds(C_T, 1, sleep=4, addr="v9")
        self(f"""
            s_mov_b32 s97, s10
            s_lshl_b32 s13, s96, 12
            s_add_u32 s13, s13, {CT - 4096}
            s_cmp_eq_u32 s96, 1
            s_cselect_b32 s10, 0x80000000, 0
            v_lshl_or_b32 v9, v2, 7, s10
            s_mov_b32 exec_hi, 0
            buffer_load_dwordx2 v[10:11], v9, s[44:47], s13 offen sc1
            s_cmp_ge_u32 s99, 32
            s_cbranch_scc1 {np_}
            s_lshl_b32 s14, s99, 7
            s_add_u32 s14, s14, s13
            s_add_u32 s14, s14, 4096
            v_mov_b32 v12, s92
            v_mov_b32 v13, s97
            v_lshlrev_b32 v14, 3, v2
            s_mov_b32 exec_lo, 0xffff
            buffer_store_dwordx2 v[12:13], v14, s[44:47], s14 offen sc1
            s_mov_b32 exec_lo, -1
            s_waitcnt vmcnt(1)
            s_branch {np_}w
            {np_}:
            s_waitcnt vmcnt(0)
            {np_}w:
            v_cmp_eq_u32 vcc, s92, v10
            v_sub_u32 v11, s97, v11
            s_nop 0
            v_cndmask_b32 v11, 0, v11, vcc""")
        self.row16_allreduce("v_add_u32", 11)
        self(f"""
            s_nop 0
            v_readlane_b32 s10, v11, 0
            v_readlane_b32 s11, v11, 16
            s_mov_b64 exec, -1
            s_add_u32 s10, s10, s11
            s_lshl_b32 s11, s97, 5
            s_sub_u32 s11, s11, s10
            s_sub_u32 s12, s11, s98
            s_mov_b32 s98, s11
            s_cmp_lt_u32 s96, 3
            s_cbranch_scc1 {nc}""")
        if o["pmin"]:
            self("s_min_u32 s14, s12, s100\ns_mov_b32 s100, s12\ns_mov_b32 s12, s14")
        if o["ctl"] == 2:
            self(f"""
                s_lshr_b32 s12, s12, 3
                s_sub_u32 s10, s96, 1
                s_mul_i32 s10, s10, s12
                s_lshl_b32 s10, s10, 3
                s_sub_u32 s11, s11, s10
                s_sub_u32 s11, s11, s101""")
        else:
            self(f"s_sub_i32 s10, s10, s12\ns_add_i32 s10, s10, {o['bias'] * 32}")
            self.levels("s11", "s12")
        self(f"""
            v_mov_b32 v12, s11
            v_mov_b32 v13, s12
            ds_write_b64 v1, v[12:13] offset:{C_CTL}
            {nc}:
            s_cmp_lt_u32 s96, {last}
            s_cbranch_scc1 {lp}
            {dn}:""")

    def helper(self):
        o = self.o
        self.in_helper = True
        self(f"""
            L_helper:
            s_sub_u32 s72, s3, 4
            s_sub_u32 s74, s38, 48
            s_mul_i32 s61, s74, 43
            s_lshr_b32 s61, s61, 8
            s_mul_i32 s10, s61, 6
            s_sub_u32 s73, s74, s10
            s_add_u32 s61, s61, 32
            s_cmp_lt_u32 s8, 6
            s_cselect_b32 s61, s6, s61
            s_cselect_b32 s73, s8, s73
            s_cselect_b32 s74, 0, s74
            s_cselect_b32 s70, 12, 3
            s_lshl_b32 s70, s70, 10
            s_mul_i32 s71, s70, 25
            s_cmp_ge_u32 s73, 3
            s_cselect_b32 s14, 4, 0
            s_cselect_b32 s10, 3, 0
            s_add_u32 s14, s14, s72
            s_mul_i32 s14, s14, 80
            s_sub_u32 s10, s73, s10
            s_and_b32 s11, s61, 31
            s_mul_i32 s11, s11, 3
            s_add_u32 s10, s10, s11
            s_lshl_b32 s10, s10, 7
            s_mul_i32 s13, s14, s70
            s_add_u32 s13, s13, s10
            s_lshl_b32 s14, s14, 1
            v_and_b32 v3, 15, v2
            v_lshrrev_b32 v4, 4, v2
            v_mul_u32_u24 v5, 1280, v4
            v_lshl_add_u32 v5, v3, 4, v5
            v_lshrrev_b32 v6, 2, v3
            v_mul_u32_u24 v7, 1280, v6
            v_lshl_add_u32 v38, v4, 3, v7
            v_lshl_add_u32 v7, v4, 4, v7
            v_mul_u32_u24 v45, s70, v4
            v_add_lshl_u32 v44, v45, v3, 3
            v_lshlrev_b32 v45, 2, v45
            v_lshl_add_u32 v45, v3, 3, v45
            s_or_b32 s10, s2, s72""")
        self.args_ready()
        self(f"""
            s_cmp_lg_u32 s10, 0
            s_cbranch_scc1 L_nononce
            s_max_u32 s10, s94, 1
            v_mov_b32 v46, s10
            v_mov_b32 v47, s7
            v_lshlrev_b32 v43, 3, v2
            s_mov_b64 exec, 0xffff
            global_store_dwordx2 v43, v[46:47], s[34:35] sc1
            s_mov_b64 exec, -1
            L_nononce:
            s_mov_b32 s42, {640 * 1536 * 2}
            s_cmp_lt_u32 s8, 6
            s_cselect_b32 s40, s22, s28
            s_cselect_b32 s41, s23, s29
            s_cselect_b32 s42, {640 * 6144 * 2}, s42
            s_and_b32 s41, s41, 0xffff
            s_mov_b32 s43, 0x20000""")
        self.srd(48, 16, 5120)
        self.srd(44, 36, WS_END)
        self.stamp(1, 2)
        self("s_barrier\ns_barrier" if o["bar2"] else "s_barrier")
        self.stamp(2, 2)
        self("s_cmp_ge_u32 s74, 48\ns_cbranch_scc1 L_noloads")
        for i in range(5):
            self(f"buffer_load_dwordx4 v[{8 + 4*i}:{11 + 4*i}], v5, s[48:51], 0 offen offset:{256 * i}")
        self("""
            buffer_load_dwordx4 v[28:31], v7, s[48:51], s14 offen
            buffer_load_dwordx4 v[32:35], v7, s[48:51], s14 offen offset:64
            buffer_load_dwordx2 v[36:37], v38, s[48:51], s14 offen offset:128""")
        first = (3, 1, 2)[o["hsplit"]]
        for p in range(first):
            self.item_loads(p)
        self("L_noloads:")
        self.stamp(3, 2)
        self.masks()
        self.roles()
        self(f"""
            s_lshl_b32 s10, s39, 2
            s_add_u32 s10, s10, s72
            s_lshl_b32 s10, s10, 9
            s_mul_i32 s75, s77, 10240
            s_add_u32 s75, s75, s10
            s_add_u32 s75, s75, {YP}
            s_mov_b32 s68, 0x05040100
            s_mov_b32 s69, 0x07060302
            v_lshlrev_b32 v229, 4, v2
            v_and_b32 v47, 3, v2
            v_mul_u32_u24 v228, 384, v47
            v_lshl_add_u32 v228, v4, 4, v228
            v_mul_u32_u24 v233, 384, v4
            v_lshl_add_u32 v233, v6, 5, v233
            v_lshl_add_u32 v233, v47, 1, v233
            s_lshl_b32 s10, s72, 7
            v_add_u32 v233, s10, v233
            s_lshl_b32 s10, s72, 10
            v_add_u32 v230, s10, v229
            v_lshl_add_u32 v46, v6, 8, s10
            v_lshl_add_u32 v46, v4, 6, v46
            v_lshl_add_u32 v46, v47, 4, v46
            s_lshl_b32 s10, s72, 2
            v_mov_b32 v231, s10
            s_mov_b32 s60, 0
            s_cmp_ge_u32 s74, 48
            s_cbranch_scc1 L_noitem
            v_lshlrev_b32 v47, 6, v6
            s_mov_b32 s10, 0x3f803f80
            s_waitcnt vmcnt({(20, 8, 16)[o["hsplit"]]})""")
        self.stamp(4, 2)
        for i in range(20):
            self(f"v_dot2_f32_bf16 v40, v{8 + i}, s10, {'0' if i == 0 else 'v40'}")
        self("s_nop 1")
        self.row16_allreduce("v_add_f32", 40)
        self(f"v_mul_f32 v40, {f32(1 / 640)}, v40")
        for p in range(first, 3):
            self.item_loads(p)
        self("v_mov_b32 v41, 0\nv_mov_b32 v42, 0")
        for i in range(20):
            self(f"""
                v_lshlrev_b32 v38, 16, v{8 + i}
                v_and_b32 v39, 0xffff0000, v{8 + i}
                v_sub_f32 v38, v38, v40
                v_sub_f32 v39, v39, v40
                v_fmac_f32 v41, v38, v38
                v_fmac_f32 v42, v39, v39""")
        self("v_add_f32 v41, v41, v42")
        self.row16_allreduce("v_add_f32", 41)
        self(f"v_mul_f32 v41, {f32(1 / 640)}, v41")
        self.bf16_round(41)
        self(f"v_add_f32 v41, {f32(1e-5)}, v41")
        self.bf16_round(41)
        self("v_sqrt_f32 v41, v41\ns_nop 0")
        self.bf16_round(41)
        self("v_rcp_f32 v41, v41")
        self.bf16_round(40)
        self("ds_bpermute_b32 v40, v47, v40\nds_bpermute_b32 v41, v47, v41")
        self.frag_norm()
        self.stamp(5, 2)
        self.item_compute()
        self.lds_inc(C_ICNT, ret=True)
        self("s_mov_b32 s60, s10\nL_noitem:")
        self.stamp(1)
        self.stamp(6, 2)
        self.spin_lds(C_NONCE, 1, sleep=0)
        self("s_mov_b32 s92, s10")
        self.tags(236)
        self("s_cmp_lg_u32 s60, 3\ns_cbranch_scc1 L_nopub")
        for k in range(4):
            self(f"ds_read_b128 v[{8 + 4*k}:{11 + 4*k}], v229 offset:{L_ORED + 1024 * k}")
        self("""
            s_lshl_b32 s13, s61, 3
            s_add_u32 s13, s13, s73
            s_lshl_b32 s13, s13, 10
            s_waitcnt lgkmcnt(0)""")
        for e in range(4):
            self(f"v_add_f32 v{8 + e}, v{8 + e}, v{12 + e}\nv_add_f32 v{16 + e}, v{16 + e}, v{20 + e}")
        for e in range(4):
            self(f"v_add_f32 v{24 + e}, v{8 + e}, v{16 + e}")
        self.tag_data(24, 236)
        self(f"buffer_store_dwordx4 v[24:27], v229, s[44:47], s13 offen {o['qst']}\nL_nopub:")
        self.stamp(2)
        self.stamp(7, 2)
        self("s_cmp_eq_u32 s72, 3\ns_cbranch_scc1 L_noq")
        self.spin_lds(C_MARK, 1, sleep=2)
        self.gather_tile("s6", o["qsleep"], False, L_Q)
        self.lds_inc(C_QRDY)
        self("L_noq:")
        self.stamp(4)
        self.stamp(9, 2)
        self.tile_setup()
        self("s_cmp_eq_u32 s76, 2\ns_cbranch_scc1 L_noproj")
        self.spin_lds(C_QRDY, 3, sleep=16)
        self("s_cmp_eq_u32 s76, 0\ns_cbranch_scc1 L_coloc\ns_cmp_eq_u32 s72, 3\ns_cbranch_scc1 L_ftile")
        self.spin_lds(C_WRDY, 1, sleep=16)
        self.gather_tile("s77", 16, True, L_OBUF)
        self("s_branch L_fsync\nL_ftile:")
        self.tile_issue("s71", o["tdepth0"])
        self("s_waitcnt vmcnt(0)\nL_fsync:")
        self.lds_inc(C_WRDY)
        self.spin_lds(C_WRDY, 4, sleep=4)
        self.fragments()
        self("s_waitcnt lgkmcnt(0)")
        self.project(False)
        self(f"""
            s_branch L_noproj
            L_coloc:
            s_and_b32 s13, s2, 7
            s_lshl_b32 s13, s13, 7
            s_add_u32 s13, s13, {VR}
            v_lshlrev_b32 v9, 10, v2
            s_mov_b32 exec_hi, 0
            buffer_load_dwordx2 v[10:11], v9, s[44:47], s13 offen sc1
            s_waitcnt vmcnt(0)
            v_lshrrev_b32 v11, 1, v11
            v_xor_b32 v10, s92, v10
            v_bitop3_b32 v10, v10, v11, s7 bitop3:0xf6
            v_cmp_ne_u32 vcc, 0, v10
            s_mov_b32 exec_hi, -1
            s_cmp_eq_u64 vcc, 0
            s_cselect_b32 s58, 1, 0""")
        if o["tearly"]:
            self(f"s_cmp_lg_u32 s72, 3\ns_cbranch_scc1 L_noproj\ns_add_u32 s14, s70, {o['tearly'] * 4 * 1280}")
            self.tile_issue("s14", o["tdepth0"])
        self("L_noproj:")
        self.stamp(5)
        self.stamp(10, 2)
        self.spin_lds(C_VOTE, 1, sleep=4, wide=True)
        self(f"""
            s_mov_b32 s59, s11
            s_mov_b32 s96, 0
            s_mov_b32 s98, 0
            s_mov_b32 s100, -1
            s_mov_b32 s101, {((o["bias"] * 32) - o["gapr"] * 20) & 0xffffffff}
            s_cmp_eq_u32 s76, 0
            s_cselect_b32 s101, {((o["bias"] * 32) + o["gapr"] * 12) & 0xffffffff}, s101
            s_lshr_b32 s10, s2, 3
            s_mul_i32 s11, s10, 57
            s_lshr_b32 s11, s11, 9
            s_mul_i32 s12, s11, 9
            s_sub_u32 s12, s10, s12
            s_lshl_b32 s11, s11, 3
            s_and_b32 s99, s2, 7
            s_add_u32 s99, s99, s11
            s_cmp_eq_u32 s12, 1
            s_cselect_b32 s99, s99, 64""")
        self.control(4)
        self.prep(0)
        self.stamp(6)
        self.control(8)
        self.prep(1)
        self.stamp(7)
        self("s_cmp_lg_u32 s72, 3\ns_cbranch_scc1 L_pubo")
        self.control(o["sit"], check=False)
        self.scale()
        self.control(13, check=False)
        if o["pf"] == 2:
            self("""
                s_cmp_ge_u32 s2, 16
                s_cbranch_scc1 L_nopf2
                s_getpc_b64 s[14:15]
                L_pf2pc:
                s_sub_u32 s14, s14, L_pf2pc-L_vflush
                s_subb_u32 s15, s15, 0
                v_lshlrev_b32 v9, 7, v2
                v_min_u32 v10, L_helper-L_vflush, v9
                v_add_u32 v9, L_pf2pc-L_vflush, v9
                v_min_u32 v9, L_table-L_vflush, v9
                global_load_dword v254, v10, s[14:15]
                global_load_dword v254, v9, s[14:15]
                L_nopf2:""")
        self.control(14, check=False)
        self("s_cmp_lg_u32 s76, 0\ns_cbranch_scc1 L_end")

        def across(r):
            self.rows4_reduce(r)
            for ctl in ("row_ror:4", "row_ror:8"):
                self(f"s_nop 1\nv_add_f32_dpp v{r}, v{r}, v{r} {ctl} row_mask:0xf bank_mask:0xf")
            self.bf16_round(r)

        self.srd(52, 32, 5120)
        self(f"""
            v_lshrrev_b32 v52, 2, v2
            v_mul_u32_u24 v52, 10240, v52
            v_and_b32 v5, 3, v2
            v_lshl_add_u32 v52, v5, 4, v52
            v_mul_u32_u24 v53, 1280, v4
            v_lshl_add_u32 v53, v5, 1, v53
            s_lshl_b32 s62, s39, 5
            s_add_u32 s62, s62, s77
            s_lshl_b32 s16, s62, 6
            s_add_u32 s16, s16, {YP}
            s_add_u32 s17, s16, {16 * 10240}
            s_add_u32 s18, s16, {32 * 10240}
            s_lshl_b32 s62, s62, 3
            buffer_load_ushort v54, v53, s[48:51], s62 offen""")
        for e in range(4):
            self(f"v_mov_b32 v{40 + e}, 0")
        self("s_mov_b32 exec_hi, 0")
        self.poll([(40, "buffer_load_dwordx4 v[40:43], v52, s[44:47], s18 offen sc1")], 16)
        self("s_mov_b32 exec_hi, -1")
        across(40)
        self("v_lshlrev_b32 v46, 16, v54")
        YL = [(8 + 4*i, f"buffer_load_dwordx4 v[{8 + 4*i}:{11 + 4*i}], v52, s[44:47], s{16 + i} offen sc1") for i in range(2)]
        trig = {"iss": (C_ISS, 4), "o1": (C_OCNT + 12, 1), "o4": (C_OCNT + 12, 4), "w": (C_WRDY, 1), "t15": (C_T + 60, 1),
                "m2": (C_MARK, 2)}
        self.spin_lds(*trig[o["trig"]], sleep=o["tsleep"])
        self("s_setprio 3")
        if o["ytouch"] == 1:
            self("\n".join(ins for _, ins in YL))
        if o["tearly"] < 48:
            self.tile_issue("s71", o["tdepth"])
        if o["ytouch"] == 2:
            self("\n".join(ins for _, ins in YL))
        self("s_waitcnt vmcnt(0)")
        self.lds_inc(C_WRDY)
        self.stamp(8)
        self("s_branch L_frag")
        self(f"""
            L_pubo:
            s_mul_i32 s10, s72, 6144
            v_add_u32 v40, s10, v229
            v_mov_b32 v42, v229
            s_lshl_b32 s13, s6, 2
            s_add_u32 s13, s13, s72
            s_lshl_b32 s13, s13, 3
            s_add_u32 s13, s13, s8
            s_lshl_b32 s13, s13, 10
            s_add_u32 s13, s13, {OP}
            v_lshlrev_b32 v45, 1, v231""")
        self.spin_lds(C_SC, 1, sleep=16, wide=True, addr="v45")
        self("s_mov_b32 s73, s11\nv_mov_b32 v44, v236\nv_mov_b32 v45, v237\nv_mov_b32 v46, v238\nv_mov_b32 v47, v239")
        self.spin_lds(C_OCNT + (8 if o["latepub"] else 0), 4, sleep=8, addr="v1" if o["latepub"] else "v231")
        if o["latepub"] == 2:
            self.spin_lds(C_T + 60, 1, sleep=4)
        elif o["latepub"] == 3:
            self.spin_lds(C_MARK, 2, sleep=4)
        elif o["pdelay"]:
            self(f"s_sleep {o['pdelay']}")
        self("s_branch L_pub\nL_pubdone:")
        self.stamp(8)
        self(f"""
            s_cmp_lg_u32 s76, 0
            s_cbranch_scc1 L_end
            s_mov_b32 s63, 0
            s_lshl_b32 s62, s77, 15
            s_lshl_b32 s10, s72, 8
            s_add_u32 s62, s62, s10
            s_add_u32 s62, s62, {OP}
            v_lshlrev_b32 v47, 10, v4
            v_lshl_add_u32 v47, v3, 4, v47
            v_lshlrev_b32 v44, 3, v3
            v_lshl_add_u32 v44, v4, 1, v44
            s_lshl_b32 s10, s72, 7
            v_add_u32 v44, s10, v44""")
        self.spin_lds(*trig[o["gtrig"]], sleep=o["tsleep"])
        self("s_setprio 3")
        if not o["g4"]:
            self.gather_o((0, 1, 2), o["osleep"], o["old"])
            if o["g3trig"]:
                self.spin_lds(*trig[o["g3trig"]], sleep=1)

        def early_fragments():
            self(f"""
                s_cmp_lg_u32 s63, 0
                s_cbranch_scc1 L_nofrag
                ds_read_b32 v6, v1 offset:{C_WRDY}
                s_waitcnt lgkmcnt(0)
                v_readfirstlane_b32 s63, v6
                s_cmp_eq_u32 s63, 0
                s_cbranch_scc1 L_nofrag""")
            self.fragments()
            self("L_nofrag:")

        self.gather_o((0, 1, 2, 3) if o["g4"] else (3,), o["psleep"], o["tld"], hook=early_fragments)
        self.stamp(9)
        self("s_cmp_lg_u32 s63, 0\ns_cbranch_scc1 L_proj\nL_fragwait:")
        self.spin_lds(C_WRDY, 1, sleep=o["wsleep"])
        self("L_frag:")
        self.fragments()
        self("L_proj:")
        self.project(True)
        self.stamp(10)
        self("s_cmp_lg_u32 s72, 3\ns_cbranch_scc1 L_end")

        def result():
            for i in range(4):
                self(f"v_add_f32 v{8 + i}, v{8 + i}, v{12 + i}")
            across(8)
            self("v_add_f32 v8, v46, v8")
            self.bf16_round(8)
            self("v_add_f32 v8, v8, v40\nv_cvt_pk_bf16_f32 v8, v8, v8")

        self.poll(YL, o["psleep"], inner=result)
        self(f"""
            s_mov_b32 exec_lo, 0x000f000f
            s_mov_b32 exec_hi, 0x000f000f
            buffer_store_short v8, v53, s[52:55], s62 offen {o['outst']}""")
        self.stamp(9)

    def finish(self):
        self("L_end:")
        if self.o["stamps"]:
            self(f"""
                s_waitcnt vmcnt(0)
                s_memrealtime s[78:79]
                s_getreg_b32 s101, hwreg(HW_REG_XCC_ID)
                s_waitcnt lgkmcnt(0)
                s_mov_b32 s91, s78
                s_mov_b64 exec, 1
                s_lshl_b32 s10, s2, 3
                s_add_u32 s10, s10, s3
                s_lshl_b32 s10, s10, 6
                s_add_u32 s10, s10, {STAMPS}
                v_mov_b32 v5, s10""")
            for i in range(12):
                self(f"v_mov_b32 v{8 + i}, s{80 + i}")
            self("v_mov_b32 v20, s101\nv_mov_b32 v21, s59\nv_mov_b32 v22, s6\nv_mov_b32 v23, s76")
            for i in range(4):
                self(f"global_store_dwordx4 v5, v[{8 + 4*i}:{11 + 4*i}], s[36:37] offset:{16 * i}")
        if self.o["enc"]:
            wave, idx, mult = (int(x) for x in self.o["enc"].split("x"))
            self(f"""
                s_cmp_lg_u32 s3, {wave}
                s_cbranch_scc1 L_exit
                s_sub_u32 s10, s{80 + idx}, s80
                s_mul_i32 s10, s10, {mult}
                s_min_u32 s10, s10, 40000
                s_add_u32 s10, s10, 20000
                L_encl:
                s_memrealtime s[78:79]
                s_waitcnt lgkmcnt(0)
                s_sub_u32 s11, s78, s80
                s_cmp_lt_u32 s11, s10
                s_cbranch_scc1 L_encl""")
        self("L_exit:\ns_endpgm")

    def build(self):
        head = open(f"cdna_kernels/{NAME}.s.ref").read().split("\n") if self.o["head"] else []
        out = [ln for ln in head if ln.startswith(";") and "@launch" not in ln][:14]
        out.append(f"; @launch grid=(256,1,1) block=(512,1,1) lds={LDS_BYTES}")
        out.append(DOC.strip("\n"))
        out += ['.amdgcn_target "amdgcn-amd-amdhsa--gfx950"', ".text", f".globl {NAME}_kernel", ".p2align 8",
                f".type {NAME}_kernel,@function", f"{NAME}_kernel:"]
        self.entry()
        self.streamer()
        self.helper()
        self.finish()
        out += self.L
        out += [".p2align 8", ".type L_table,@object", "L_table:"]
        T = row_table()
        for sig in range(2):
            for w in range(4):
                for g in range(8):
                    out.append("  .long " + ", ".join(str(T[sig][w][g][t & 7] * 384) for t in range(16)))
        out.append(".size L_table, 4096")
        out += ['.section .rodata,"a"', ".p2align 6", f".amdhsa_kernel {NAME}_kernel",
                "  .amdhsa_next_free_vgpr 256", "  .amdhsa_next_free_sgpr 102", "  .amdhsa_accum_offset 256",
                "  .amdhsa_group_segment_fixed_size 0", "  .amdhsa_kernarg_size 88", "  .amdhsa_user_sgpr_count 2",
                "  .amdhsa_user_sgpr_kernarg_segment_ptr 1", "  .amdhsa_system_sgpr_workgroup_id_x 1",
                ".end_amdhsa_kernel"]
        return "\n".join(out) + "\n"


DOC = """
"""

DEFAULTS = dict(stamps=0, head=1, gap=40, numa="near", scst="sc1 nt", scld="sc1 nt", qst="sc1", asleep=8, qsleep=8,
                tsleep=2, psleep=0, fsleep=24, ntry=4, nsleep=2, enc="", series=0, ctl=2, gain=10000, gains=10000,
                cmax=15, bias=-60, tdepth=32, hsplit=1, ackfirst=0, oit=16, odelay=0, ost="sc1", old="sc1", agn=8, qdelay=0, sit=11, latepub=2, pdelay=0, osleep=4, cmaxs=15, pmin=0, ostart=1, tst="sc1", tld="sc1", outst="", pf=2, bar2=1, tat=1, wsleep=0, w0=3, trig="iss", gtrig="o1", tearly=0, tdepth0=8, vat=4, qat=10, mat=8, g4=0, g3trig="", rdelay=40, wadd=2, rot=0, tabe=2, tabsrc=0, ilv=0, warm=1, local=1, ytouch=2, gapr=60, early=0, edelay=0, esleep=8, pw=3, boost0=0)

if __name__ == "__main__":
    opt = dict(DEFAULTS)
    for kv in sys.argv[2:]:
        k, v = kv.split("=")
        assert k in opt, k
        opt[k] = int(v) if isinstance(DEFAULTS[k], int) else v.replace("+", " ")
    open(sys.argv[1], "w").write(Gen(opt).build())
```

```python
import struct
import sys

NAME = "parallel_sum__mha_block_cached__dense_activation_silu__decode"
KV_BYTES = 4 * 32 * 8192 * 192 * 2
REGION = 3 << 20
WIN = 196608

QP, YP, FL, VR, ST, CT, SC, OP, WS_END = (
    0x0, 0x140000, 0x1E0000, 0x1B8000, 0x1C0000, 0x60000, 0x200000, 0x400000, 0x500000)
STAMPS = 0x1000000
L_S, L_P, L_ORED, L_OBUF, L_Q, L_C, L_SER, L_WT = 0x0, 0x2000, 0x4000, 0xA000, 0xA600, 0xAC00, 0xAE00, 0xB000
C_NONCE, C_WRDY, C_VOTE, C_KSEG, C_PRDY, C_MAXC, C_HS, C_SC3 = (
    L_C + 0, L_C + 4, L_C + 8, L_C + 16, L_C + 20, L_C + 24, L_C + 28, L_C + 32)
C_CTL, C_QRDY, C_ICNT, C_OCNT, C_MAX, C_MARK, C_T = L_C + 40, L_C + 48, L_C + 52, L_C + 64, L_C + 80, L_C + 112, L_C + 256
C_EARLY, C_FCNT, C_SCNT, C_ISS, C_SC, L_STAT = L_C + 124, L_C + 56, L_C + 60, L_C + 120, L_C + 192, L_C + 384
TROW = 1088
LDS_BYTES = 0xB000 + 48 * TROW
BATCH = 32 * REGION


def f32(x):
    return "0x%08x" % struct.unpack("<I", struct.pack("<f", x))[0]


def block_rows(b):
    t, r = divmod(b, 3)
    lo, hi = ((0, 21), (21, 43), (43, 64))[r]
    return list(range(64 * t + lo, 64 * t + hi))


def row_table():
    T = []
    for sig in range(2):
        lo = sum((block_rows(sig + o) for o in (0, 8, 16, 10, 18, 2)), [])
        up = sum((block_rows(sig + o + 4) for o in (0, 8, 16, 10, 18, 2)), [])
        T.append([[[(lo if g < 4 else up)[4 * (16 * (w >> 1) + 2 * t + (w & 1)) + (g & 3)] for t in range(8)]
                   for g in range(8)] for w in range(4)])
    assert sorted(r for s in T for w in s for g in w for r in g) == list(range(512))
    return T


class Gen:
    def __init__(self, opt):
        self.o = opt
        self.L = []
        self.nlab = 0
        self.in_helper = False

    def __call__(self, text):
        for line in text.strip("\n").split("\n"):
            line = line.strip()
            if line:
                self.L.append(line if line.endswith(":") else "  " + line)

    def note(self, text):
        for line in text.strip("\n").split("\n"):
            self.L.append("  ; " + line.strip())

    def lab(self, base):
        self.nlab += 1
        return f"L_{base}{self.nlab}"

    def stamp(self, idx, mode=1):
        if self.o["stamps"] == mode or (self.o["stamps"] and not self.in_helper):
            self(f"s_memrealtime s[78:79]\ns_waitcnt lgkmcnt(0)\ns_mov_b32 s{80 + idx}, s78")

    def spin_lds(self, off, target, sleep=1, wide=False, addr="v1"):
        lp, dn = self.lab("sp"), self.lab("sd")
        self("s_mov_b32 s12, 0x100000")
        self(f"{lp}:")
        if wide:
            self(f"ds_read_b64 v[6:7], {addr} offset:{off}")
        else:
            self(f"ds_read_b32 v6, {addr} offset:{off}")
        self("s_waitcnt lgkmcnt(0)\nv_readfirstlane_b32 s10, v6")
        if wide:
            self("v_readfirstlane_b32 s11, v7")
        self(f"""
            s_cmp_ge_u32 s10, {target}
            s_cbranch_scc1 {dn}
            s_sleep {sleep}
            s_sub_u32 s12, s12, 1
            s_cbranch_scc0 {lp}
            s_branch L_end
            {dn}:""")

    def lds_inc(self, off, ret=False, addr="v1"):
        self("s_mov_b64 exec, 1\nv_mov_b32 v5, 1")
        if ret:
            self(f"ds_add_rtn_u32 v6, {addr}, v5 offset:{off}\ns_waitcnt lgkmcnt(0)\nv_readfirstlane_b32 s10, v6")
        else:
            self(f"ds_add_u32 {addr}, v5 offset:{off}")
        self("s_mov_b64 exec, -1")

    def tags(self, t):
        self(f"""
            s_mul_i32 s10, s92, 0x9e3779b1
            s_mul_hi_u32 s11, s92, 0x85ebca6b
            s_mul_i32 s12, s92, 0xc2b2ae35
            s_xor_b32 s11, s11, s12
            v_mov_b32 v{t}, s10
            v_mov_b32 v{t+1}, s11
            v_and_b32 v{t+2}, 1, v0
            v_cndmask_b32 v{t}, v{t}, v{t+1}, s[64:65]
            v_lshlrev_b32 v{t+2}, 4, v{t+2}
            v_lshrrev_b32 v{t}, v{t+2}, v{t}
            v_lshrrev_b32 v{t+1}, 4, v{t}
            v_lshrrev_b32 v{t+2}, 8, v{t}
            v_lshrrev_b32 v{t+3}, 12, v{t}""")

    def tag_data(self, r, t):
        for e in range(4):
            self(f"v_bfi_b32 v{r + e}, 15, v{t + e}, v{r + e}")

    def poll(self, loads, sleep, t=236, half=(), hook=None, inner=None):
        lp, dn = self.lab("pl"), self.lab("pd")
        n = len(loads)
        self("s_mov_b32 s12, 0x40000")
        self(f"{lp}:")
        for i, (r, ins) in enumerate(loads):
            if i in half:
                self(f"s_mov_b32 exec_hi, 0\n{ins}\ns_mov_b32 exec_hi, -1")
            else:
                self(ins)
        if hook:
            hook()
        for i, (r, ins) in enumerate(loads):
            self(f"s_waitcnt vmcnt({n - 1 - i})")
            if i in half:
                self("s_mov_b32 exec_hi, 0")
            for e in range(4):
                if i == 0 and e == 0:
                    self(f"v_xor_b32 v5, v{r}, v{t}")
                else:
                    self(f"v_bitop3_b32 v5, v5, v{r + e}, v{t + e} bitop3:0xf6")
            for e in range(4):
                self(f"v_and_b32 v{r + e}, -16, v{r + e}")
            if i in half:
                self("s_mov_b32 exec_hi, -1")
        self("v_and_b32 v5, 15, v5\nv_cmp_ne_u32 vcc, 0, v5")
        if inner:
            inner()
        self(f"""
            s_cmp_eq_u64 vcc, 0
            s_cbranch_scc1 {dn}""")
        if sleep:
            self(f"s_sleep {sleep}")
        self(f"""
            s_sub_u32 s12, s12, 1
            s_cbranch_scc0 {lp}
            s_branch L_end
            {dn}:""")

    def rows4_reduce(self, r):
        self(f"""
            s_nop 1
            v_permlane16_swap_b32 v{r}, v{r+1}
            v_permlane16_swap_b32 v{r+2}, v{r+3}
            s_nop 1
            v_add_f32 v{r}, v{r}, v{r+1}
            v_add_f32 v{r+2}, v{r+2}, v{r+3}
            s_nop 1
            v_permlane32_swap_b32 v{r}, v{r+2}
            s_nop 1
            v_add_f32 v{r}, v{r}, v{r+2}""")

    def row16_allreduce(self, op, r):
        for ctl in ("quad_perm:[1,0,3,2]", "quad_perm:[2,3,0,1]", "row_half_mirror", "row_mirror"):
            self(f"s_nop 1\n{op}_dpp v{r}, v{r}, v{r} {ctl} row_mask:0xf bank_mask:0xf")

    def wave_allreduce(self, op, r, t):
        self.row16_allreduce(op, r)
        for sw in ("v_permlane16_swap_b32", "v_permlane32_swap_b32"):
            self(f"v_mov_b32 v{t}, v{r}\ns_nop 1\n{sw} v{r}, v{t}\ns_nop 1\n{op} v{r}, v{r}, v{t}")

    def bf16_round(self, r):
        self(f"v_cvt_pk_bf16_f32 v{r}, v{r}, v{r}\nv_lshlrev_b32 v{r}, 16, v{r}")

    def srd(self, d, p, size):
        self(f"s_mov_b32 s{d}, s{p}\ns_and_b32 s{d+1}, s{p+1}, 0xffff\ns_mov_b32 s{d+2}, {size}\ns_mov_b32 s{d+3}, 0x20000")

    def entry(self):
        o = self.o
        PF = ""
        if o["pf"]:
            PF = f"""
                s_cmp_ge_u32 s2, 16
                s_cbranch_scc1 L_nopf
                s_getpc_b64 s[14:15]
                L_pfpc:
                v_lshlrev_b32 v3, 6, v0
                v_min_u32 v3, L_table+4092-L_pfpc, v3
                global_load_dword v254, v3, s[14:15]
                L_nopf:"""
        self(f"""
            s_cmp_ge_u32 s2, 256
            s_cbranch_scc1 L_exit
            s_load_dwordx16 s[16:31], s[0:1], 0
            {PF}
            s_load_dwordx4 s[32:35], s[0:1], 64
            s_load_dwordx2 s[36:37], s[0:1], 80
            s_memrealtime s[94:95]
            v_lshrrev_b32 v2, 6, v0
            v_mov_b32 v1, 0
            v_readfirstlane_b32 s3, v2
            v_and_b32 v2, 63, v0
            v_and_b32 v5, 0x7f, v0
            v_lshlrev_b32 v5, 2, v5
            ds_write_b32 v5, v1 offset:{L_C}
            s_getreg_b32 s7, hwreg(HW_REG_XCC_ID, 0, 4)
            s_bfe_u32 s9, s7, 0x10002
            s_bfe_u32 s4, s2, 0x10002
            s_bfe_u32 s5, s2, 0x20003
            s_and_b32 s11, s2, 3
            s_lshr_b32 s10, s2, 5
            s_lshl_b32 s6, s11, 3
            s_add_u32 s6, s6, s10
            s_lshl_b32 s8, s5, 1
            s_add_u32 s8, s8, s4""")
        self("""
            s_lshl_b32 s38, s10, 2
            s_add_u32 s38, s38, s11
            s_sub_u32 s11, s8, 5
            s_lshl_b32 s11, s11, 5
            s_add_u32 s38, s38, s11""")
        if o["stamps"]:
            for i in range(1, 12):
                self(f"s_mov_b32 s{80 + i}, 0")
        self("s_cmp_ge_u32 s3, 4\ns_cbranch_scc1 L_helper")

    def masks(self):
        self("""
            s_mov_b32 s64, 0xcccccccc
            s_mov_b32 s65, 0xcccccccc
            s_mov_b32 s66, 0xaaaaaaaa
            s_mov_b32 s67, 0xaaaaaaaa""")

    def roles(self):
        self("""
            s_and_b32 s10, s2, 7
            s_lshr_b32 s77, s2, 3
            s_sub_u32 s39, s10, s4
            s_lshr_b32 s76, 0x190, s10
            s_and_b32 s76, s76, 2""")

    def args_ready(self):
        self("s_waitcnt lgkmcnt(0)")
        if self.o["stamps"]:
            self("s_mov_b32 s80, s94")

    def vote_load(self):
        self(f"""
            s_lshl_b32 s14, s6, {4 if self.o["ilv"] else 2}
            s_add_u32 s14, s14, s5
            s_lshl_b32 s14, s14, {1 if self.o["ilv"] else 3}
            s_add_u32 s10, s14, {13 if self.o["ilv"] else 4}
            s_mul_i32 s10, s10, 3
            s_lshr_b32 s10, s10, 10
            s_mul_i32 s10, s10, 10
            s_add_u32 s10, s10, 16
            s_andn2_b32 s11, s2, 4
            v_bfe_u32 v9, v0, 3, 3
            v_and_b32 v10, 7, v0
            v_mad_u32_u24 v9, v9, 30, v10
            v_cmp_eq_u32 vcc, 7, v10
            v_add_u32 v9, s10, v9
            v_mov_b32 v10, s11
            v_cndmask_b32 v9, v9, v10, vcc
            v_lshlrev_b32 v9, 7, v9
            s_mov_b32 s15, {VR}
            buffer_load_dwordx2 v[12:13], v9, s[44:47], s15 offen sc1""")

    def vote_eval(self):
        o = self.o
        self.spin_lds(C_NONCE, 1, sleep=0)
        self(f"""
            s_mov_b32 s92, s10
            s_mov_b32 s12, 0x40000
            L_vchk:
            v_cmp_ne_u32 vcc, s92, v12
            s_cmp_eq_u64 vcc, 0
            s_cbranch_scc1 L_vok
            s_sleep {o["asleep"]}
            buffer_load_dwordx2 v[12:13], v9, s[44:47], s15 offen sc1
            s_waitcnt vmcnt(0)
            s_sub_u32 s12, s12, 1
            s_cbranch_scc0 L_vchk
            s_branch L_end
            L_vok:
            v_readlane_b32 s11, v13, 7
            v_and_b32 v8, 1, v13
            v_cmp_eq_u32 vcc, 1, v8
            v_and_b32 v10, 3, v0
            s_add_u32 s14, s14, 1
            v_lshl_add_u32 v10, v10, {3 if o['ilv'] else 1}, s14
            v_mul_u32_u24 v10, 3, v10
            v_lshrrev_b32 v10, 6, v10
            s_lshr_b32 s11, s11, 3
            s_xor_b32 s11, s11, s4
            v_bfe_u32 v11, v0, 2, 3
            v_lshlrev_b32 v11, 3, v11
            v_lshrrev_b64 v[8:9], v11, vcc
            v_and_b32 v8, 0x7f, v8
            v_bcnt_u32_b32 v8, v8, 0
            v_lshrrev_b32 v8, 2, v8
            v_xor_b32 v8, v8, v10
            v_xor_b32 v8, s11, v8
            v_and_b32 v8, 1, v8
            v_cmp_eq_u32 vcc, 1, v8
            s_and_b32 s50, s59, 3
            s_mov_b32 s59, vcc_lo""")
        if o["numa"] == "far":
            self("s_not_b32 s59, s59")
        elif o["numa"] == "mix":
            self("s_xor_b32 s10, s4, s6\ns_bitcmp1_b32 s10, 0\ns_cselect_b32 s59, -1, 0\ns_xor_b32 s59, s59, 0x33335555")
        if o["early"]:
            self("s_and_b32 s59, s59, -4\ns_or_b32 s59, s59, s50")
        self(f"""
            v_mov_b32 v6, 1
            v_mov_b32 v7, s59
            ds_write_b64 v1, v[6:7] offset:{C_VOTE}""")

    def series(self):
        if self.o["series"]:
            self(f"""
                s_memrealtime s[78:79]
                s_lshl_b32 s10, s3, 5
                s_add_u32 s10, s10, s58
                s_lshl_b32 s10, s10, 2
                v_mov_b32 v6, s10
                s_waitcnt lgkmcnt(0)
                v_mov_b32 v7, s78
                ds_write_b32 v6, v7 offset:{L_SER}""")

    def advance_window(self, may_jump):
        self.series()
        step = WIN * (4 if self.o["ilv"] else 1)
        self(f"s_add_u32 s58, s58, 1\ns_add_u32 s57, s57, {step}")
        if may_jump:
            self(f"""
                s_bitcmp1_b32 s58, 1
                s_cselect_b32 s10, 0, {BATCH - 4 * step}
                s_add_u32 s57, s57, s10
                s_cmp_eq_u32 s58, 16
                s_cselect_b32 s57, s56, s57
                s_cselect_b32 s40, s20, s40
                s_cselect_b32 s41, s63, s41""")
        self("s_bitcmp1_b32 s59, s58\ns_cselect_b64 s[60:61], -1, 0")

    def issue(self, t, slot, wait):
        vo = 2 + (slot & 1)
        self(f"v_cndmask_b32 v{vo}, v{48 + t}, v{56 + t}, s[60:61]")
        if wait == "ctl":
            go = self.lab("go")
            self(f"""
                s_waitcnt vmcnt({6 + self.o["wadd"]})
                s_add_u32 s70, s70, s68
                s_cbranch_scc1 {go}
                s_waitcnt vmcnt({3 + self.o["wadd"]})
                s_add_u32 s71, s71, s69
                s_cbranch_scc0 {go}
                s_waitcnt vmcnt({self.o["wadd"]})
                {go}:""")
        elif wait is not None:
            self(f"s_waitcnt vmcnt({wait})")
        for j in range(3):
            r = 64 + slot * 12 + j * 4
            self(f"buffer_load_dwordx4 v[{r}:{r+3}], v{vo}, s[40:43], s57 offen offset:{128 * j} nt")

    def consume_k(self, slot):
        t = slot & 7
        r = 64 + slot * 12
        for i in range(1 if "k" in self.o["skip"] else 12):
            c = "0" if i == 0 else f"v{20 + t}"
            self(f"v_dot2_f32_bf16 v{20 + t}, v{r + i}, v{8 + i}, {c}")
        if t == 7:
            self("s_nop 2")
            for k in range(4):
                self(f"v_add_f32_dpp v{20 + k}, v{20 + k}, v{20 + k} row_shl:4 row_mask:0xf bank_mask:0x5")
            for k in range(4):
                self(f"v_add_f32_dpp v{20 + k}, v{24 + k}, v{24 + k} row_shr:4 row_mask:0xf bank_mask:0xa")
            for k in range(4):
                self(f"v_add_f32_dpp v{24 + k}, v{20 + k}, v{20 + k} quad_perm:[2,3,0,1] row_mask:0xf bank_mask:0xf")
            self("""
                v_cndmask_b32 v20, v24, v26, s[64:65]
                v_cndmask_b32 v21, v25, v27, s[64:65]
                s_nop 0
                v_add_f32_dpp v24, v20, v20 quad_perm:[1,0,3,2] row_mask:0xf bank_mask:0xf
                v_add_f32_dpp v25, v21, v21 quad_perm:[1,0,3,2] row_mask:0xf bank_mask:0xf
                v_cndmask_b32 v28, v24, v25, s[66:67]""")
            self.bf16_round(28)
            self(f"""
                v_mul_f32 v28, {f32(192 ** -0.5)}, v28
                v_cvt_pk_bf16_f32 v28, v28, v28
                ds_write_b16 v4, v28 offset:{L_S + (slot >> 3) * 512}""")

    def consume_v(self, slot):
        t = slot & 7
        r = 64 + slot * 12
        a = 20 + (slot & 1) * 4
        if t == 0:
            self("s_waitcnt lgkmcnt(0)")
        for w in range(4):
            self(f"v_perm_b32 v{a + w}, v{28 + (t >> 1)}, v{28 + (t >> 1)}, v{32 + (t & 1) * 4 + w}")
        self("s_nop 1")
        for j in range(3):
            self(f"v_mfma_f32_16x16x32_bf16 v[{8 + 4*j}:{11 + 4*j}], v[{a}:{a+3}], v[{r + 4*j}:{r + 4*j + 3}], v[{8 + 4*j}:{11 + 4*j}]")

    def flush_acc(self):
        self(f"""
            s_mov_b32 exec_lo, 0x00ff00ff
            s_mov_b32 exec_hi, 0xff00ff00
            s_nop 5
            ds_write_b128 v41, v[8:11] offset:{L_ORED}
            ds_write_b128 v41, v[12:15] offset:{L_ORED + 256}
            ds_write_b128 v41, v[16:19] offset:{L_ORED + 512}""")

    def publish_o(self):
        r = 64
        self("L_pub:\ns_mov_b32 exec_hi, 0xffff")
        for k in range(8):
            self(f"ds_read_b128 v[{r + 4*k}:{r + 3 + 4*k}], v40 offset:{L_ORED + 768 * k}")
        for k in range(4):
            self(f"s_waitcnt lgkmcnt({6 - 2*k})")
            for e in range(4):
                self(f"v_add_f32 v{r + 8*k + e}, v{r + 8*k + e}, v{r + 4 + 8*k + e}")
        for e in range(4):
            self(f"v_add_f32 v{r + e}, v{r + e}, v{r + 8 + e}\nv_add_f32 v{r + 16 + e}, v{r + 16 + e}, v{r + 24 + e}")
        for e in range(4):
            self(f"v_add_f32 v{r + e}, v{r + e}, v{r + 16 + e}")
        for e in range(4):
            self(f"v_mul_f32 v{r + e}, s73, v{r + e}")
        self.tag_data(r, 44)
        self(f"""
            buffer_store_dwordx4 v[{r}:{r+3}], v42, s[44:47], s13 offen {self.o["tst"]}
            s_mov_b64 exec, -1
            s_cmp_ge_u32 s3, 4
            s_cbranch_scc1 L_pubdone""")

    def streamer(self):
        o = self.o
        W = "ctl" if o["ctl"] else 3
        ROT = {0: "v_lshlrev_b32 v8, 6, v8",
               1: "s_lshr_b32 s10, s2, 3\ns_and_b32 s10, s10, 28\nv_lshl_add_u32 v8, v8, 6, s10",
               2: "s_lshr_b32 s10, s2, 1\ns_and_b32 s10, s10, 28\nv_lshl_add_u32 v8, v8, 6, s10",
               3: "s_and_b32 s10, s2, 3\ns_lshl_b32 s10, s10, 3\nv_lshl_add_u32 v8, v8, 6, s10"}[o["rot"]]
        self(f"""
            s_getpc_b64 s[14:15]
            L_pc:
            s_add_u32 s14, s14, L_table-L_pc
            s_addc_u32 s15, s15, 0
            v_lshrrev_b32 v8, 3, v0
            {ROT}
            s_mul_i32 s56, s6, {REGION}
            s_mul_i32 s10, s5, {WIN if o['ilv'] else 4 * WIN}
            s_add_u32 s56, s56, s10
            s_max_u32 s12, s2, 16
            s_sub_u32 s12, s12, 16
            s_mul_i32 s12, s12, 205
            s_lshr_b32 s12, s12, 11
            s_mov_b32 s50, s12
            s_cmp_ge_u32 s12, 12
            s_cselect_b32 s13, 12, 0
            s_sub_u32 s10, s12, s13
            s_lshl_b32 s10, s10, 3
            s_and_b32 s11, s2, 7
            s_add_u32 s10, s10, s11
            s_lshl_b32 s10, s10, 22
            s_and_b32 s11, s2, 63
            s_lshl_b32 s11, s11, 7
            s_add_u32 s10, s10, s11
            s_add_u32 s10, s10, 0x80000
            s_add_u32 s11, s10, 0x2000
            s_mov_b32 s54, {KV_BYTES}
            s_mov_b32 s55, 0x20000
            s_setprio {3 if o["hprio"] else 2}""")
        TAB = "\n".join(f"global_load_dwordx4 v[{48 + 4*i}:{51 + 4*i}], v8, s[14:15] offset:{(i >> 1) * 2048 + (i & 1) * 16}"
                        for i in range(4))
        if o["tabe"] == 1:
            self(TAB)
        self.args_ready()
        if o["tabe"] == 2:
            self(TAB)
        TIME = "s_waitcnt vmcnt({})\ns_memtime s[10:11]\ns_waitcnt vmcnt({})\ns_memtime s[12:13]"
        self(f"""
            s_cmp_eq_u32 s13, 0
            s_cselect_b32 s52, s18, s20
            s_cselect_b32 s53, s19, s21
            s_and_b32 s53, s53, 0xffff
            {"s_barrier" if o["bar2"] else ""}
            s_cmp_lg_u32 s3, 0
            s_cbranch_scc1 L_noprobe
            s_mov_b64 exec, 1
            buffer_load_dword v6, v1, s[52:55], s10 offen nt
            buffer_load_dword v7, v1, s[52:55], s11 offen nt
            s_mov_b64 exec, -1
            {"" if o["bar2"] else TIME.format(1, 0)}
            L_noprobe:
            s_barrier""")
        if o["tabsrc"]:
            self("s_lshl_b32 s14, s2, 12\ns_add_u32 s14, s14, s26\ns_addc_u32 s15, s27, 0")
        if not o["tabe"]:
            self(TAB)
        self.srd(44, 36, WS_END)
        self("s_cmp_lg_u32 s3, 0\ns_cbranch_scc1 L_pre")
        self(f"""
            {(TIME.format(1, 0) if o["tabe"] else TIME.format(5, 4)) if o["bar2"] else ""}
            s_waitcnt lgkmcnt(0)
            s_sub_u32 s10, s12, s10
            s_cmp_le_u32 s10, {o["gap"]}
            s_cselect_b32 s62, 1, 0
            s_xor_b32 s62, s62, s9""")
        if o["early"]:
            self("""
                s_sub_u32 s10, s2, 16
                s_mul_i32 s11, s50, 10
                s_sub_u32 s11, s10, s11
                s_cmp_ge_u32 s10, 30
                s_cbranch_scc1 L_notally
                s_cmp_ge_u32 s11, 7
                s_cbranch_scc1 L_notally
                s_lshl_b32 s10, s62, 3
                s_lshl_b32 s10, 1, s10
                s_lshl_b32 s11, s50, 2
                v_mov_b32 v6, s10
                v_lshl_add_u32 v5, v2, 6, s11
                s_mov_b64 exec, 3
                global_atomic_add v5, v6, s[34:35] offset:128 sc1
                s_mov_b64 exec, -1
                L_notally:""")
        for k in range(2):
            self(f"""
                s_load_dwordx2 s[92:93], s[34:35], {64 * k}
                s_waitcnt lgkmcnt(0)
                s_cmp_lg_u32 s92, 0
                s_cbranch_scc1 L_ndone
                s_sleep {o["nsleep"]}""")
        self(f"""
            s_mov_b32 s12, 0x40000
            L_npoll:
            global_load_dwordx2 v[6:7], v1, s[34:35] sc1
            s_waitcnt vmcnt(0)
            v_readfirstlane_b32 s92, v6
            v_readfirstlane_b32 s93, v7
            s_cmp_lg_u32 s92, 0
            s_cbranch_scc1 L_ndone
            s_sleep 4
            s_sub_u32 s12, s12, 1
            s_cbranch_scc0 L_npoll
            s_branch L_end
            L_ndone:
            s_lshl_b32 s11, s7, 1
            s_or_b32 s10, s62, s11
            s_lshl_b32 s11, s2, 7
            s_add_u32 s11, s11, {VR}
            v_mov_b32 v6, s92
            v_mov_b32 v7, s10
            v_lshlrev_b32 v5, 3, v2
            s_mov_b64 exec, 0xffff
            buffer_store_dwordx2 v[6:7], v5, s[44:47], s11 offen sc1
            ds_write_b32 v1, v6 offset:{C_NONCE}
            s_mov_b64 exec, -1""")
        self.stamp(1)
        if o["early"]:
            self(f"""
                s_lshl_b32 s14, s6, 2
                s_add_u32 s14, s14, s5
                s_lshl_b32 s14, s14, 3
                s_add_u32 s15, s14, 4
                s_mul_i32 s15, s15, 3
                s_lshr_b32 s15, s15, 10
                s_lshl_b32 s15, s15, 2
                s_add_u32 s15, s15, 128
                {"s_waitcnt vmcnt(0)" if o["edelay"] == 0 else f"s_sleep {o['edelay']}"}""")
            for k in range(2):
                self(f"""
                    s_load_dword s50, s[34:35], s15
                    s_waitcnt lgkmcnt(0)
                    s_and_b32 s10, s50, 0x404
                    s_cbranch_scc1 L_edone
                    s_xor_b32 s15, s15, 64
                    s_sleep {o["esleep"]}""")
            self(f"""
                s_mov_b32 s12, 0x40000
                v_mov_b32 v5, s15
                L_epoll:
                global_load_dword v6, v5, s[34:35] sc1
                s_waitcnt vmcnt(0)
                v_readfirstlane_b32 s50, v6
                s_and_b32 s10, s50, 0x404
                s_cbranch_scc1 L_edone
                s_sleep 8
                s_sub_u32 s12, s12, 1
                s_cbranch_scc0 L_epoll
                s_branch L_end
                L_edone:
                s_lshr_b32 s50, s50, 10
                s_add_u32 s10, s2, s93
                s_lshr_b32 s10, s10, 2
                s_xor_b32 s50, s50, s10
                s_add_u32 s10, s14, 1
                s_mul_i32 s10, s10, 3
                s_lshr_b32 s10, s10, 6
                s_xor_b32 s10, s10, s50
                s_and_b32 s10, s10, 1
                s_add_u32 s11, s14, 3
                s_mul_i32 s11, s11, 3
                s_lshr_b32 s11, s11, 6
                s_xor_b32 s11, s11, s50
                s_and_b32 s11, s11, 1
                s_lshl_b32 s11, s11, 1
                s_or_b32 s10, s10, s11
                s_or_b32 s10, s10, 4
                v_mov_b32 v6, s10
                ds_write_b32 v1, v6 offset:{C_EARLY}""")
        self("""
            s_waitcnt vmcnt(1)
            s_branch L_tabok
            L_pre:
            s_waitcnt vmcnt(0)
            L_tabok:
            s_setprio 1
            v_mov_b32 v9, 0
            v_and_b32 v40, 7, v0
            v_lshlrev_b32 v40, 4, v40""")
        for i in range(16):
            self(f"v_add_u32 v{48 + i}, v{48 + i}, v40")
        self.srd(40, 18, KV_BYTES)
        self(f"""
            s_and_b32 s63, s21, 0xffff
            v_lshlrev_b32 v4, 1, v0
            s_mov_b32 s57, s56
            s_mov_b32 s58, 0
            s_mov_b32 s68, {o["boost0"] << 28}
            s_mov_b32 s69, 0
            s_lshl_b32 s70, s3, 30
            s_lshl_b32 s71, s3, 30
            s_mov_b32 s72, -4
            s_mov_b32 s93, 1""")
        self("s_lshr_b32 s10, s3, 1\ns_cmp_lg_u32 s10, s4\ns_cselect_b64 s[60:61], -1, 0")

        def selectors(par):
            lo_sel, hi_sel = ((0x0c0c0100, 0x01000c0c), (0x0c0c0302, 0x03020c0c))[par]
            self(f"v_and_b32 v5, 7, v0\nv_mov_b32 v28, 0x0c0c0c0c\nv_mov_b32 v29, 0x{lo_sel:08x}\nv_mov_b32 v30, 0x{hi_sel:08x}")
            for w in range(4):
                r = 32 + par * 4 + w
                self(f"""
                    v_cmp_eq_u32 vcc, {2*w}, v5
                    v_cmp_eq_u32 s[10:11], {2*w + 1}, v5
                    s_nop 0
                    v_cndmask_b32 v{r}, v28, v29, vcc
                    v_cndmask_b32 v{r}, v{r}, v30, s[10:11]""")

        def addresses():
            self(f"""
                v_lshlrev_b32 v41, 1, v40
                v_bfe_u32 v6, v0, 4, 1
                v_lshl_add_u32 v41, v6, 4, v41
                v_lshrrev_b32 v6, 5, v0
                v_mul_u32_u24 v6, 768, v6
                v_add_u32 v41, v41, v6
                v_and_b32 v42, 63, v0
                v_lshlrev_b32 v42, 4, v42
                s_lshl_b32 s13, s6, 5
                s_add_u32 s13, s13, s8
                s_lshl_b32 s13, s13, 10
                s_add_u32 s13, s13, {OP + 3 * 8192}""")

        def nonce_tags():
            self(f"ds_read_b32 v6, v1 offset:{C_NONCE}\ns_waitcnt lgkmcnt(0)\nv_readfirstlane_b32 s92, v6")
            self.tags(44)

        def only(wave, code):
            sk = self.lab("on")
            self(f"s_cmp_lg_u32 s3, {wave}\ns_cbranch_scc1 {sk}")
            code()
            self(f"{sk}:")

        if o["hold"]:
            self(f"s_sub_u32 s10, s38, 48\ns_cmp_ge_u32 s10, 24\ns_cbranch_scc1 L_nohold")
            self.spin_lds(C_ICNT, o["hold"], sleep=1)
            self("L_nohold:")
        idle = [self.masks, lambda: selectors(0), lambda: selectors(1), addresses, nonce_tags]
        assert (o["agn"] <= o["vat"] < 13) if o["early"] else (o["vat"] + 2 < o["agn"] <= 8)
        for n in range(15):
            if n == o["agn"]:
                if o["early"]:
                    self.spin_lds(C_EARLY, 4, sleep=0)
                    self("s_mov_b32 s59, s10")
                else:
                    self.spin_lds(C_VOTE, 1, sleep=0, wide=True)
                    self("s_mov_b32 s59, s11")
                self("s_bitcmp1_b32 s59, 0\ns_cselect_b64 s[60:61], -1, 0")
                self.stamp(2)
            if n == 8:
                self.advance_window(False)
            self.issue(n & 7, n, None if n < 2 else o["w0"] if n < o["agn"] else o["pw"])
            if n == o["vat"]:
                only(1, self.vote_load)
            if n == o["vat"] + 2:
                only(1, lambda: (self("s_waitcnt vmcnt(6)"), self.vote_eval()))
            if n == o["qat"]:
                only(2, lambda: self.lds_inc(C_MARK))
            if 8 <= n < 8 + len(idle):
                idle[n - 8]()
        self.stamp(3)
        if o["early"]:
            self.spin_lds(C_VOTE, 1, sleep=0, wide=True)
            self("s_mov_b32 s59, s11")
        self("s_mov_b32 s62, 0")

        def progress(first=False, late=0):
            sk = self.lab("pg")
            self(f"""
                s_cmp_lg_u32 s3, 0
                s_cbranch_scc1 {sk}
                s_memrealtime s[10:11]
                s_add_u32 s72, s72, 4
                v_mov_b32 v6, s72
                s_waitcnt lgkmcnt(0)
                s_or_b32 s10, s10, 1
                v_mov_b32 v7, s10
                ds_write_b32 v6, v7 offset:{C_T}
                {sk}:""")
            if not first:
                self("v_add_u32 v4, 1024, v4\ns_add_u32 s62, s62, 1")

        def body(consume, vphase=False):
            for i in range(16):
                if vphase and i in (0, 8):
                    self(f"ds_read_b128 v[28:31], v4 offset:{L_P + (i >> 3) * 512}")
                if vphase and i > 0:
                    self(f"s_cbranch_vccnz L_dr{i}" if (i >= 12 or i == 1) else f"s_cbranch_vccnz L_cons{i}")
                if i == 8:
                    progress(True)
                if o["ctl"] and i % 4 == 2:
                    self(f"ds_read_b64 v[6:7], v1 offset:{C_CTL}\ns_memrealtime s[74:75]")
                if o["ctl"] and i % 4 == 3:
                    self(f"""
                        s_waitcnt lgkmcnt(0)
                        v_readfirstlane_b32 s68, v6
                        v_readfirstlane_b32 s69, v7
                        s_lshl_b32 s10, s74, 5
                        s_mul_i32 s11, s69, s93
                        s_add_u32 s93, s93, 2
                        s_sub_u32 s10, s10, s68
                        s_sub_u32 s10, s10, s11
                        s_cmp_eq_u32 s69, 0
                        s_cselect_b32 s10, {(o["boost0"] << 22) // o["gain"]}, s10""")
                    self.levels("s68", "s69")
                if vphase and i == o["mat"]:
                    self("s_lshl_b32 s10, s3, 4\ns_or_b32 s10, s10, s62\ns_cmp_lg_u32 s10, 0x26\ns_cbranch_scc1 L_nomark")
                    self.lds_inc(C_MARK)
                    self("L_nomark:")
                if i in (1, 9):
                    self.advance_window(i == 1)
                self.issue((i - 1) & 7, (i - 1) & 15, W)
                if vphase:
                    self(f"L_cons{i}:")
                consume(i)

        self.spin_lds(C_QRDY, 3)
        progress(True)
        self("L_kbatch:")
        for j in range(3):
            self(f"ds_read_b128 v[{8 + 4*j}:{11 + 4*j}], v40 offset:{L_Q + 128 * j}")
        self("v_add_u32 v40, 384, v40\ns_waitcnt lgkmcnt(0)")
        if o["stamps"]:
            self("s_cmp_lg_u32 s62, 0\ns_cbranch_scc1 L_kloop")
            self.stamp(4)
        self("L_kloop:")
        body(self.consume_k)
        progress()
        self("""
            s_bitcmp1_b32 s62, 0
            s_cbranch_scc1 L_kloop
            s_bitcmp1_b32 s62, 1
            s_cbranch_scc1 L_kbatch""")
        self.lds_inc(C_KSEG)
        self("s_cmp_lt_u32 s62, 8\ns_cbranch_scc1 L_kbatch")
        self.stamp(5)
        self(f"""
            v_lshrrev_b32 v4, 3, v0
            v_lshlrev_b32 v4, 4, v4
            v_add_u32 v40, {3 * 6144}, v42
            s_mov_b32 s62, 0
            s_mov_b32 s73, 4
            s_mov_b64 vcc, 0
            L_vseg:""")
        self.spin_lds(C_PRDY, "s73")
        self("s_mov_b32 s73, 8")
        self("L_vbatch:")
        for i in range(12):
            self(f"v_mov_b32 v{8 + i}, 0")
        self("L_vloop:")
        body(self.consume_v, vphase=True)
        self("s_cbranch_vccnz L_vflush")
        progress()
        self("""
            s_cmp_eq_u32 s62, 7
            s_cselect_b64 vcc, -1, 0
            s_bitcmp1_b32 s62, 0
            s_cbranch_scc1 L_vloop
            s_sub_u32 s62, s62, 1
            L_vflush:""")
        self.flush_acc()
        self("s_lshl_b32 s10, s62, 1\nv_mov_b32 v7, s10")
        self.lds_inc(C_OCNT - 2, ret=True, addr="v7")
        self("""
            s_cbranch_vccnz L_vlast
            s_add_u32 s62, s62, 1
            v_add_u32 v41, 6144, v41
            s_cmp_eq_u32 s62, 4
            s_cbranch_scc1 L_vseg
            s_branch L_vbatch""")
        self("L_dr1:")
        self.lds_inc(C_ISS)
        self.spin_lds(C_SC + 24, 1, wide=True)
        self("s_mov_b32 s73, s11\ns_branch L_cons1")
        for i in (12, 13, 14, 15):
            self(f"L_dr{i}:\ns_waitcnt vmcnt({3 * (15 - i)})\ns_branch L_cons{i}")
        self("L_vlast:")
        self.stamp(7)
        self("s_cmp_lg_u32 s10, 3\ns_cbranch_scc1 L_nolast")
        self.publish_o()
        self.stamp(8)
        self("L_nolast:")
        if o["series"]:
            self(f"""
                s_lshl_b32 s10, s3, 7
                v_mov_b32 v6, s10
                v_mov_b32 v7, s87
                ds_write_b32 v6, v7 offset:{L_SER + 124}
                v_and_b32 v6, 31, v0
                v_lshlrev_b32 v6, 2, v6
                v_add_u32 v6, s10, v6
                ds_read_b32 v7, v6 offset:{L_SER}
                s_lshl_b32 s10, s2, 9
                s_add_u32 s10, s10, {STAMPS + 0x100000}
                v_add_u32 v6, s10, v6
                s_waitcnt lgkmcnt(0)
                global_store_dword v6, v7, s[36:37]""")
        self("s_branch L_end")

    def item_loads(self, part):
        if part < 2:
            for rho in range(8):
                r = 48 + (part * 8 + rho) * 2
                self(f"buffer_load_dwordx2 v[{r}:{r+1}], v44, s[40:43], s13 offen nt")
                self(f"s_add_u32 s13, s13, {'s71' if rho == 7 else 's70'}")
        else:
            for rho in range(4):
                r = 80 + rho * 2
                self(f"buffer_load_dwordx2 v[{r}:{r+1}], v45, s[40:43], s13 offen nt")
                if rho < 3:
                    self("s_add_u32 s13, s13, s70")

    def frag_norm(self):
        for i in range(10):
            self(f"v_lshlrev_b32 v{8 + 2*i}, 16, v{28 + i}\nv_and_b32 v{9 + 2*i}, 0xffff0000, v{28 + i}")
        self("s_waitcnt lgkmcnt(0)")
        for i in range(20):
            self(f"v_sub_f32 v{8 + i}, v{8 + i}, v40")
        for i in range(10):
            self(f"v_cvt_pk_bf16_f32 v{28 + i}, v{8 + 2*i}, v{9 + 2*i}")
        for i in range(10):
            self(f"v_lshlrev_b32 v{8 + 2*i}, 16, v{28 + i}\nv_and_b32 v{9 + 2*i}, 0xffff0000, v{28 + i}")
        for i in range(20):
            self(f"v_mul_f32 v{8 + i}, v{8 + i}, v41")
        for i in range(10):
            self(f"v_cvt_pk_bf16_f32 v{144 + i}, v{8 + 2*i}, v{9 + 2*i}")

    def item_compute(self):
        for s in range(3):
            self(f"s_waitcnt vmcnt({(12, 4, 0)[s]})")
            nm = 4 if s < 2 else 2
            for e in range(4):
                for m in range(nm):
                    lo = 48 + (s * 8 + 2 * m) * 2 + (e >> 1)
                    self(f"v_perm_b32 v{88 + s*16 + e*nm + m}, v{lo + 2}, v{lo}, s{68 + (e & 1)}")
            self("s_nop 1")
            for e in range(4):
                a = 88 + s * 16 + e * nm
                d = 128 + e * 4
                c = "0" if s == 0 else f"v[{d}:{d+3}]"
                if s < 2:
                    self(f"v_mfma_f32_16x16x32_bf16 v[{d}:{d+3}], v[{a}:{a+3}], v[{144 + 4*s}:{147 + 4*s}], {c}")
                else:
                    self(f"v_mfma_f32_16x16x16_bf16 v[{d}:{d+3}], v[{a}:{a+1}], v[152:153], {c}")
        self("s_nop 7")
        for r in range(4):
            self(f"v_cndmask_b32 v{128 + r}, v{128 + r}, v{132 + r}, s[66:67]")
            self(f"v_cndmask_b32 v{136 + r}, v{136 + r}, v{140 + r}, s[66:67]")
        for r in range(4):
            self(f"v_cndmask_b32 v{128 + r}, v{128 + r}, v{136 + r}, s[64:65]")
        self(f"ds_write_b128 v46, v[128:131] offset:{L_ORED}")

    def gather_tile(self, slot, sleep, silu, dst):
        self(f"""
            s_lshl_b32 s13, {slot}, 3
            s_add_u32 s13, s13, s72
            s_lshl_b32 s13, s13, 10""")
        self.poll([(8, "buffer_load_dwordx4 v[8:11], v229, s[44:47], s13 offen sc1"),
                   (12, "buffer_load_dwordx4 v[12:15], v229, s[44:47], s13 offen offset:3072 sc1")], sleep)
        for e in range(4):
            self(f"v_add_f32 v{8 + e}, v{8 + e}, v{12 + e}")
        if silu:
            for e in range(4):
                self.bf16_round(8 + e)
            for e in range(4):
                self(f"v_mul_f32 v{12 + e}, {f32(-1.4426950408889634)}, v{8 + e}")
            for e in range(4):
                self(f"v_exp_f32 v{12 + e}, v{12 + e}")
            for e in range(4):
                self(f"v_add_f32 v{12 + e}, 1.0, v{12 + e}")
            for e in range(4):
                self(f"v_rcp_f32 v{12 + e}, v{12 + e}")
            for e in range(4):
                self(f"v_mul_f32 v{8 + e}, v{8 + e}, v{12 + e}")
        self(f"""
            v_cvt_pk_bf16_f32 v8, v8, v9
            v_cvt_pk_bf16_f32 v10, v10, v11
            ds_write_b16 v233, v8 offset:{dst}
            ds_write_b16_d16_hi v233, v8 offset:{dst + 8}
            ds_write_b16 v233, v10 offset:{dst + 16}
            ds_write_b16_d16_hi v233, v10 offset:{dst + 24}""")

    def gather_o(self, batches, sleep, fl="sc1", hook=None):
        loads = []
        for n, b in enumerate(batches):
            for i in range(2):
                r = 8 + 8 * n + 4 * i
                self(f"s_add_u32 s{16 + 2*n + i}, s62, {8192 * b + 4096 * i}")
                loads.append((r, f"buffer_load_dwordx4 v[{r}:{r+3}], v47, s[44:47], s{16 + 2*n + i} offen {fl}"))

        def finish():
            for n, b in enumerate(batches):
                r = 8 + 8 * n
                for e in range(4):
                    self(f"v_add_f32 v{r + e}, v{r + e}, v{r + 4 + e}")
                self.rows4_reduce(r)
                self(f"v_cvt_pk_bf16_f32 v{r}, v{r}, v{r}\nds_write_b16 v44, v{r} offset:{L_OBUF + 384 * b}")

        warm = self.o["warm"] and len(batches) == 1
        self.poll(loads, sleep, hook=hook, inner=finish if warm else None)
        if not warm:
            finish()

    def tile_lanes(self):
        self("""
            v_lshlrev_b32 v232, 1, v4
            v_xor_b32 v232, v232, v3
            v_lshlrev_b32 v232, 4, v232
            v_mad_u32_u24 v232, v4, s11, v232""")

    def tile_setup(self):
        self.srd(40, 24, 6144 * 1280)
        self(f"""
            s_mul_i32 s70, s77, {192 * 1280}
            s_lshl_b32 s10, s39, 8
            s_add_u32 s70, s70, s10
            s_add_u32 s71, s70, {192 * 1280}
            s_mov_b32 m0, {L_WT}
            s_movk_i32 s11, 1280""")
        self.tile_lanes()
        self(f"""
            v_bfe_u32 v234, v2, 1, 1
            v_lshl_add_u32 v234, s72, 2, v234
            v_bfe_u32 v235, v2, 2, 2
            v_lshlrev_b32 v7, 1, v235
            v_xor_b32 v234, v234, v7
            v_lshlrev_b32 v234, 4, v234
            v_lshl_add_u32 v234, v235, 8, v234
            v_and_b32 v235, 1, v2
            v_lshl_add_u32 v234, v235, 3, v234
            v_xor_b32 v235, 32, v234
            v_mul_u32_u24 v7, {2 * TROW}, v4
            v_add_u32 v7, {L_WT}, v7
            v_add_u32 v234, v234, v7
            v_add_u32 v235, v235, v7""")

    def tile_issue(self, limit, depth, srd="s[40:43]", off="s70"):
        lp = self.lab("tl")
        self(f"""
            {lp}:
            s_waitcnt vmcnt({depth - 1})
            buffer_load_dwordx4 v232, {srd}, {off} offen nt lds
            s_add_u32 m0, m0, {TROW}
            s_add_u32 {off}, {off}, {4 * 1280}
            s_cmp_lt_u32 {off}, {limit}
            s_cbranch_scc1 {lp}""")

    def fragments(self):
        for s in range(6):
            for e in range(2):
                for hf in range(2):
                    r = 180 + s * 8 + e * 4 + hf * 2
                    self(f"ds_read_b64_tr_b16 v[{r}:{r+1}], v{234 + e} offset:{(8 * s + hf) * TROW}")

    def project(self, final):
        if final:
            self("s_waitcnt lgkmcnt(0)\ns_barrier")
        for s in range(6):
            self(f"ds_read_b128 v[{8 + 4*s}:{11 + 4*s}], v228 offset:{L_OBUF + 64 * s}")
        for s in range(6):
            self(f"s_waitcnt lgkmcnt({5 - s})")
            for e in range(2):
                b = 180 + s * 8 + e * 4
                d = 32 + e * 4
                c = "0" if s == 0 else f"v[{d}:{d+3}]"
                self(f"v_mfma_f32_16x16x32_bf16 v[{d}:{d+3}], v[{8 + 4*s}:{11 + 4*s}], v[{b}:{b+3}], {c}")
        self("s_mov_b32 vcc_lo, 0xffff0000\ns_mov_b32 vcc_hi, 0\ns_nop 6")
        for r in range(4):
            self(f"v_cndmask_b32 v{32 + r}, v{32 + r}, v{36 + r}, vcc")
        self.tag_data(32, 236)
        self("s_mov_b32 exec_hi, 0")
        if final and self.o["local"]:
            self("""
                s_cmp_eq_u32 s58, 0
                s_cbranch_scc1 L_ythru
                buffer_store_dwordx4 v[32:35], v229, s[44:47], s75 offen
                s_branch L_ydone
                L_ythru:""")
        self("buffer_store_dwordx4 v[32:35], v229, s[44:47], s75 offen sc1")
        self("L_ydone:\ns_mov_b64 exec, -1" if final else "s_mov_b64 exec, -1")

    def prep(self, g):
        o = self.o
        lp, dn, keep = self.lab("fl"), self.lab("fd"), self.lab("fk")
        AGN = "s_mov_b64 s[60:61], s[52:53]\ns_mov_b64 s[54:55], s[52:53]"
        if g == 0 and o["agn"] and "a" not in o["skip"]:
            AGN = """
                s_lshr_b32 s10, s59, 16
                s_xor_b32 s10, s10, s4
                s_bitcmp1_b32 s10, 0
                s_cselect_b32 s54, -1, 0
                s_xor_b32 s54, s54, 0xffff0000
                s_cmp_eq_u32 s72, 0
                s_cselect_b32 s54, s54, s52
                s_mov_b32 s55, s53
                s_or_b64 s[60:61], s[52:53], s[54:55]"""
        self(f"s_add_u32 s63, s68, {8 * g + 8}")
        self.until("s63")
        self.spin_lds(C_KSEG, 4 * (g + 1), sleep=8)
        self(f"""
            ds_read_b128 v[32:35], v230 offset:{L_S + 4096 * g}
            s_lshr_b32 s62, s59, 16
            s_xor_b32 s62, s62, s59
            s_lshl_b32 s11, s72, 1
            s_add_u32 s11, s11, {8 * g}
            s_lshr_b32 s10, s62, s11
            s_bitcmp1_b32 s10, 0
            s_cselect_b32 s52, -1, 0
            s_bitcmp1_b32 s10, 1
            s_cselect_b32 s53, -1, 0
            {AGN}
            s_lshl_b32 s13, s2, 13
            s_add_u32 s13, s13, {SC + 4096 * g}
            s_xor_b32 s14, s13, {4 << 13}
            s_lshl_b32 s15, s2, 8
            s_add_u32 s15, s15, {FL + 128 * g}
            s_waitcnt lgkmcnt(0)
            s_cmp_eq_u64 s[60:61], 0
            s_cbranch_scc1 {keep}s
            s_mov_b64 exec, s[60:61]
            buffer_store_dwordx4 v[32:35], v230, s[44:47], s13 offen {o["scst"]}
            s_waitcnt vmcnt(0)
            {keep}s:""")
        self.lds_inc(C_FCNT, ret=True)
        self(f"""
            s_cmp_lg_u32 s10, {4 * g + 3}
            s_cbranch_scc1 {keep}f
            s_bfe_u32 s10, s62, {(8 << 16) | (8 * g)}
            {"" if (g == 0 and o["agn"] and "a" not in o["skip"]) else f"s_cbranch_scc0 {keep}f"}
            v_mov_b32 v5, s92
            v_lshlrev_b32 v6, 2, v2
            s_mov_b32 exec_hi, 0
            buffer_store_dword v5, v6, s[44:47], s15 offen sc1
            s_mov_b32 exec_hi, -1
            {keep}f:
            s_xor_b32 s56, s15, {4 << 8}
            s_mov_b32 s57, s14""")
        self(f"s_add_u32 s63, s69, {8 * g + 8}")
        self.until("s63")
        self(f"s_cmp_eq_u64 s[60:61], 0\ns_cbranch_scc1 {keep}")
        self(f"""
            s_mov_b32 s12, 0x40000
            s_mov_b64 exec, 1
            {lp}:
            buffer_load_dword v6, v1, s[44:47], s56 offen sc1
            s_waitcnt vmcnt(0)
            v_readfirstlane_b32 s10, v6
            s_cmp_eq_u32 s10, s92
            s_cbranch_scc1 {dn}
            s_sleep {o["fsleep"]}
            s_sub_u32 s12, s12, 1
            s_cbranch_scc0 {lp}
            s_branch L_end
            {dn}:
            s_mov_b64 exec, s[60:61]
            buffer_load_dwordx4 v[36:39], v230, s[44:47], s57 offen {o["scld"]}
            s_mov_b64 exec, -1
            s_waitcnt vmcnt(0)""")
        for i in range(4):
            self(f"v_cndmask_b32 v{32 + i}, v{32 + i}, v{36 + i}, {'s[54:55]' if 2 * i < o['agn'] else 's[52:53]'}")
        self(f"{keep}:")
        for i in range(4):
            self(f"v_lshlrev_b32 v{8 + 2*i}, 16, v{32 + i}\nv_and_b32 v{9 + 2*i}, 0xffff0000, v{32 + i}")
        self("v_max3_f32 v24, v8, v9, v10\nv_max3_f32 v24, v24, v11, v12\nv_max3_f32 v24, v24, v13, v14\nv_max_f32 v24, v24, v15")
        self.wave_allreduce("v_max_f32", 24, 25)
        self(f"""
            s_lshl_b32 s10, s72, 2
            v_mov_b32 v26, s10
            ds_write_b32 v26, v24 offset:{C_MAX + 16 * g}
            v_xor_b32 v26, 4, v26""")
        self.lds_inc(C_MAXC)
        self.spin_lds(C_MAXC, 4 * (g + 1), sleep=2)
        self(f"""
            ds_read_b32 v25, v26 offset:{C_MAX + 16 * g}
            s_mov_b32 s10, {f32(1.4426950408889634)}
            s_waitcnt lgkmcnt(0)
            v_max_f32 v24, v24, v25""")
        for i in range(8):
            self(f"v_sub_f32 v{8 + i}, v{8 + i}, v24")
        for i in range(8):
            self(f"v_mul_f32 v{8 + i}, s10, v{8 + i}")
        for i in range(8):
            self(f"v_exp_f32 v{8 + i}, v{8 + i}")
        for i in range(4):
            self(f"v_cvt_pk_bf16_f32 v{32 + i}, v{8 + 2*i}, v{9 + 2*i}")
        self(f"ds_write_b128 v230, v[32:35] offset:{L_P + 4096 * g}")
        self.lds_inc(C_PRDY)
        for step in (4, 2, 1):
            for i in range(step):
                self(f"v_add_f32 v{8 + i}, v{8 + i}, v{8 + step + i}")
        self.wave_allreduce("v_add_f32", 8, 9)
        self(f"""
            v_mov_b32 v25, s92
            v_mov_b32 v26, v8
            v_mov_b32 v27, s92
            v_lshlrev_b32 v9, 2, v231
            s_mov_b64 exec, 1
            ds_write_b128 v9, v[24:27] offset:{L_STAT + 64 * g}
            s_mov_b64 exec, -1""")
        if g == 1:
            self.lds_inc(C_SCNT, ret=True)
            self(f"""
                s_cmp_lg_u32 s10, 3
                s_cbranch_scc1 L_nostat
                s_mov_b64 exec, 0xff
                ds_read_b128 v[24:27], v229 offset:{L_STAT}
                s_lshl_b32 s13, s6, 3
                s_add_u32 s13, s13, s8
                s_lshl_b32 s13, s13, 7
                s_add_u32 s13, s13, {ST}
                s_waitcnt lgkmcnt(0)
                buffer_store_dwordx4 v[24:27], v229, s[44:47], s13 offen sc1
                s_mov_b64 exec, -1
                L_nostat:""")

    def scale(self):
        self.note("softmax scale per batch from the (max, sum) records of the head's eight workgroups")
        lp, dn = self.lab("sl"), self.lab("sd")
        self(f"""
            v_bfe_u32 v12, v2, 1, 3
            v_lshlrev_b32 v12, 7, v12
            v_lshl_add_u32 v12, v4, 5, v12
            v_and_b32 v13, 1, v2
            v_lshl_add_u32 v12, v13, 4, v12
            s_lshl_b32 s13, s6, 10
            s_add_u32 s13, s13, {ST}
            s_mov_b32 s12, 0x40000
            {lp}:
            buffer_load_dwordx4 v[8:11], v12, s[44:47], s13 offen sc1
            s_waitcnt vmcnt(0)
            v_xor_b32 v13, s92, v9
            v_bitop3_b32 v13, v13, v11, s92 bitop3:0xf6
            v_cmp_ne_u32 vcc, 0, v13
            s_cmp_eq_u64 vcc, 0
            s_cbranch_scc1 {dn}
            s_sleep 24
            s_sub_u32 s12, s12, 1
            s_cbranch_scc0 {lp}
            s_branch L_end
            {dn}:
            v_mov_b32 v9, v8""")
        self.row16_allreduce("v_max_f32", 9)
        self(f"""
            v_sub_f32 v8, v8, v9
            v_mul_f32 v8, {f32(1.4426950408889634)}, v8
            v_exp_f32 v8, v8
            s_lshl_b32 s10, s8, 1
            v_mul_f32 v10, v10, v8""")
        self.row16_allreduce("v_add_f32", 10)
        self(f"""
            v_rcp_f32 v10, v10
            v_lshlrev_b32 v11, 3, v4
            v_mul_f32 v9, v8, v10
            v_mov_b32 v8, 1
            s_lshl_b32 exec_lo, 0x10001, s10
            s_mov_b32 exec_hi, exec_lo
            ds_write_b64 v11, v[8:9] offset:{C_SC}
            s_mov_b64 exec, -1""")

    def levels(self, up, down):
        o = self.o
        self(f"""
            s_min_i32 s10, s10, {(o["cmax"] << 22) // o["gain"]}
            s_max_i32 s10, s10, {-((o["cmaxs"] << 22) // o["gains"])}
            s_max_i32 {up}, s10, 0
            s_sub_i32 {down}, 0, s10
            s_max_i32 {down}, {down}, 0
            s_mul_i32 {up}, {up}, {o["gain"] << 6}
            s_mul_i32 {down}, {down}, {o["gains"] << 6}""")

    def until(self, reg):
        self.control(reg, guard=True)
        self(f"s_lshl_b32 s10, {reg}, 2\nv_mov_b32 v9, s10")
        self.spin_lds(C_T, 1, sleep=16, addr="v9")

    def control(self, last, check=True, guard=False):
        o = self.o
        if not o["ctl"]:
            return
        lp, dn, np_, nc = self.lab("cl"), self.lab("cd"), self.lab("cp"), self.lab("cn")
        if check:
            self(f"s_cmp_lg_u32 s72, 3\ns_cbranch_scc1 {dn}")
        if guard:
            self(f"s_cmp_ge_u32 s96, {last}\ns_cbranch_scc1 {dn}")
        self(f"""
            {lp}:
            s_add_u32 s96, s96, 1
            s_lshl_b32 s10, s96, 2
            v_mov_b32 v9, s10""")
        self.spin_lds(C_T, 1, sleep=4, addr="v9")
        self(f"""
            s_mov_b32 s97, s10
            s_lshl_b32 s13, s96, 12
            s_add_u32 s13, s13, {CT}
            s_cmp_lt_u32 s96, {max(1, min(o['cfirst'], o['nomn']))}
            s_cselect_b32 s10, 0x80000000, 0
            v_lshl_or_b32 v9, v2, 7, s10
            s_mov_b32 exec_hi, 0
            s_mov_b32 exec_lo, {"-1" if o["nsmp"] == 32 else "0xffff"}
            buffer_load_dwordx2 v[10:11], v9, s[44:47], s13 offen sc1
            s_cmp_ge_u32 s99, {o["nsmp"]}
            s_cbranch_scc1 {np_}
            s_lshl_b32 s14, s99, 7
            s_add_u32 s14, s14, s13
            s_add_u32 s14, s14, 4096
            v_mov_b32 v12, s92
            v_mov_b32 v13, s97
            v_lshlrev_b32 v14, 3, v2
            s_mov_b32 exec_lo, 0xffff
            buffer_store_dwordx2 v[12:13], v14, s[44:47], s14 offen sc1
            s_mov_b32 exec_lo, {"-1" if o["nsmp"] == 32 else "0xffff"}
            s_waitcnt vmcnt(1)
            s_branch {np_}w
            {np_}:
            s_waitcnt vmcnt(0)
            {np_}w:
            v_cmp_eq_u32 vcc, s92, v10
            v_sub_u32 v11, s97, v11
            s_nop 0
            v_cndmask_b32 v11, 0, v11, vcc""")
        self.row16_allreduce("v_add_u32", 11)
        self(f"""
            s_nop 0
            v_readlane_b32 s10, v11, 0
            v_readlane_b32 s11, v11, {16 if o['nsmp'] == 32 else 0}
            s_mov_b64 exec, -1
            s_add_u32 s10, s10, s11
            s_lshl_b32 s11, s97, 5
            s_sub_u32 s11, s11, s10
            s_sub_u32 s12, s11, s98
            s_mov_b32 s98, s11
            s_cmp_le_u32 s96, {o["nomn"]}
            s_cselect_b32 s12, {o["nominal"] * 16}, s12
            s_mov_b32 s14, s100
            s_mov_b32 s100, s12
            s_cmp_lt_u32 s96, {o["cfirst"]}
            s_cbranch_scc1 {nc}""")
        self({"last": "s_lshr_b32 s12, s12, 2",
              "min": "s_min_u32 s12, s12, s14\ns_lshr_b32 s12, s12, 2",
              "avg": "s_add_u32 s12, s12, s14\ns_lshr_b32 s12, s12, 3"}[o["pest"]])
        self("""
            s_sub_u32 s10, s96, 1
            s_mul_i32 s10, s10, s12
            s_lshl_b32 s10, s10, 2
            s_sub_u32 s11, s11, s10
            s_sub_u32 s11, s11, s101""")
        self(f"""
            v_mov_b32 v12, s11
            v_mov_b32 v13, s12
            ds_write_b64 v1, v[12:13] offset:{C_CTL}
            {nc}:
            s_cmp_lt_u32 s96, {last}
            s_cbranch_scc1 {lp}
            {dn}:""")

    def helper(self):
        o = self.o
        self.in_helper = True
        self(f"""
            L_helper:
            s_sub_u32 s72, s3, 4
            s_sub_u32 s74, s38, 48
            s_mul_i32 s61, s74, 43
            s_lshr_b32 s61, s61, 8
            s_mul_i32 s10, s61, 6
            s_sub_u32 s73, s74, s10
            s_add_u32 s61, s61, 32
            s_cmp_lt_u32 s8, 6
            s_cselect_b32 s61, s6, s61
            s_cselect_b32 s73, s8, s73
            s_cselect_b32 s74, 0, s74
            s_cselect_b32 s70, 12, 3
            s_lshl_b32 s70, s70, 10
            s_mul_i32 s71, s70, 25
            s_cmp_ge_u32 s73, 3
            s_cselect_b32 s14, 4, 0
            s_cselect_b32 s10, 3, 0
            s_add_u32 s14, s14, s72
            s_mul_i32 s14, s14, 80
            s_sub_u32 s10, s73, s10
            s_and_b32 s11, s61, 31
            s_mul_i32 s11, s11, 3
            s_add_u32 s10, s10, s11
            s_lshl_b32 s10, s10, 7
            s_mul_i32 s13, s14, s70
            s_add_u32 s13, s13, s10
            s_lshl_b32 s14, s14, 1
            v_and_b32 v3, 15, v2
            v_lshrrev_b32 v4, 4, v2
            v_mul_u32_u24 v5, 1280, v4
            v_lshl_add_u32 v5, v3, 4, v5
            v_lshrrev_b32 v6, 2, v3
            v_mul_u32_u24 v7, 1280, v6
            v_lshl_add_u32 v38, v4, 3, v7
            v_lshl_add_u32 v7, v4, 4, v7
            v_mul_u32_u24 v45, s70, v4
            v_add_lshl_u32 v44, v45, v3, 3
            v_lshlrev_b32 v45, 2, v45
            v_lshl_add_u32 v45, v3, 3, v45
            s_or_b32 s10, s2, s72""")
        self.args_ready()
        self(f"""
            s_cmp_lg_u32 s10, 0
            s_cbranch_scc1 L_nononce
            s_max_u32 s10, s94, 1
            v_mov_b32 v46, s10
            v_mov_b32 v47, s7
            v_lshlrev_b32 v43, 3, v2
            s_mov_b64 exec, 0xffff
            global_store_dwordx2 v43, v[46:47], s[34:35] sc1
            s_mov_b64 exec, -1
            L_nononce:
            s_mov_b32 s42, {640 * 1536 * 2}
            s_cmp_lt_u32 s8, 6
            s_cselect_b32 s40, s22, s28
            s_cselect_b32 s41, s23, s29
            s_cselect_b32 s42, {640 * 6144 * 2}, s42
            s_and_b32 s41, s41, 0xffff
            s_mov_b32 s43, 0x20000""")
        self.srd(48, 16, 5120)
        self.srd(44, 36, WS_END)
        self.stamp(1, 2)
        if o["hprio"]:
            self("s_setprio 2")
        self("s_barrier\ns_barrier" if o["bar2"] else "s_barrier")
        self.stamp(2, 2)
        def w2_tile():
            self("s_sub_u32 s56, s38, 32\ns_cmp_ge_u32 s56, 40\ns_cbranch_scc1 L_now2")
            self.srd(52, 30, 1536 * 1280)
            self(f"""
                s_mul_i32 s57, s56, 52
                s_lshr_b32 s57, s57, 8
                s_mul_i32 s10, s57, 5
                s_sub_u32 s10, s56, s10
                s_lshl_b32 s10, s10, 8
                s_lshl_b32 s62, s57, 2
                s_add_u32 s62, s62, s72
                s_mul_i32 s62, s62, {48 * 1280}
                s_add_u32 s62, s62, s10
                s_add_u32 s63, s62, {48 * 1280}
                s_mul_i32 s10, s72, {12 * TROW}
                s_add_u32 m0, s10, {L_WT}
                s_movk_i32 s11, 1280""")
            self.tile_lanes()
            self.tile_issue("s63", o["tdepth0"], "s[52:55]", "s62")
            self("L_now2:")

        if not o["w2last"]:
            w2_tile()
        self("s_cmp_ge_u32 s74, 48\ns_cbranch_scc1 L_noloads")
        for i in range(5):
            self(f"buffer_load_dwordx4 v[{8 + 4*i}:{11 + 4*i}], v5, s[48:51], 0 offen offset:{256 * i}")
        self("""
            buffer_load_dwordx4 v[28:31], v7, s[48:51], s14 offen
            buffer_load_dwordx4 v[32:35], v7, s[48:51], s14 offen offset:64
            buffer_load_dwordx2 v[36:37], v38, s[48:51], s14 offen offset:128""")
        first = (3, 1, 2)[o["hsplit"]]
        for p in range(first):
            self.item_loads(p)
        self("L_noloads:")
        if o["w2last"]:
            w2_tile()
        self.stamp(3, 2)
        self.masks()
        self.roles()
        self(f"""
            s_mov_b32 s68, 0x05040100
            s_mov_b32 s69, 0x07060302
            v_lshlrev_b32 v229, 4, v2
            v_and_b32 v47, 3, v2
            v_mul_u32_u24 v228, 384, v47
            v_lshl_add_u32 v228, v4, 4, v228
            v_mul_u32_u24 v233, 384, v4
            v_lshl_add_u32 v233, v6, 5, v233
            v_lshl_add_u32 v233, v47, 1, v233
            s_lshl_b32 s10, s72, 7
            v_add_u32 v233, s10, v233
            s_lshl_b32 s10, s72, 10
            v_add_u32 v230, s10, v229
            v_lshl_add_u32 v46, v6, 8, s10
            v_lshl_add_u32 v46, v4, 6, v46
            v_lshl_add_u32 v46, v47, 4, v46
            s_lshl_b32 s10, s72, 2
            v_mov_b32 v231, s10
            s_mov_b32 s60, 0
            s_cmp_ge_u32 s74, 48
            s_cbranch_scc1 L_noitem
            v_lshlrev_b32 v47, 6, v6
            s_mov_b32 s10, 0x3f803f80
            s_waitcnt vmcnt({(20, 8, 16)[o["hsplit"]]})""")
        self.stamp(4, 2)
        for i in range(20):
            self(f"v_dot2_f32_bf16 v40, v{8 + i}, s10, {'0' if i == 0 else 'v40'}")
        self("s_nop 1")
        self.row16_allreduce("v_add_f32", 40)
        self(f"v_mul_f32 v40, {f32(1 / 640)}, v40")
        for p in range(first, 3):
            self.item_loads(p)
        self("v_mov_b32 v41, 0\nv_mov_b32 v42, 0")
        for i in range(20):
            self(f"""
                v_lshlrev_b32 v38, 16, v{8 + i}
                v_and_b32 v39, 0xffff0000, v{8 + i}
                v_sub_f32 v38, v38, v40
                v_sub_f32 v39, v39, v40
                v_fmac_f32 v41, v38, v38
                v_fmac_f32 v42, v39, v39""")
        self("v_add_f32 v41, v41, v42")
        self.row16_allreduce("v_add_f32", 41)
        self(f"v_mul_f32 v41, {f32(1 / 640)}, v41")
        self.bf16_round(41)
        self(f"v_add_f32 v41, {f32(1e-5)}, v41")
        self.bf16_round(41)
        self("v_sqrt_f32 v41, v41\ns_nop 0")
        self.bf16_round(41)
        self("v_rcp_f32 v41, v41")
        self.bf16_round(40)
        self("ds_bpermute_b32 v40, v47, v40\nds_bpermute_b32 v41, v47, v41")
        self.frag_norm()
        self.stamp(5, 2)
        self.item_compute()
        self.lds_inc(C_ICNT, ret=True)
        self("s_mov_b32 s60, s10\nL_noitem:")
        self.stamp(1)
        self.stamp(6, 2)
        self.spin_lds(C_NONCE, 1, sleep=0)
        self("s_mov_b32 s92, s10")
        self.tags(236)
        self("s_cmp_lg_u32 s60, 3\ns_cbranch_scc1 L_nopub")
        for k in range(4):
            self(f"ds_read_b128 v[{8 + 4*k}:{11 + 4*k}], v229 offset:{L_ORED + 1024 * k}")
        self("""
            s_lshl_b32 s13, s61, 3
            s_add_u32 s13, s13, s73
            s_lshl_b32 s13, s13, 10
            s_waitcnt lgkmcnt(0)""")
        for e in range(4):
            self(f"v_add_f32 v{8 + e}, v{8 + e}, v{12 + e}\nv_add_f32 v{16 + e}, v{16 + e}, v{20 + e}")
        for e in range(4):
            self(f"v_add_f32 v{24 + e}, v{8 + e}, v{16 + e}")
        self.tag_data(24, 236)
        self(f"buffer_store_dwordx4 v[24:27], v229, s[44:47], s13 offen {o['qst']}\nL_nopub:")
        self.stamp(2)
        self.stamp(7, 2)
        self("s_cmp_eq_u32 s72, 3\ns_cbranch_scc1 L_noq")
        self.spin_lds(C_MARK, 1, sleep=2)
        self.gather_tile("s6", o["qsleep"], False, L_Q)
        self.lds_inc(C_QRDY)
        self("L_noq:")
        if o["hprio"]:
            self("s_setprio 0")
        self.stamp(4)
        self.stamp(9, 2)
        self.tile_setup()
        self(f"""
            s_mov_b32 s96, -1
            s_mov_b32 s98, 0
            s_mov_b32 s100, -1
            s_mov_b32 s101, {((o["bias"] * 32) - o["gapr"] * 20) & 0xffffffff}
            s_cmp_eq_u32 s76, 0
            s_cselect_b32 s101, {((o["bias"] * 32) + o["gapr"] * 12) & 0xffffffff}, s101
            s_sub_u32 s99, s2, {8 * o["smp0"]}
            s_cmp_lt_u32 s99, 16
            s_cselect_b32 s99, s99, 64""")
        self.control(0)
        self.spin_lds(C_T, 1, sleep=16)
        self(f"""
            s_cmp_ge_u32 s56, 40
            s_cbranch_scc1 L_noffn
            s_lshl_b32 s75, s56, 2
            s_add_u32 s75, s75, s72
            s_lshl_b32 s75, s75, 9
            s_add_u32 s75, s75, {YP + 32 * 10240}
            s_add_u32 s57, s57, 32
            s_cmp_eq_u32 s72, 3
            s_cbranch_scc1 L_fsync""")
        self.gather_tile("s57", 16, True, L_OBUF)
        self("L_fsync:\ns_waitcnt vmcnt(0)")
        self.lds_inc(C_HS)
        self.spin_lds(C_HS, 4, sleep=4)
        self.fragments()
        self("s_waitcnt lgkmcnt(0)")
        self.project(False)
        self(f"""
            L_noffn:
            s_cmp_lg_u32 s76, 0
            s_cbranch_scc1 L_noproj
            s_lshl_b32 s10, s39, 2
            s_add_u32 s10, s10, s72
            s_lshl_b32 s10, s10, 9
            s_mul_i32 s75, s77, 10240
            s_add_u32 s75, s75, s10
            s_add_u32 s75, s75, {YP}
            s_and_b32 s13, s2, 7
            s_lshl_b32 s13, s13, 7
            s_add_u32 s13, s13, {VR}
            v_lshlrev_b32 v9, 10, v2
            s_mov_b32 exec_hi, 0
            buffer_load_dwordx2 v[10:11], v9, s[44:47], s13 offen sc1
            s_waitcnt vmcnt(0)
            v_lshrrev_b32 v11, 1, v11
            v_xor_b32 v10, s92, v10
            v_bitop3_b32 v10, v10, v11, s7 bitop3:0xf6
            v_cmp_ne_u32 vcc, 0, v10
            s_mov_b32 exec_hi, -1
            s_cmp_eq_u64 vcc, 0
            s_cselect_b32 s58, 1, 0""")
        self("L_noproj:")
        self.stamp(5)
        self.stamp(10, 2)
        self.spin_lds(C_VOTE, 1, sleep=4, wide=True)
        self(f"""
            s_mov_b32 s59, s11""")
        sn, rn = o["stag"] // 10, o["stag"] % 10
        self(f"""
            s_lshr_b32 s10, s2, 3
            s_mul_i32 s68, s10, {sn}
            s_lshr_b32 s68, s68, 5
            s_and_b32 s69, s10, {rn - 1}
            s_add_u32 s69, s69, s68
            s_add_u32 s69, s69, {o["rlag"]}""")
        assert sn - 1 + rn - 1 + o["rlag"] <= 6
        self.prep(0)
        self.stamp(6)
        self.prep(1)
        self.stamp(7)
        self("s_cmp_lg_u32 s72, 3\ns_cbranch_scc1 L_pubo")
        self(f"s_lshr_b32 s63, s2, 3\ns_and_b32 s63, s63, {o['sst'] - 1}\ns_add_u32 s63, s63, {o['sit']}")
        self.control("s63", check=False, guard=True)
        self.scale()
        self.control(27, check=False, guard=True)
        if o["pf"] == 2:
            self("""
                s_cmp_ge_u32 s2, 16
                s_cbranch_scc1 L_nopf2
                s_getpc_b64 s[14:15]
                L_pf2pc:
                s_sub_u32 s14, s14, L_pf2pc-L_vflush
                s_subb_u32 s15, s15, 0
                v_lshlrev_b32 v9, 7, v2
                v_min_u32 v10, L_helper-L_vflush, v9
                v_add_u32 v9, L_pf2pc-L_vflush, v9
                v_min_u32 v9, L_table-L_vflush, v9
                global_load_dword v254, v10, s[14:15]
                global_load_dword v254, v9, s[14:15]
                L_nopf2:""")
        self.control(o['clast'], check=False)
        self("s_cmp_lg_u32 s76, 0\ns_cbranch_scc1 L_end")

        def across(r):
            self.rows4_reduce(r)
            for ctl in ("row_ror:4", "row_ror:8"):
                self(f"s_nop 1\nv_add_f32_dpp v{r}, v{r}, v{r} {ctl} row_mask:0xf bank_mask:0xf")
            self.bf16_round(r)

        self(f"""
            v_lshrrev_b32 v52, 2, v2
            v_mul_u32_u24 v52, 10240, v52
            v_and_b32 v5, 3, v2
            v_lshl_add_u32 v52, v5, 4, v52
            v_mul_u32_u24 v53, 1280, v4
            v_lshl_add_u32 v53, v5, 1, v53
            s_lshl_b32 s62, s39, 5
            s_add_u32 s62, s62, s77
            s_lshl_b32 s16, s62, 6
            s_add_u32 s16, s16, {YP}
            s_add_u32 s17, s16, {16 * 10240}
            s_add_u32 s18, s16, {32 * 10240}
            s_lshl_b32 s62, s62, 3
            buffer_load_ushort v54, v53, s[48:51], s62 offen""")
        for e in range(4):
            self(f"v_mov_b32 v{40 + e}, 0")
        self("s_mov_b32 exec_hi, 0")
        self.poll([(40, "buffer_load_dwordx4 v[40:43], v52, s[44:47], s18 offen sc1")], 16)
        self("s_mov_b32 exec_hi, -1")
        across(40)
        self("v_lshlrev_b32 v46, 16, v54")
        YL = [(8 + 4*i, f"buffer_load_dwordx4 v[{8 + 4*i}:{11 + 4*i}], v52, s[44:47], s{16 + i} offen sc1") for i in range(2)]
        trig = {"iss": (C_ISS, 4), "o1": (C_OCNT + 12, 1), "o4": (C_OCNT + 12, 4), "w": (C_WRDY, 1), "t15": (C_T + 120, 1),
                "m2": (C_MARK, 2)}
        self.spin_lds(*trig[o["trig"]], sleep=o["tsleep"])
        self("s_setprio 3")
        if o["ytouch"] == 1:
            self("\n".join(ins for _, ins in YL))
        self.tile_issue("s71", o["tdepth"])
        if o["ytouch"] == 2:
            self("\n".join(ins for _, ins in YL))
        self("s_waitcnt vmcnt(0)")
        self.lds_inc(C_WRDY)
        self.stamp(8)
        self("s_branch L_frag")
        self(f"""
            L_pubo:
            v_mov_b32 v52, 0
            v_mov_b32 v53, 0
            s_mul_i32 s10, s72, 6144
            v_add_u32 v40, s10, v229
            v_mov_b32 v42, v229
            s_lshl_b32 s13, s6, 2
            s_add_u32 s13, s13, s72
            s_lshl_b32 s13, s13, 3
            s_add_u32 s13, s13, s8
            s_lshl_b32 s13, s13, 10
            s_add_u32 s13, s13, {OP}
            v_lshlrev_b32 v45, 1, v231""")
        self.spin_lds(C_SC, 1, sleep=16, wide=True, addr="v45")
        self("s_mov_b32 s73, s11\nv_mov_b32 v44, v236\nv_mov_b32 v45, v237\nv_mov_b32 v46, v238\nv_mov_b32 v47, v239")
        self.spin_lds(C_OCNT + (8 if o["latepub"] else 0), 4, sleep=8, addr="v1" if o["latepub"] else "v231")
        if o["latepub"] == 2:
            self.spin_lds(C_T + 120, 1, sleep=4)
        elif o["latepub"] == 3:
            self.spin_lds(C_MARK, 2, sleep=4)
        elif o["pdelay"]:
            self(f"s_sleep {o['pdelay']}")
        self("s_branch L_pub\nL_pubdone:")
        self.stamp(8)
        self(f"""
            s_cmp_lg_u32 s76, 0
            s_cbranch_scc1 L_end
            s_mov_b32 s63, 0
            s_lshl_b32 s62, s77, 15
            s_lshl_b32 s10, s72, 8
            s_add_u32 s62, s62, s10
            s_add_u32 s62, s62, {OP}
            v_lshlrev_b32 v47, 10, v4
            v_lshl_add_u32 v47, v3, 4, v47
            v_lshlrev_b32 v44, 3, v3
            v_lshl_add_u32 v44, v4, 1, v44
            s_lshl_b32 s10, s72, 7
            v_add_u32 v44, s10, v44""")
        self.spin_lds(*trig[o["gtrig"]], sleep=o["tsleep"])
        self("s_setprio 3")
        if not o["g4"]:
            self.gather_o((0, 1, 2), o["osleep"], o["old"])
            if o["g3trig"]:
                self.spin_lds(*trig[o["g3trig"]], sleep=1)

        def early_fragments():
            self(f"""
                s_cmp_lg_u32 s63, 0
                s_cbranch_scc1 L_nofrag
                ds_read_b32 v6, v1 offset:{C_WRDY}
                s_waitcnt lgkmcnt(0)
                v_readfirstlane_b32 s63, v6
                s_cmp_eq_u32 s63, 0
                s_cbranch_scc1 L_nofrag""")
            self.fragments()
            self("L_nofrag:")

        self.gather_o((0, 1, 2, 3) if o["g4"] else (3,), o["psleep"], o["tld"], hook=early_fragments)
        self.stamp(9)
        self("s_cmp_lg_u32 s63, 0\ns_cbranch_scc1 L_proj\nL_fragwait:")
        self.spin_lds(C_WRDY, 1, sleep=o["wsleep"])
        self("L_frag:")
        self.fragments()
        self("L_proj:")
        self.project(True)
        self.stamp(10)
        self("s_cmp_lg_u32 s72, 3\ns_cbranch_scc1 L_end")
        self.srd(52, 32, 5120)

        def result():
            for i in range(4):
                self(f"v_add_f32 v{8 + i}, v{8 + i}, v{12 + i}")
            across(8)
            self("v_add_f32 v8, v46, v8")
            self.bf16_round(8)
            self("v_add_f32 v8, v8, v40\nv_cvt_pk_bf16_f32 v8, v8, v8")

        self.poll(YL, o["psleep"], inner=result)
        self(f"""
            s_mov_b32 exec_lo, 0x000f000f
            s_mov_b32 exec_hi, 0x000f000f
            buffer_store_short v8, v53, s[52:55], s62 offen {o['outst']}""")
        self.stamp(9)

    def finish(self):
        self("L_end:")
        if self.o["stamps"]:
            self(f"""
                s_waitcnt vmcnt(0)
                s_memrealtime s[78:79]
                s_getreg_b32 s101, hwreg(HW_REG_XCC_ID)
                s_waitcnt lgkmcnt(0)
                s_mov_b32 s91, s78
                s_mov_b64 exec, 1
                s_lshl_b32 s10, s2, 3
                s_add_u32 s10, s10, s3
                s_lshl_b32 s10, s10, 6
                s_add_u32 s10, s10, {STAMPS}
                v_mov_b32 v5, s10""")
            for i in range(12):
                self(f"v_mov_b32 v{8 + i}, s{80 + i}")
            self("v_mov_b32 v20, s101\nv_mov_b32 v21, s59\nv_mov_b32 v22, s6\nv_mov_b32 v23, s76")
            for i in range(4):
                self(f"global_store_dwordx4 v5, v[{8 + 4*i}:{11 + 4*i}], s[36:37] offset:{16 * i}")
        if self.o["enc"]:
            wave, idx, mult = (int(x) for x in self.o["enc"].split("x"))
            self(f"""
                s_cmp_lg_u32 s3, {wave}
                s_cbranch_scc1 L_exit
                s_sub_u32 s10, s{80 + idx}, s80
                s_mul_i32 s10, s10, {mult}
                s_min_u32 s10, s10, 40000
                s_add_u32 s10, s10, 20000
                L_encl:
                s_memrealtime s[78:79]
                s_waitcnt lgkmcnt(0)
                s_sub_u32 s11, s78, s80
                s_cmp_lt_u32 s11, s10
                s_cbranch_scc1 L_encl""")
        self("L_exit:\ns_endpgm")

    def build(self):
        head = open(f"cdna_kernels/{NAME}.s.ref").read().split("\n") if self.o["head"] else []
        out = [ln for ln in head if ln.startswith(";") and "@launch" not in ln][:14]
        out.append(f"; @launch grid=(256,1,1) block=(512,1,1) lds={LDS_BYTES}")
        out.append(DOC.strip("\n"))
        out += ['.amdgcn_target "amdgcn-amd-amdhsa--gfx950"', ".text", f".globl {NAME}_kernel", ".p2align 8",
                f".type {NAME}_kernel,@function", f"{NAME}_kernel:"]
        self.entry()
        self.streamer()
        self.helper()
        self.finish()
        out += self.L
        out += [".p2align 8", ".type L_table,@object", "L_table:"]
        T = row_table()
        for sig in range(2):
            for w in range(4):
                for g in range(8):
                    out.append("  .long " + ", ".join(str(T[sig][w][g][t & 7] * 384) for t in range(16)))
        out.append(".size L_table, 4096")
        out += ['.section .rodata,"a"', ".p2align 6", f".amdhsa_kernel {NAME}_kernel",
                "  .amdhsa_next_free_vgpr 256", "  .amdhsa_next_free_sgpr 102", "  .amdhsa_accum_offset 256",
                "  .amdhsa_group_segment_fixed_size 0", "  .amdhsa_kernarg_size 88", "  .amdhsa_user_sgpr_count 2",
                "  .amdhsa_user_sgpr_kernarg_segment_ptr 1", "  .amdhsa_system_sgpr_workgroup_id_x 1",
                ".end_amdhsa_kernel"]
        return "\n".join(out) + "\n"


DOC = """
"""

DEFAULTS = dict(stamps=0, head=1, gap=40, numa="near", scst="sc1", scld="sc1 nt", qst="sc1", asleep=8, qsleep=8,
                tsleep=2, psleep=0, fsleep=24, ntry=4, nsleep=2, enc="", series=0, ctl=2, gain=10000, gains=10000,
                cmax=15, bias=-50, tdepth=32, hsplit=0, ackfirst=0, oit=16, odelay=0, ost="sc1", old="sc1", agn=8, qdelay=0, sit=24, latepub=2, pdelay=0, osleep=4, cmaxs=12, pmin=1, ostart=1, tst="sc1", tld="sc1", outst="", pf=2, bar2=1, tat=1, wsleep=0, w0=3, trig="iss", gtrig="o4", tearly=0, tdepth0=40, vat=5, qat=11, mat=8, g4=0, g3trig="", rdelay=40, wadd=2, rot=0, tabe=2, tabsrc=0, ilv=0, warm=1, local=1, ytouch=2, gapr=60, early=0, edelay=0, esleep=8, pw=3, boost0=0, nominal=646, rlag=2, clast=29, nomn=3, cfirst=2, pest="avg", nsmp=16, stag=11, sst=1, skip="", hprio=1, hold=1, smp0=13, w2last=1)

if __name__ == "__main__":
    opt = dict(DEFAULTS)
    for kv in sys.argv[2:]:
        k, v = kv.split("=")
        assert k in opt, k
        opt[k] = int(v) if isinstance(DEFAULTS[k], int) else v.replace("+", " ")
    open(sys.argv[1], "w").write(Gen(opt).build())
```

```python
import struct
import sys

NAME = "parallel_sum__mha_block_cached__dense_activation_silu__decode"
KV_BYTES = 4 * 32 * 8192 * 192 * 2
REGION = 3 << 20
WIN = 196608

QP, YP, FL, VR, ST, CT, SC, OP, WS_END = (
    0x0, 0x140000, 0x1E0000, 0x1B8000, 0x1C0000, 0x60000, 0x200000, 0x400000, 0x500000)
STAMPS = 0x1000000
L_S, L_P, L_ORED, L_OBUF, L_Q, L_C, L_SER, L_WT = 0x0, 0x2000, 0x4000, 0xA000, 0xA600, 0xAC00, 0xAE00, 0xB000
C_NONCE, C_WRDY, C_VOTE, C_KSEG, C_PRDY, C_MAXC, C_HS, C_F = (
    L_C + 0, L_C + 4, L_C + 8, L_C + 16, L_C + 20, L_C + 24, L_C + 28, L_C + 32)
C_CTL, C_QRDY, C_ICNT, C_OCNT, C_MAX, C_MARK, C_T = L_C + 40, L_C + 48, L_C + 52, L_C + 64, L_C + 80, L_C + 112, L_C + 256
C_WL, C_FCNT, C_SCNT, C_ISS, C_SC, L_STAT = L_C + 128, L_C + 56, L_C + 60, L_C + 120, L_C + 192, L_C + 384
TROW = 1088
LDS_BYTES = 0xB000 + 48 * TROW
NEG = "0xff7f0000"


def f32(x):
    return "0x%08x" % struct.unpack("<I", struct.pack("<f", x))[0]


def block_rows(b):
    t, r = divmod(b, 3)
    lo, hi = ((0, 21), (21, 43), (43, 64))[r]
    return list(range(64 * t + lo, 64 * t + hi))


def row_table():
    T = []
    for sig in range(2):
        lo = sum((block_rows(sig + o) for o in (0, 8, 16, 10, 18, 2)), [])
        up = sum((block_rows(sig + o + 4) for o in (0, 8, 16, 10, 18, 2)), [])
        T.append([[[(lo if g < 4 else up)[4 * (16 * (w >> 1) + 2 * t + (w & 1)) + (g & 3)] for t in range(8)]
                   for g in range(8)] for w in range(4)])
    assert sorted(r for s in T for w in s for g in w for r in g) == list(range(512))
    return T


class Gen:
    def __init__(self, opt):
        self.o = opt
        self.L = []
        self.nlab = 0
        self.in_helper = False

    def __call__(self, text):
        for line in text.strip("\n").split("\n"):
            line = line.strip()
            if line:
                self.L.append(line if line.endswith(":") else "  " + line)

    def note(self, text):
        for line in text.strip("\n").split("\n"):
            self.L.append("  ; " + line.strip())

    def lab(self, base):
        self.nlab += 1
        return f"L_{base}{self.nlab}"

    def stamp(self, idx, mode=1):
        if self.o["stamps"] == mode or (self.o["stamps"] and not self.in_helper):
            self(f"s_memrealtime s[78:79]\ns_waitcnt lgkmcnt(0)\ns_mov_b32 s{80 + idx}, s78")

    def spin_lds(self, off, target, sleep=1, wide=False, addr="v1"):
        lp, dn = self.lab("sp"), self.lab("sd")
        self("s_mov_b32 s12, 0x100000")
        self(f"{lp}:")
        if wide:
            self(f"ds_read_b64 v[6:7], {addr} offset:{off}")
        else:
            self(f"ds_read_b32 v6, {addr} offset:{off}")
        self("s_waitcnt lgkmcnt(0)\nv_readfirstlane_b32 s10, v6")
        if wide:
            self("v_readfirstlane_b32 s11, v7")
        self(f"""
            s_cmp_ge_u32 s10, {target}
            s_cbranch_scc1 {dn}
            s_sleep {sleep}
            s_sub_u32 s12, s12, 1
            s_cbranch_scc0 {lp}
            s_branch L_end
            {dn}:""")

    def lds_inc(self, off, ret=False, addr="v1"):
        self("s_mov_b64 exec, 1\nv_mov_b32 v5, 1")
        if ret:
            self(f"ds_add_rtn_u32 v6, {addr}, v5 offset:{off}\ns_waitcnt lgkmcnt(0)\nv_readfirstlane_b32 s10, v6")
        else:
            self(f"ds_add_u32 {addr}, v5 offset:{off}")
        self("s_mov_b64 exec, -1")

    def tags(self, t):
        self(f"""
            s_mul_i32 s10, s92, 0x9e3779b1
            s_mul_hi_u32 s11, s92, 0x85ebca6b
            s_mul_i32 s12, s92, 0xc2b2ae35
            s_xor_b32 s11, s11, s12
            v_mov_b32 v{t}, s10
            v_mov_b32 v{t+1}, s11
            v_and_b32 v{t+2}, 1, v0
            v_cndmask_b32 v{t}, v{t}, v{t+1}, s[64:65]
            v_lshlrev_b32 v{t+2}, 4, v{t+2}
            v_lshrrev_b32 v{t}, v{t+2}, v{t}
            v_lshrrev_b32 v{t+1}, 4, v{t}
            v_lshrrev_b32 v{t+2}, 8, v{t}
            v_lshrrev_b32 v{t+3}, 12, v{t}""")

    def tag_data(self, r, t):
        for e in range(4):
            self(f"v_bfi_b32 v{r + e}, 15, v{t + e}, v{r + e}")

    def poll(self, loads, sleep, t=236, half={}, hook=None, inner=None):
        lp, dn = self.lab("pl"), self.lab("pd")
        n = len(loads)
        self("s_mov_b32 s12, 0x40000")
        self(f"{lp}:")
        for i, (r, ins) in enumerate(loads):
            if i in half:
                self(f"s_mov_b32 exec_hi, {half[i]}\n{ins}\ns_mov_b32 exec_hi, -1")
            else:
                self(ins)
        if hook:
            hook()
        for i, (r, ins) in enumerate(loads):
            self(f"s_waitcnt vmcnt({n - 1 - i})")
            if i in half:
                self(f"s_mov_b32 exec_hi, {half[i]}")
            for e in range(4):
                if i == 0 and e == 0:
                    self(f"v_xor_b32 v5, v{r}, v{t}")
                else:
                    self(f"v_bitop3_b32 v5, v5, v{r + e}, v{t + e} bitop3:0xf6")
            for e in range(4):
                self(f"v_and_b32 v{r + e}, -16, v{r + e}")
            if i in half:
                self("s_mov_b32 exec_hi, -1")
        self("v_and_b32 v5, 15, v5\nv_cmp_ne_u32 vcc, 0, v5")
        if inner:
            inner()
        self(f"""
            s_cmp_eq_u64 vcc, 0
            s_cbranch_scc1 {dn}""")
        if sleep:
            self(f"s_sleep {sleep}")
        self(f"""
            s_sub_u32 s12, s12, 1
            s_cbranch_scc0 {lp}
            s_branch L_end
            {dn}:""")

    def rows4_reduce(self, *rs, extra=None):
        first = list(rs) + ([extra] if extra else [])
        self("s_nop 1")
        for r in first:
            self(f"v_permlane16_swap_b32 v{r}, v{r+1}\nv_permlane16_swap_b32 v{r+2}, v{r+3}")
        self("s_nop 0")
        for r in first:
            self(f"v_add_f32 v{r}, v{r}, v{r+1}\nv_add_f32 v{r+2}, v{r+2}, v{r+3}")
        if extra:
            self(f"""
                s_mov_b32 exec_hi, 0
                v_add_f32 v{rs[-1]}, v{rs[-1]}, v{extra}
                v_add_f32 v{rs[-1] + 2}, v{rs[-1] + 2}, v{extra + 2}
                s_mov_b32 exec_lo, 0
                s_mov_b32 exec_hi, -1
                v_add_f32 v{rs[-2]}, v{rs[-2]}, v{extra}
                v_add_f32 v{rs[-2] + 2}, v{rs[-2] + 2}, v{extra + 2}
                s_mov_b32 exec_lo, -1""")
        self("s_nop 1")
        for r in rs:
            self(f"v_permlane32_swap_b32 v{r}, v{r+2}")
        self("s_nop 0")
        for r in rs:
            self(f"v_add_f32 v{r}, v{r}, v{r+2}")

    def row16_allreduce(self, op, r):
        for ctl in ("quad_perm:[1,0,3,2]", "quad_perm:[2,3,0,1]", "row_half_mirror", "row_mirror"):
            self(f"s_nop 1\n{op}_dpp v{r}, v{r}, v{r} {ctl} row_mask:0xf bank_mask:0xf")

    def half_allreduce(self, op, r, t):
        self.row16_allreduce(op, r)
        for sw in ("v_permlane16_swap_b32",):
            self(f"v_mov_b32 v{t}, v{r}\ns_nop 1\n{sw} v{r}, v{t}\ns_nop 1\n{op} v{r}, v{r}, v{t}")

    def bf16_round(self, r):
        self(f"v_cvt_pk_bf16_f32 v{r}, v{r}, v{r}\nv_lshlrev_b32 v{r}, 16, v{r}")

    def srd(self, d, p, size):
        self(f"s_mov_b32 s{d}, s{p}\ns_and_b32 s{d+1}, s{p+1}, 0xffff\ns_mov_b32 s{d+2}, {size}\ns_mov_b32 s{d+3}, 0x20000")

    def entry(self):
        o = self.o
        PF = ""
        if o["pf"]:
            PF = f"""
                s_cmp_ge_u32 s2, 16
                s_cbranch_scc1 L_nopf
                s_getpc_b64 s[14:15]
                L_pfpc:
                v_lshlrev_b32 v3, 6, v0
                v_min_u32 v3, L_table+2044-L_pfpc, v3
                global_load_dword v254, v3, s[14:15]
                L_nopf:"""
        self(f"""
            s_cmp_ge_u32 s2, 256
            s_cbranch_scc1 L_exit
            s_load_dwordx16 s[16:31], s[0:1], 0
            {PF}
            s_load_dwordx4 s[32:35], s[0:1], 64
            s_load_dwordx2 s[36:37], s[0:1], 80
            s_memrealtime s[94:95]
            v_lshrrev_b32 v2, 6, v0
            v_mov_b32 v1, 0
            v_readfirstlane_b32 s3, v2
            v_and_b32 v2, 63, v0
            v_and_b32 v5, 0x7f, v0
            v_lshlrev_b32 v5, 2, v5
            ds_write_b32 v5, v1 offset:{L_C}
            s_getreg_b32 s7, hwreg(HW_REG_XCC_ID, 0, 4)
            s_bfe_u32 s9, s7, 0x10002
            s_bfe_u32 s4, s2, 0x10002
            s_bfe_u32 s5, s2, 0x20003
            s_and_b32 s11, s2, 3
            s_lshr_b32 s10, s2, 5
            s_lshl_b32 s6, s11, 3
            s_add_u32 s6, s6, s10
            s_lshl_b32 s8, s5, 1
            s_add_u32 s8, s8, s4""")
        self("""
            s_lshl_b32 s38, s10, 2
            s_add_u32 s38, s38, s11
            s_sub_u32 s11, s8, 5
            s_lshl_b32 s11, s11, 5
            s_add_u32 s38, s38, s11""")
        if o["stamps"]:
            for i in range(1, 12):
                self(f"s_mov_b32 s{80 + i}, 0")
        self("s_cmp_ge_u32 s3, 4\ns_cbranch_scc1 L_helper")

    def masks(self):
        self("""
            s_mov_b32 s64, 0xcccccccc
            s_mov_b32 s65, 0xcccccccc
            s_mov_b32 s66, 0xaaaaaaaa
            s_mov_b32 s67, 0xaaaaaaaa""")

    def roles(self):
        self("""
            s_and_b32 s10, s2, 7
            s_lshr_b32 s77, s2, 3
            s_sub_u32 s39, s10, s4
            s_lshr_b32 s76, 0x190, s10
            s_and_b32 s76, s76, 2""")

    def args_ready(self):
        self("s_waitcnt lgkmcnt(0)")
        if self.o["stamps"]:
            self("s_mov_b32 s80, s94")

    def plan(self):
        self("""
            s_lshr_b32 s27, s2, 3
            s_lshl_b32 s27, s27, 2
            s_and_b32 s0, s2, 3
            s_add_u32 s27, s27, s0
            s_mul_i32 s1, s27, 171
            s_lshr_b32 s1, s1, 9
            s_mul_i32 s94, s1, 3
            s_sub_u32 s94, s27, s94
            s_lshl_b32 s95, s94, 3
            s_or_b32 s95, s95, 0x80000
            s_bfe_u32 s0, 0x150b00, s95
            s_lshl_b32 s26, s1, 5
            s_add_u32 s0, s0, s26
            s_bfe_u32 s95, 0x0b0600, s95
            s_lshl_b32 s1, s1, 4
            s_add_u32 s1, s1, s95
            s_add_u32 s1, s1, 1365
            s_movk_i32 s95, 0x400
            s_cmp_eq_u32 s94, 1
            s_cselect_b32 s26, 10, 11
            s_cselect_b32 s95, 0x210, s95
            s_cmp_eq_u32 s27, 126
            s_cselect_b32 s1, 1360, s1
            s_cmp_eq_u32 s27, 127
            s_cselect_b32 s1, s0, s1
            s_cselect_b32 s26, 5, s26
            s_cselect_b32 s95, 16, s95
            s_bitset1_b32 s95, 15""")

    def region_of(self, win, region, row):
        self(f"""
            s_cmp_lt_u32 {win}, s26
            s_cselect_b32 {region}, s0, s1
            s_add_u32 {region}, {region}, {win}
            s_lshr_b32 {region}, {region}, 4
            s_and_b32 {row}, {region}, 1
            s_cmp_ge_u32 {region}, 86
            s_cselect_b32 {row}, 2, {row}""")

    def partial_slot(self, region, row, dst):
        self(f"""
            s_cmp_lg_u32 s94, 1
            s_cselect_b32 s10, 1, 0
            s_cmp_eq_u32 {row}, 1
            s_cselect_b32 s10, s10, s94
            s_lshl_b32 {dst}, {region}, 2
            s_add_u32 {dst}, {dst}, s10
            s_lshl_b32 {dst}, {dst}, 1
            s_add_u32 {dst}, {dst}, s4
            s_lshl_b32 {dst}, {dst}, 10
            s_add_u32 {dst}, {dst}, {OP}""")

    def lane_window(self, i, dst):
        self(f"""
            v_cmp_gt_u32 vcc, s26, v{i}
            v_add_u32 v{dst}, s1, v{i}
            v_add_u32 v7, s0, v{i}
            v_cndmask_b32 v{dst}, v{dst}, v7, vcc""")

    def vote_load(self):
        self(f"""
            s_mul_i32 s10, s0, 6
            s_add_u32 s10, s10, 33
            s_lshr_b32 s10, s10, 10
            s_mul_i32 s11, s1, 6
            s_add_u32 s11, s11, 81
            s_lshr_b32 s11, s11, 10
            s_sub_u32 s11, s11, s10
            v_bfe_u32 v9, v0, 4, 1
            v_mul_u32_u24 v9, s11, v9
            v_bfe_u32 v10, v0, 5, 1
            v_mad_u32_u24 v9, v10, 12, v9
            v_add_u32 v9, s10, v9
            v_and_b32 v10, 15, v0
            v_mad_u32_u24 v9, v9, 10, v10
            v_cmp_lt_u32 vcc, 8, v10
            s_andn2_b32 s11, s2, 4
            v_add_u32 v9, 16, v9
            v_mov_b32 v10, s11
            v_cndmask_b32 v9, v9, v10, vcc
            v_lshlrev_b32 v9, 7, v9
            s_mov_b32 s15, {VR}
            buffer_load_dwordx2 v[12:13], v9, s[44:47], s15 offen sc1""")

    def vote_eval(self):
        o = self.o
        self.spin_lds(C_NONCE, 1, sleep=0)
        self(f"""
            s_mov_b32 s92, s10
            s_mov_b32 s12, 0x40000
            L_vchk:
            v_cmp_ne_u32 vcc, s92, v12
            s_cmp_eq_u64 vcc, 0
            s_cbranch_scc1 L_vok
            s_sleep {o["asleep"]}
            buffer_load_dwordx2 v[12:13], v9, s[44:47], s15 offen sc1
            s_waitcnt vmcnt(0)
            s_sub_u32 s12, s12, 1
            s_cbranch_scc0 L_vchk
            s_branch L_end
            L_vok:
            v_readlane_b32 s11, v13, 15
            v_and_b32 v9, 15, v0""")
        self.lane_window(9, 10)
        self("""
            v_cndmask_b32 v11, 16, 0, vcc
            v_and_b32 v8, 1, v13
            v_cmp_eq_u32 vcc, 1, v8
            v_and_b32 v9, 16, v0
            v_lshl_add_u32 v11, v9, 1, v11
            v_mad_u32_u24 v10, v10, 6, 3
            v_lshrrev_b32 v10, 6, v10
            s_lshr_b32 s11, s11, 3
            s_xor_b32 s11, s11, s4
            v_lshrrev_b64 v[8:9], v11, vcc
            v_and_b32 v8, 0x1ff, v8
            v_bcnt_u32_b32 v8, v8, 3
            v_lshrrev_b32 v8, 3, v8
            v_xor_b32 v8, v8, v10
            v_xor_b32 v8, s11, v8
            v_and_b32 v8, 1, v8
            v_cmp_eq_u32 vcc, 1, v8
            s_mov_b32 s59, vcc_lo""")
        if o["numa"] == "far":
            self("s_not_b32 s59, s59")
        elif o["numa"] == "mix":
            self("s_xor_b32 s10, s4, s6\ns_bitcmp1_b32 s10, 0\ns_cselect_b32 s59, -1, 0\ns_xor_b32 s59, s59, 0x33335555")
        self(f"""
            v_mov_b32 v6, 1
            v_mov_b32 v7, s59
            ds_write_b64 v1, v[6:7] offset:{C_VOTE}""")

    def series(self):
        if self.o["series"]:
            self(f"""
                s_memrealtime s[78:79]
                s_lshl_b32 s10, s3, 5
                s_add_u32 s10, s10, s58
                s_lshl_b32 s10, s10, 2
                v_mov_b32 v6, s10
                s_waitcnt lgkmcnt(0)
                v_mov_b32 v7, s78
                ds_write_b32 v6, v7 offset:{L_SER}""")

    def advance_window(self, may_switch):
        self.series()
        self(f"""
            s_add_u32 s58, s58, 1
            s_and_b32 s10, s58, 15
            s_cmp_lt_u32 s10, s26
            s_cselect_b32 s57, s0, s1
            s_add_u32 s57, s57, s10
            s_mul_i32 s57, s57, {WIN}""")
        if may_switch:
            self("s_cmp_eq_u32 s58, 16\ns_cselect_b32 s40, s20, s40\ns_cselect_b32 s41, s63, s41")
        self("s_bitcmp1_b32 s59, s58\ns_cselect_b64 s[60:61], -1, 0")

    def issue(self, t, slot, wait):
        vo = 2 + (slot & 1)
        self(f"v_cndmask_b32 v{vo}, v{48 + t}, v{56 + t}, s[60:61]")
        if wait == "ctl":
            go = self.lab("go")
            self(f"""
                s_waitcnt vmcnt({6 + self.o["wadd"]})
                s_add_u32 s70, s70, s68
                s_cbranch_scc1 {go}
                s_waitcnt vmcnt({3 + self.o["wadd"]})
                s_add_u32 s71, s71, s69
                s_cbranch_scc0 {go}
                s_waitcnt vmcnt({self.o["wadd"]})
                {go}:""")
        elif wait is not None:
            self(f"s_waitcnt vmcnt({wait})")
        for j in range(3):
            r = 64 + slot * 12 + j * 4
            self(f"buffer_load_dwordx4 v[{r}:{r+3}], v{vo}, s[40:43], s57 offen offset:{128 * j} nt")

    def consume_k(self, slot):
        t = slot & 7
        r = 64 + slot * 12
        for i in range(1 if "k" in self.o["skip"] else 12):
            c = "0" if i == 0 else f"v{20 + t}"
            self(f"v_dot2_f32_bf16 v{20 + t}, v{r + i}, v{8 + i}, {c}")
        if t == 7:
            self("s_nop 2")
            for k in range(4):
                self(f"v_add_f32_dpp v{20 + k}, v{20 + k}, v{20 + k} row_shl:4 row_mask:0xf bank_mask:0x5")
            for k in range(4):
                self(f"v_add_f32_dpp v{20 + k}, v{24 + k}, v{24 + k} row_shr:4 row_mask:0xf bank_mask:0xa")
            for k in range(4):
                self(f"v_add_f32_dpp v{24 + k}, v{20 + k}, v{20 + k} quad_perm:[2,3,0,1] row_mask:0xf bank_mask:0xf")
            self("""
                v_cndmask_b32 v20, v24, v26, s[64:65]
                v_cndmask_b32 v21, v25, v27, s[64:65]
                s_nop 0
                v_add_f32_dpp v24, v20, v20 quad_perm:[1,0,3,2] row_mask:0xf bank_mask:0xf
                v_add_f32_dpp v25, v21, v21 quad_perm:[1,0,3,2] row_mask:0xf bank_mask:0xf
                v_cndmask_b32 v28, v24, v25, s[66:67]""")
            self.bf16_round(28)
            self(f"""
                v_mul_f32 v28, {f32(192 ** -0.5)}, v28
                v_cvt_pk_bf16_f32 v28, v28, v28
                ds_write_b16 v4, v28 offset:{L_S + (slot >> 3) * 512}""")

    def consume_v(self, slot):
        t = slot & 7
        r = 64 + slot * 12
        a = 20 + (slot & 1) * 4
        if t == 0:
            self("s_waitcnt lgkmcnt(0)")
        for w in range(4):
            self(f"v_perm_b32 v{a + w}, v{28 + (t >> 1)}, v{28 + (t >> 1)}, v{32 + (t & 1) * 4 + w}")
        self("s_nop 1")
        for j in range(3):
            self(f"v_mfma_f32_16x16x32_bf16 v[{8 + 4*j}:{11 + 4*j}], v[{a}:{a+3}], v[{r + 4*j}:{r + 4*j + 3}], v[{8 + 4*j}:{11 + 4*j}]")

    def flush_acc(self):
        self(f"""
            s_mov_b32 exec_lo, 0x00ff00ff
            s_mov_b32 exec_hi, 0xff00ff00
            s_nop 5
            ds_write_b128 v41, v[8:11] offset:{L_ORED}
            ds_write_b128 v41, v[12:15] offset:{L_ORED + 256}
            ds_write_b128 v41, v[16:19] offset:{L_ORED + 512}""")

    def publish_o(self):
        r = 64
        self("L_pub:\ns_mov_b32 exec_hi, 0xffff")
        for k in range(8):
            self(f"ds_read_b128 v[{r + 4*k}:{r + 3 + 4*k}], v40 offset:{L_ORED + 768 * k}")
        for k in range(4):
            self(f"s_waitcnt lgkmcnt({6 - 2*k})")
            for e in range(4):
                self(f"v_add_f32 v{r + 8*k + e}, v{r + 8*k + e}, v{r + 4 + 8*k + e}")
        for e in range(4):
            self(f"v_add_f32 v{r + e}, v{r + e}, v{r + 8 + e}\nv_add_f32 v{r + 16 + e}, v{r + 16 + e}, v{r + 24 + e}")
        for e in range(4):
            self(f"v_add_f32 v{r + e}, v{r + e}, v{r + 16 + e}")
        for e in range(4):
            self(f"v_mul_f32 v{r + e}, s73, v{r + e}")
        self.tag_data(r, 44)
        self(f"""
            buffer_store_dwordx4 v[{r}:{r+3}], v42, s[44:47], s13 offen {self.o["tst"]}
            s_mov_b64 exec, -1
            s_cmp_ge_u32 s3, 4
            s_cbranch_scc1 L_pubdone""")

    def streamer(self):
        o = self.o
        W = "ctl" if o["ctl"] else 3
        TAB = "\n".join(f"global_load_dwordx4 v[{48 + 4*i}:{51 + 4*i}], v8, s[14:15] offset:{(i >> 1) * 1024 + (i & 1) * 16}"
                        for i in range(4))
        self(f"""
            s_getpc_b64 s[14:15]
            L_pc:
            s_add_u32 s14, s14, L_table-L_pc
            s_addc_u32 s15, s15, 0
            v_lshrrev_b32 v8, 3, v0
            v_lshlrev_b32 v8, 5, v8
            s_max_u32 s12, s2, 16
            s_sub_u32 s12, s12, 16
            s_mul_i32 s12, s12, 205
            s_lshr_b32 s12, s12, 11
            s_cmp_ge_u32 s12, 12
            s_cselect_b32 s13, 12, 0
            s_sub_u32 s10, s12, s13
            s_lshl_b32 s10, s10, 3
            s_and_b32 s11, s2, 7
            s_add_u32 s10, s10, s11
            s_lshl_b32 s10, s10, 22
            s_and_b32 s11, s2, 63
            s_lshl_b32 s11, s11, 7
            s_add_u32 s10, s10, s11
            s_add_u32 s10, s10, 0x80000
            s_add_u32 s11, s10, 0x2000
            s_mov_b32 s54, {KV_BYTES}
            s_mov_b32 s55, 0x20000
            s_setprio {3 if o["hprio"] else 2}""")
        if o["tabw"] != 2:
            self(TAB)
        self.args_ready()
        if o["tabw"] == 2:
            self(TAB)
        self("""
            s_cmp_eq_u32 s13, 0
            s_cselect_b32 s52, s18, s20
            s_cselect_b32 s53, s19, s21
            s_and_b32 s53, s53, 0xffff""")
        self.plan()
        if o["tabw"]:
            self("s_waitcnt vmcnt(0)")
        self("""
            s_barrier
            s_cmp_lg_u32 s3, 0
            s_cbranch_scc1 L_noprobe
            s_mov_b64 exec, 1
            buffer_load_dword v6, v1, s[52:55], s10 offen nt
            buffer_load_dword v7, v1, s[52:55], s11 offen nt
            s_mov_b64 exec, -1
            L_noprobe:
            s_barrier""")
        self.srd(44, 36, WS_END)
        self(f"""
            s_cmp_lg_u32 s3, 0
            s_cbranch_scc1 L_pre
            s_waitcnt vmcnt(1)
            s_memtime s[10:11]
            s_waitcnt vmcnt(0)
            s_memtime s[12:13]
            s_waitcnt lgkmcnt(0)
            s_sub_u32 s10, s12, s10
            s_cmp_le_u32 s10, {o["gap"]}
            s_cselect_b32 s62, 1, 0
            s_xor_b32 s62, s62, s9""")
        for k in range(4):
            self(f"""
                s_load_dword s92, s[34:35], {64 * k}
                s_waitcnt lgkmcnt(0)
                s_cmp_lg_u32 s92, 0
                s_cbranch_scc1 L_ndone
                s_sleep {o["nsleep"]}""")
        self(f"""
            s_mov_b32 s12, 0x40000
            L_npoll:
            global_load_dword v6, v1, s[34:35] sc1
            s_waitcnt vmcnt(0)
            v_readfirstlane_b32 s92, v6
            s_cmp_lg_u32 s92, 0
            s_cbranch_scc1 L_ndone
            s_sleep 4
            s_sub_u32 s12, s12, 1
            s_cbranch_scc0 L_npoll
            s_branch L_end
            L_ndone:
            s_lshl_b32 s11, s7, 1
            s_or_b32 s10, s62, s11
            s_lshl_b32 s11, s2, 7
            s_add_u32 s11, s11, {VR}
            v_mov_b32 v6, s92
            v_mov_b32 v7, s10
            v_lshlrev_b32 v5, 3, v2
            s_mov_b64 exec, 0xffff
            buffer_store_dwordx2 v[6:7], v5, s[44:47], s11 offen sc1
            v_mov_b32 v8, {NEG}
            v_mov_b32 v9, s92
            v_mov_b32 v10, 0
            v_mov_b32 v11, s92
            v_lshlrev_b32 v12, 4, v2
            s_mov_b64 exec, 0xff
            ds_write_b128 v12, v[8:11] offset:{L_STAT}
            ds_write_b32 v1, v6 offset:{C_NONCE}
            s_mov_b64 exec, -1""")
        self.stamp(1)
        self("""
            s_branch L_tabok
            L_pre:
            s_waitcnt vmcnt(0)
            L_tabok:
            s_setprio 1
            v_mov_b32 v9, 0
            v_and_b32 v40, 7, v0
            v_lshlrev_b32 v40, 4, v40""")
        for i in range(16):
            self(f"v_add_u32 v{48 + i}, v{48 + i}, v40")
        self.srd(40, 18, KV_BYTES)
        self(f"""
            s_and_b32 s63, s21, 0xffff
            v_lshlrev_b32 v4, 1, v0
            s_mul_i32 s57, s0, {WIN}
            s_mov_b32 s58, 0
            s_mov_b32 s68, 0
            s_mov_b32 s69, 0
            s_lshl_b32 s70, s3, 30
            s_lshl_b32 s71, s3, 30
            s_mov_b32 s72, -4
            s_mov_b32 s93, 1""")
        self("s_lshr_b32 s10, s3, 1\ns_cmp_lg_u32 s10, s4\ns_cselect_b64 s[60:61], -1, 0")

        def selectors(par):
            lo_sel, hi_sel = ((0x0c0c0100, 0x01000c0c), (0x0c0c0302, 0x03020c0c))[par]
            self(f"v_and_b32 v5, 7, v0\nv_mov_b32 v28, 0x0c0c0c0c\nv_mov_b32 v29, 0x{lo_sel:08x}\nv_mov_b32 v30, 0x{hi_sel:08x}")
            for w in range(4):
                r = 32 + par * 4 + w
                self(f"""
                    v_cmp_eq_u32 vcc, {2*w}, v5
                    v_cmp_eq_u32 s[10:11], {2*w + 1}, v5
                    s_nop 0
                    v_cndmask_b32 v{r}, v28, v29, vcc
                    v_cndmask_b32 v{r}, v{r}, v30, s[10:11]""")

        def addresses():
            self(f"""
                v_lshlrev_b32 v41, 1, v40
                v_bfe_u32 v6, v0, 4, 1
                v_lshl_add_u32 v41, v6, 4, v41
                v_lshrrev_b32 v6, 5, v0
                v_mul_u32_u24 v6, 768, v6
                v_add_u32 v41, v41, v6
                v_and_b32 v42, 63, v0
                v_lshlrev_b32 v42, 4, v42
                s_bcnt1_i32_b32 s10, s95
                s_sub_u32 s10, 3, s10
                s_mul_i32 s11, s10, 6144
                v_add_u32 v41, s11, v41
                s_mul_i32 s11, s10, 384
                v_add_u32 v40, s11, v40
                s_lshl_b32 s11, s10, 2
                v_mov_b32 v43, s11""")

        def last_unit():
            self.region_of("15", "s11", "s50")
            self.partial_slot("s11", "s50", "s13")
            self("s_lshl_b32 s50, s50, 3")

        def nonce_tags():
            self(f"ds_read_b32 v6, v1 offset:{C_NONCE}\ns_waitcnt lgkmcnt(0)\nv_readfirstlane_b32 s92, v6")
            self.tags(44)

        def only(wave, code):
            sk = self.lab("on")
            self(f"s_cmp_lg_u32 s3, {wave}\ns_cbranch_scc1 {sk}")
            code()
            self(f"{sk}:")

        if o["hold"]:
            self(f"s_sub_u32 s10, s38, 48\ns_cmp_ge_u32 s10, 24\ns_cbranch_scc1 L_nohold")
            self.spin_lds(C_ICNT, o["hold"], sleep=1)
            self("L_nohold:")
        idle = [self.masks, lambda: selectors(0), lambda: selectors(1), addresses, last_unit, nonce_tags]
        assert o["vat"] + 2 < o["agn"] <= 8
        for n in range(15):
            if n == o["agn"]:
                self.spin_lds(C_VOTE, 1, sleep=0, wide=True)
                self("s_mov_b32 s59, s11")
                self("s_bitcmp1_b32 s59, 0\ns_cselect_b64 s[60:61], -1, 0")
                self.stamp(2)
            if n == 8:
                self.advance_window(False)
            self.issue(n & 7, n, None if n < 2 else o["w0"] if n < o["agn"] else o["pw"])
            if n == o["vat"]:
                only(1, self.vote_load)
            if n == o["vat"] + 2:
                only(1, lambda: (self("s_waitcnt vmcnt(6)"), self.vote_eval()))
            if n == o["qat"]:
                only(2, lambda: self.lds_inc(C_MARK))
            if 8 <= n < 8 + len(idle):
                idle[n - 8]()
        self.stamp(3)
        self("s_mov_b32 s62, 0\ns_mov_b32 s51, s95")

        def progress(first=False, late=0):
            sk = self.lab("pg")
            self(f"""
                s_cmp_lg_u32 s3, 0
                s_cbranch_scc1 {sk}
                s_memrealtime s[10:11]
                s_add_u32 s72, s72, 4
                v_mov_b32 v6, s72
                s_waitcnt lgkmcnt(0)
                s_or_b32 s10, s10, 1
                v_mov_b32 v7, s10
                ds_write_b32 v6, v7 offset:{C_T}
                {sk}:""")
            if not first:
                self("v_add_u32 v4, 1024, v4\ns_add_u32 s62, s62, 1")

        def next_q():
            for j in range(3):
                self(f"ds_read_b128 v[{8 + 4*j}:{11 + 4*j}], v40 offset:{L_Q + 128 * j}")
            self("v_add_u32 v40, 384, v40\ns_waitcnt lgkmcnt(0)")

        def next_o():
            self("v_add_u32 v41, 6144, v41\nv_add_u32 v43, 4, v43")
            for i in range(12):
                self(f"v_mov_b32 v{8 + i}, 0")

        def body(consume, vphase=False):
            for i in range(16):
                if vphase and i in (0, 8):
                    self(f"ds_read_b128 v[28:31], v4 offset:{L_P + (i >> 3) * 512}")
                if vphase and i > 0:
                    self(f"s_cbranch_vccnz L_dr{i}" if (i >= 12 or i == 1) else f"s_cbranch_vccnz L_cons{i}")
                if i == 8:
                    progress(True)
                if o["ctl"] and i % 4 == 2:
                    self(f"ds_read_b64 v[6:7], v1 offset:{C_CTL}\ns_memrealtime s[74:75]")
                if o["ctl"] and i % 4 == 3:
                    self(f"""
                        s_waitcnt lgkmcnt(0)
                        v_readfirstlane_b32 s68, v6
                        v_readfirstlane_b32 s69, v7
                        s_lshl_b32 s10, s74, 5
                        s_mul_i32 s11, s69, s93
                        s_add_u32 s93, s93, 2
                        s_sub_u32 s10, s10, s68
                        s_sub_u32 s10, s10, s11
                        s_cmp_eq_u32 s69, 0
                        s_cselect_b32 s10, 0, s10""")
                    self.levels("s68", "s69")
                if i in (1, 9):
                    self.advance_window(i == 1)
                self.issue((i - 1) & 7, (i - 1) & 15, W)
                if i == 8:
                    sk = self.lab("mb")
                    self(f"s_bitcmp1_b32 s51, 0\ns_cbranch_scc0 {sk}")
                    if vphase:
                        self.flush_acc()
                        self.lds_inc(C_OCNT, addr="v43")
                        next_o()
                    else:
                        next_q()
                    self(f"{sk}:")
                if vphase:
                    self(f"L_cons{i}:")
                consume(i)

        self.spin_lds(C_QRDY, 3)
        progress(True)
        self.stamp(4)
        self("L_kq:")
        next_q()
        self("L_kloop:")
        body(self.consume_k)
        progress()
        self("s_and_b32 s10, s62, 3\ns_cbranch_scc1 L_knoseg")
        self.lds_inc(C_KSEG)
        self("""
            s_cmp_eq_u32 s62, 8
            s_cbranch_scc1 L_kdone
            L_knoseg:
            s_mov_b32 s10, s51
            s_lshr_b32 s51, s51, 2
            s_bitcmp1_b32 s10, 1
            s_cbranch_scc0 L_kloop
            s_branch L_kq
            L_kdone:""")
        self.stamp(5)
        self(f"""
            v_lshrrev_b32 v4, 3, v0
            v_lshlrev_b32 v4, 4, v4
            v_add_u32 v40, {2 * 6144}, v42
            s_mov_b32 s62, 0
            s_mov_b32 s51, s95
            s_mov_b64 vcc, 0""")
        for i in range(12):
            self(f"v_mov_b32 v{8 + i}, 0")
        self.spin_lds(C_PRDY, 4)
        self("L_vloop:")
        body(self.consume_v, vphase=True)
        self("s_cbranch_vccnz L_vflush")
        progress()
        self("s_bitcmp1_b32 s51, 1\ns_cbranch_scc0 L_vnoflush\nL_vflush:")
        self.flush_acc()
        self.lds_inc(C_OCNT, ret=True, addr="v43")
        self("s_cbranch_vccnz L_vlast")
        next_o()
        self("""
            L_vnoflush:
            s_lshr_b32 s51, s51, 2
            s_cmp_eq_u32 s62, 7
            s_cselect_b64 vcc, -1, 0
            s_cmp_lg_u32 s62, 4
            s_cbranch_scc1 L_vloop""")
        self.spin_lds(C_PRDY, 8)
        self(f"ds_read_b32 v6, v1 offset:{C_F}\ns_waitcnt lgkmcnt(0)")
        for i in range(12):
            self(f"v_mul_f32 v{8 + i}, v{8 + i}, v6")
        self("s_branch L_vloop")
        self("L_dr1:")
        self.lds_inc(C_ISS)
        self("v_mov_b32 v5, s50")
        self.spin_lds(C_SC, 1, wide=True, addr="v5")
        self("s_mov_b32 s73, s11\ns_branch L_cons1")
        for i in (12, 13, 14, 15):
            self(f"L_dr{i}:\ns_waitcnt vmcnt({3 * (15 - i)})\ns_branch L_cons{i}")
        self("L_vlast:")
        self.stamp(7)
        self("s_cmp_lg_u32 s10, 3\ns_cbranch_scc1 L_nolast")
        self.publish_o()
        self.stamp(8)
        self("L_nolast:")
        if o["series"]:
            self(f"""
                s_lshl_b32 s10, s3, 7
                v_mov_b32 v6, s10
                v_mov_b32 v7, s87
                ds_write_b32 v6, v7 offset:{L_SER + 124}
                v_and_b32 v6, 31, v0
                v_lshlrev_b32 v6, 2, v6
                v_add_u32 v6, s10, v6
                ds_read_b32 v7, v6 offset:{L_SER}
                s_lshl_b32 s10, s2, 9
                s_add_u32 s10, s10, {STAMPS + 0x100000}
                v_add_u32 v6, s10, v6
                s_waitcnt lgkmcnt(0)
                global_store_dword v6, v7, s[36:37]""")
        self("s_branch L_end")

    def item_loads(self, part):
        if part < 2:
            for rho in range(8):
                r = 48 + (part * 8 + rho) * 2
                self(f"buffer_load_dwordx2 v[{r}:{r+1}], v44, s[40:43], s13 offen nt")
                self(f"s_add_u32 s13, s13, {'s71' if rho == 7 else 's70'}")
        else:
            for rho in range(4):
                r = 80 + rho * 2
                self(f"buffer_load_dwordx2 v[{r}:{r+1}], v45, s[40:43], s13 offen nt")
                if rho < 3:
                    self("s_add_u32 s13, s13, s70")

    def frag_norm(self):
        for i in range(10):
            self(f"v_lshlrev_b32 v{8 + 2*i}, 16, v{28 + i}\nv_and_b32 v{9 + 2*i}, 0xffff0000, v{28 + i}")
        self("s_waitcnt lgkmcnt(0)")
        for i in range(20):
            self(f"v_sub_f32 v{8 + i}, v{8 + i}, v40")
        for i in range(10):
            self(f"v_cvt_pk_bf16_f32 v{28 + i}, v{8 + 2*i}, v{9 + 2*i}")
        for i in range(10):
            self(f"v_lshlrev_b32 v{8 + 2*i}, 16, v{28 + i}\nv_and_b32 v{9 + 2*i}, 0xffff0000, v{28 + i}")
        for i in range(20):
            self(f"v_mul_f32 v{8 + i}, v{8 + i}, v41")
        for i in range(10):
            self(f"v_cvt_pk_bf16_f32 v{144 + i}, v{8 + 2*i}, v{9 + 2*i}")

    def item_compute(self):
        for s in range(3):
            self(f"s_waitcnt vmcnt({(12, 4, 0)[s]})")
            nm = 4 if s < 2 else 2
            for e in range(4):
                for m in range(nm):
                    lo = 48 + (s * 8 + 2 * m) * 2 + (e >> 1)
                    self(f"v_perm_b32 v{88 + s*16 + e*nm + m}, v{lo + 2}, v{lo}, s{68 + (e & 1)}")
            self("s_nop 1")
            for e in range(4):
                a = 88 + s * 16 + e * nm
                d = 128 + e * 4
                c = "0" if s == 0 else f"v[{d}:{d+3}]"
                if s < 2:
                    self(f"v_mfma_f32_16x16x32_bf16 v[{d}:{d+3}], v[{a}:{a+3}], v[{144 + 4*s}:{147 + 4*s}], {c}")
                else:
                    self(f"v_mfma_f32_16x16x16_bf16 v[{d}:{d+3}], v[{a}:{a+1}], v[152:153], {c}")
        self("s_nop 7")
        for r in range(4):
            self(f"v_cndmask_b32 v{128 + r}, v{128 + r}, v{132 + r}, s[66:67]")
            self(f"v_cndmask_b32 v{136 + r}, v{136 + r}, v{140 + r}, s[66:67]")
        for r in range(4):
            self(f"v_cndmask_b32 v{128 + r}, v{128 + r}, v{136 + r}, s[64:65]")
        self(f"ds_write_b128 v46, v[128:131] offset:{L_ORED}")

    def gather_tile(self, vo, va, sleep, silu, dst):
        self.poll([(8, f"buffer_load_dwordx4 v[8:11], {vo}, s[44:47], s13 offen sc1"),
                   (12, f"buffer_load_dwordx4 v[12:15], {vo}, s[44:47], s13 offen offset:3072 sc1")], sleep)
        for e in range(4):
            self(f"v_add_f32 v{8 + e}, v{8 + e}, v{12 + e}")
        if silu:
            for e in range(4):
                self.bf16_round(8 + e)
            for e in range(4):
                self(f"v_mul_f32 v{12 + e}, {f32(-1.4426950408889634)}, v{8 + e}")
            for e in range(4):
                self(f"v_exp_f32 v{12 + e}, v{12 + e}")
            for e in range(4):
                self(f"v_add_f32 v{12 + e}, 1.0, v{12 + e}")
            for e in range(4):
                self(f"v_rcp_f32 v{12 + e}, v{12 + e}")
            for e in range(4):
                self(f"v_mul_f32 v{8 + e}, v{8 + e}, v{12 + e}")
        self(f"""
            v_cvt_pk_bf16_f32 v8, v8, v9
            v_cvt_pk_bf16_f32 v10, v10, v11
            ds_write_b16 {va}, v8 offset:{dst}
            ds_write_b16_d16_hi {va}, v8 offset:{dst + 8}
            ds_write_b16 {va}, v10 offset:{dst + 16}
            ds_write_b16_d16_hi {va}, v10 offset:{dst + 24}""")

    def gather_o(self, batches, sleep, hook=None):
        late = 3 in batches
        loads = [(8 + 4 * b, f"buffer_load_dwordx4 v[{8 + 4*b}:{11 + 4*b}], v47, s[44:47], s{16 + b} offen sc1")
                 for b in batches]
        if late:
            loads.append((24, "buffer_load_dwordx4 v[24:27], v48, s[44:47], s18 offen sc1"))

        def finish():
            self.rows4_reduce(*[8 + 4 * b for b in batches], extra=24 if late else None)
            for b in batches:
                r = 8 + 4 * b
                self(f"v_cvt_pk_bf16_f32 v{r}, v{r}, v{r}\nds_write_b16 v44, v{r} offset:{L_OBUF + 384 * b}")

        self.poll(loads, sleep, half={len(loads) - 1: "s20"} if late else {}, hook=hook, inner=finish)

    def tile_lanes(self):
        self("""
            v_lshlrev_b32 v232, 1, v4
            v_xor_b32 v232, v232, v3
            v_lshlrev_b32 v232, 4, v232
            v_mad_u32_u24 v232, v4, s11, v232""")

    def tile_setup(self):
        self.srd(40, 24, 6144 * 1280)
        self(f"""
            s_mul_i32 s70, s77, {192 * 1280}
            s_lshl_b32 s10, s39, 8
            s_add_u32 s70, s70, s10
            s_add_u32 s71, s70, {192 * 1280}
            s_mov_b32 m0, {L_WT}
            s_movk_i32 s11, 1280""")
        self.tile_lanes()
        self(f"""
            v_bfe_u32 v234, v2, 1, 1
            v_lshl_add_u32 v234, s72, 2, v234
            v_bfe_u32 v235, v2, 2, 2
            v_lshlrev_b32 v7, 1, v235
            v_xor_b32 v234, v234, v7
            v_lshlrev_b32 v234, 4, v234
            v_lshl_add_u32 v234, v235, 8, v234
            v_and_b32 v235, 1, v2
            v_lshl_add_u32 v234, v235, 3, v234
            v_xor_b32 v235, 32, v234
            v_mul_u32_u24 v7, {2 * TROW}, v4
            v_add_u32 v7, {L_WT}, v7
            v_add_u32 v234, v234, v7
            v_add_u32 v235, v235, v7""")

    def tile_issue(self, limit, depth, srd="s[40:43]", off="s70"):
        lp = self.lab("tl")
        self(f"""
            {lp}:
            s_waitcnt vmcnt({depth - 1})
            buffer_load_dwordx4 v232, {srd}, {off} offen nt lds
            s_add_u32 m0, m0, {TROW}
            s_add_u32 {off}, {off}, {4 * 1280}
            s_cmp_lt_u32 {off}, {limit}
            s_cbranch_scc1 {lp}""")

    def fragments(self):
        for s in range(6):
            for e in range(2):
                for hf in range(2):
                    r = 180 + s * 8 + e * 4 + hf * 2
                    self(f"ds_read_b64_tr_b16 v[{r}:{r+1}], v{234 + e} offset:{(8 * s + hf) * TROW}")

    def project(self, final):
        if final:
            self("s_waitcnt lgkmcnt(0)\ns_barrier")
        for s in range(6):
            self(f"ds_read_b128 v[{8 + 4*s}:{11 + 4*s}], v228 offset:{L_OBUF + 64 * s}")
        for s in range(6):
            self(f"s_waitcnt lgkmcnt({5 - s})")
            for e in range(2):
                b = 180 + s * 8 + e * 4
                d = 32 + e * 4
                c = "0" if s == 0 else f"v[{d}:{d+3}]"
                self(f"v_mfma_f32_16x16x32_bf16 v[{d}:{d+3}], v[{8 + 4*s}:{11 + 4*s}], v[{b}:{b+3}], {c}")
        self("s_mov_b32 vcc_lo, 0xffff0000\ns_mov_b32 vcc_hi, 0\ns_nop 6")
        for r in range(4):
            self(f"v_cndmask_b32 v{32 + r}, v{32 + r}, v{36 + r}, vcc")
        self.tag_data(32, 236)
        self("s_mov_b32 exec_hi, 0")
        if final and self.o["local"]:
            self("""
                s_cmp_eq_u32 s58, 0
                s_cbranch_scc1 L_ythru
                buffer_store_dwordx4 v[32:35], v229, s[44:47], s75 offen
                s_branch L_ydone
                L_ythru:""")
        self("buffer_store_dwordx4 v[32:35], v229, s[44:47], s75 offen sc1")
        self("L_ydone:\ns_mov_b64 exec, -1" if final else "s_mov_b64 exec, -1")

    def prep(self, g):
        o = self.o
        lp, dn, keep = self.lab("fl"), self.lab("fd"), self.lab("fk")
        AGN = "s_mov_b64 s[60:61], s[52:53]\ns_mov_b64 s[54:55], s[52:53]"
        if g == 0 and o["agn"] and "a" not in o["skip"]:
            AGN = """
                s_lshr_b32 s10, s59, 16
                s_xor_b32 s10, s10, s4
                s_bitcmp1_b32 s10, 0
                s_cselect_b32 s54, -1, 0
                s_xor_b32 s54, s54, 0xffff0000
                s_cmp_eq_u32 s72, 0
                s_cselect_b32 s54, s54, s52
                s_mov_b32 s55, s53
                s_or_b64 s[60:61], s[52:53], s[54:55]"""
        self.control(8 * g + 8)
        self.spin_lds(C_KSEG, 4 * (g + 1), sleep=8)
        self(f"""
            ds_read_b128 v[32:35], v230 offset:{L_S + 4096 * g}
            s_lshr_b32 s62, s59, 16
            s_xor_b32 s62, s62, s59
            s_lshl_b32 s11, s72, 1
            s_add_u32 s11, s11, {8 * g}
            s_lshr_b32 s10, s62, s11
            s_bitcmp1_b32 s10, 0
            s_cselect_b32 s52, -1, 0
            s_bitcmp1_b32 s10, 1
            s_cselect_b32 s53, -1, 0
            {AGN}
            s_lshl_b32 s13, s2, 13
            s_add_u32 s13, s13, {SC + 4096 * g}
            s_xor_b32 s14, s13, {4 << 13}
            s_lshl_b32 s15, s2, 8
            s_add_u32 s15, s15, {FL + 128 * g}
            s_waitcnt lgkmcnt(0)
            s_cmp_eq_u64 s[60:61], 0
            s_cbranch_scc1 {keep}s
            s_mov_b64 exec, s[60:61]
            buffer_store_dwordx4 v[32:35], v230, s[44:47], s13 offen {o["scst"]}
            s_waitcnt vmcnt(0)
            {keep}s:""")
        self.lds_inc(C_FCNT, ret=True)
        self(f"""
            s_cmp_lg_u32 s10, {4 * g + 3}
            s_cbranch_scc1 {keep}f
            s_bfe_u32 s10, s62, {(8 << 16) | (8 * g)}
            {"" if (g == 0 and o["agn"] and "a" not in o["skip"]) else f"s_cbranch_scc0 {keep}f"}
            v_mov_b32 v5, s92
            v_lshlrev_b32 v6, 2, v2
            s_mov_b32 exec_hi, 0
            buffer_store_dword v5, v6, s[44:47], s15 offen sc1
            s_mov_b32 exec_hi, -1
            {keep}f:
            s_xor_b32 s56, s15, {4 << 8}
            s_mov_b32 s57, s14""")
        self.control(8 * g + 8 + o["rlag"])
        self(f"s_cmp_eq_u64 s[60:61], 0\ns_cbranch_scc1 {keep}")
        self.spin_lds(C_T + 4 * (8 * g + 8 + o["rlag"]), 1, sleep=16)
        self(f"""
            s_mov_b32 s12, 0x40000
            s_mov_b64 exec, 1
            {lp}:
            buffer_load_dword v6, v1, s[44:47], s56 offen sc1
            s_waitcnt vmcnt(0)
            v_readfirstlane_b32 s10, v6
            s_cmp_eq_u32 s10, s92
            s_cbranch_scc1 {dn}
            s_sleep {o["fsleep"]}
            s_sub_u32 s12, s12, 1
            s_cbranch_scc0 {lp}
            s_branch L_end
            {dn}:
            s_mov_b64 exec, s[60:61]
            buffer_load_dwordx4 v[36:39], v230, s[44:47], s57 offen {o["scld"]}
            s_mov_b64 exec, -1
            s_waitcnt vmcnt(0)""")
        for i in range(4):
            self(f"v_cndmask_b32 v{32 + i}, v{32 + i}, v{36 + i}, {'s[54:55]' if 2 * i < o['agn'] else 's[52:53]'}")
        self(f"{keep}:")
        for i in range(4):
            self(f"v_lshlrev_b32 v{8 + 2*i}, 16, v{32 + i}\nv_and_b32 v{9 + 2*i}, 0xffff0000, v{32 + i}")
        self("v_max3_f32 v24, v8, v9, v10\nv_max3_f32 v24, v24, v11, v12\nv_max3_f32 v24, v24, v13, v14\nv_max_f32 v24, v24, v15")
        self.half_allreduce("v_max_f32", 24, 25)
        self(f"""
            v_lshrrev_b32 v27, 5, v2
            v_lshl_add_u32 v27, s72, 1, v27
            v_add_u32 v27, {8 * g}, v27""")
        self.lane_row(27, 26)
        self("v_lshlrev_b32 v26, 5, v26\nv_lshlrev_b32 v27, 2, v27")
        if g == 1:
            self(f"ds_read_b32 v25, v26 offset:{L_STAT}\ns_waitcnt lgkmcnt(0)\nv_max_f32 v24, v24, v25")
        self(f"""
            s_mov_b32 exec_lo, 1
            s_mov_b32 exec_hi, 1
            ds_max_f32 v26, v24 offset:{L_STAT + 16 * g}""")
        self.lds_inc(C_MAXC)
        self.spin_lds(C_MAXC, 4 * (g + 1), sleep=2)
        self(f"""
            ds_read_b32 v24, v26 offset:{L_STAT + 16 * g}
            s_mov_b32 s10, {f32(1.4426950408889634)}
            s_waitcnt lgkmcnt(0)""")
        if g == 1:
            self(f"""
                v_sub_f32 v25, v25, v24
                v_mul_f32 v25, s10, v25
                v_exp_f32 v25, v25
                s_cmp_lg_u32 s72, 0
                s_cbranch_scc1 L_nofact
                s_mov_b64 exec, 1
                ds_write_b32 v1, v25 offset:{C_F}
                s_mov_b64 exec, -1
                L_nofact:""")
        for i in range(8):
            self(f"v_sub_f32 v{8 + i}, v{8 + i}, v24")
        for i in range(8):
            self(f"v_mul_f32 v{8 + i}, s10, v{8 + i}")
        for i in range(8):
            self(f"v_exp_f32 v{8 + i}, v{8 + i}")
        for i in range(4):
            self(f"v_cvt_pk_bf16_f32 v{32 + i}, v{8 + 2*i}, v{9 + 2*i}")
        self(f"ds_write_b128 v230, v[32:35] offset:{L_P + 4096 * g}")
        self.lds_inc(C_PRDY)
        for step in (4, 2, 1):
            for i in range(step):
                self(f"v_add_f32 v{8 + i}, v{8 + i}, v{8 + step + i}")
        self.half_allreduce("v_add_f32", 8, 9)
        self(f"ds_write_b32 v27, v8 offset:{C_WL}")
        if g == 1:
            self.lds_inc(C_SCNT, ret=True)
            self(f"""
                s_cmp_lg_u32 s10, 3
                s_cbranch_scc1 L_nostat
                v_lshlrev_b32 v9, 2, v3
                ds_read_b32 v8, v9 offset:{C_WL}""")
            self.lane_row(3, 10)
            self("""
                v_cmp_eq_u32 vcc, v10, v4
                v_lshlrev_b32 v9, 1, v2
                s_waitcnt lgkmcnt(0)
                v_cndmask_b32 v8, 0, v8, vcc""")
            for ctl in ("quad_perm:[1,0,3,2]", "quad_perm:[2,3,0,1]", "row_half_mirror"):
                self(f"s_nop 1\nv_add_f32_dpp v8, v8, v8 {ctl} row_mask:0xf bank_mask:0xf")
            self(f"""
                s_mov_b32 exec_lo, 0x01010101
                s_mov_b32 exec_hi, 0x01010101
                ds_write_b32 v9, v8 offset:{L_STAT + 8}
                s_mov_b64 exec, 0xff
                ds_read_b128 v[24:27], v229 offset:{L_STAT}
                s_lshl_b32 s13, s27, 1
                s_add_u32 s13, s13, s4
                s_lshl_b32 s13, s13, 7
                s_add_u32 s13, s13, {ST}
                s_waitcnt lgkmcnt(0)
                buffer_store_dwordx4 v[24:27], v229, s[44:47], s13 offen sc1
                s_mov_b64 exec, -1
                L_nostat:""")

    def lane_row(self, i, dst):
        self.lane_window(i, dst)
        self(f"""
            v_cmp_le_u32 vcc, {86 * 16}, v{dst}
            v_bfe_u32 v{dst}, v{dst}, 4, 1
            s_nop 0
            v_cndmask_b32 v{dst}, v{dst}, 2, vcc""")

    def scale(self):
        self.note("softmax scale per region from the (max, sum) records of the workgroups that share it")
        lp, dn = self.lab("sl"), self.lab("sd")
        self(f"""
            v_bfe_u32 v12, v2, 1, 3
            v_lshlrev_b32 v12, 7, v12
            v_lshl_add_u32 v12, v4, 5, v12
            v_and_b32 v13, 1, v2
            v_lshl_add_u32 v12, v13, 4, v12
            v_mov_b32 v8, {NEG}
            v_mov_b32 v10, 0
            s_sub_u32 s13, s27, s94
            s_lshl_b32 s13, s13, 8
            s_add_u32 s13, s13, {ST}
            s_mov_b32 s10, 0x00ff00ff
            s_cmp_lt_u32 s27, 126
            s_cselect_b32 exec_lo, 0x0fff0fff, s10
            s_mov_b32 exec_hi, exec_lo
            s_mov_b32 s12, 0x40000
            {lp}:
            buffer_load_dwordx4 v[8:11], v12, s[44:47], s13 offen sc1
            s_waitcnt vmcnt(0)
            v_xor_b32 v13, s92, v9
            v_bitop3_b32 v13, v13, v11, s92 bitop3:0xf6
            v_cmp_ne_u32 vcc, 0, v13
            s_cmp_eq_u64 vcc, 0
            s_cbranch_scc1 {dn}
            s_sleep 24
            s_sub_u32 s12, s12, 1
            s_cbranch_scc0 {lp}
            s_branch L_end
            {dn}:
            s_mov_b64 exec, -1
            v_max_f32_dpp v13, v8, v8 quad_perm:[1,0,3,2] row_mask:0xf bank_mask:0xf
            v_mov_b32 v9, v8""")
        self.row16_allreduce("v_max_f32", 9)
        self(f"""
            v_sub_f32 v8, v8, v9
            v_sub_f32 v13, v13, v9
            v_mul_f32 v8, {f32(1.4426950408889634)}, v8
            v_mul_f32 v13, {f32(1.4426950408889634)}, v13
            v_exp_f32 v8, v8
            v_exp_f32 v13, v13
            v_mul_f32 v10, v10, v8""")
        self.row16_allreduce("v_add_f32", 10)
        self(f"""
            v_rcp_f32 v10, v10
            v_lshlrev_b32 v11, 3, v4
            v_mul_f32 v9, v13, v10
            v_mov_b32 v8, 1
            s_lshl_b32 s10, s94, 1
            s_add_u32 s10, s10, s4
            s_lshl_b32 s10, s10, 1
            s_lshl_b32 exec_lo, 0x10001, s10
            s_mov_b32 exec_hi, exec_lo
            ds_write_b64 v11, v[8:9] offset:{C_SC}
            s_mov_b64 exec, -1""")

    def levels(self, up, down):
        o = self.o
        self(f"""
            s_min_i32 s10, s10, {(o["cmax"] << 22) // o["gain"]}
            s_max_i32 s10, s10, {-((o["cmaxs"] << 22) // o["gains"])}
            s_max_i32 {up}, s10, 0
            s_sub_i32 {down}, 0, s10
            s_max_i32 {down}, {down}, 0
            s_mul_i32 {up}, {up}, {o["gain"] << 6}
            s_mul_i32 {down}, {down}, {o["gains"] << 6}""")

    def control(self, last, check=True, guard=False):
        o = self.o
        if not o["ctl"]:
            return
        lp, dn, np_, nc = self.lab("cl"), self.lab("cd"), self.lab("cp"), self.lab("cn")
        if check:
            self(f"s_cmp_lg_u32 s72, 3\ns_cbranch_scc1 {dn}")
        if guard:
            self(f"s_cmp_ge_u32 s96, {last}\ns_cbranch_scc1 {dn}")
        self(f"""
            {lp}:
            s_add_u32 s96, s96, 1
            s_lshl_b32 s10, s96, 2
            v_mov_b32 v9, s10""")
        self.spin_lds(C_T, 1, sleep=4, addr="v9")
        self(f"""
            s_mov_b32 s97, s10
            s_lshl_b32 s13, s96, 12
            s_add_u32 s13, s13, {CT}
            s_cmp_lt_u32 s96, {max(1, min(o['cfirst'], o['nomn']))}
            s_cselect_b32 s10, 0x80000000, 0
            v_lshl_or_b32 v9, v2, 7, s10
            s_mov_b32 exec_hi, 0
            s_mov_b32 exec_lo, {"-1" if o["nsmp"] == 32 else "0xffff"}
            buffer_load_dwordx2 v[10:11], v9, s[44:47], s13 offen sc1
            s_cmp_ge_u32 s99, {o["nsmp"]}
            s_cbranch_scc1 {np_}
            s_lshl_b32 s14, s99, 7
            s_add_u32 s14, s14, s13
            s_add_u32 s14, s14, 4096
            v_mov_b32 v12, s92
            v_mov_b32 v13, s97
            v_lshlrev_b32 v14, 3, v2
            s_mov_b32 exec_lo, 0xffff
            buffer_store_dwordx2 v[12:13], v14, s[44:47], s14 offen sc1
            s_mov_b32 exec_lo, {"-1" if o["nsmp"] == 32 else "0xffff"}
            s_waitcnt vmcnt(1)
            s_branch {np_}w
            {np_}:
            s_waitcnt vmcnt(0)
            {np_}w:
            v_cmp_eq_u32 vcc, s92, v10
            v_sub_u32 v11, s97, v11
            s_nop 0
            v_cndmask_b32 v11, 0, v11, vcc""")
        self.row16_allreduce("v_add_u32", 11)
        self(f"""
            s_nop 0
            v_readlane_b32 s10, v11, 0
            v_readlane_b32 s11, v11, {16 if o['nsmp'] == 32 else 0}
            s_mov_b64 exec, -1
            s_add_u32 s10, s10, s11
            s_lshl_b32 s11, s97, 5
            s_sub_u32 s11, s11, s10
            s_sub_u32 s12, s11, s98
            s_mov_b32 s98, s11
            s_cmp_le_u32 s96, {o["nomn"]}
            s_cselect_b32 s12, {o["nominal"] * 16}, s12
            s_mov_b32 s14, s100
            s_mov_b32 s100, s12
            s_cmp_lt_u32 s96, {o["cfirst"]}
            s_cbranch_scc1 {nc}""")
        self({"last": "s_lshr_b32 s12, s12, 2",
              "min": "s_min_u32 s12, s12, s14\ns_lshr_b32 s12, s12, 2",
              "avg": "s_add_u32 s12, s12, s14\ns_lshr_b32 s12, s12, 3"}[o["pest"]])
        self("""
            s_sub_u32 s10, s96, 1
            s_mul_i32 s10, s10, s12
            s_lshl_b32 s10, s10, 2
            s_sub_u32 s11, s11, s10
            s_sub_u32 s11, s11, s101""")
        self(f"""
            v_mov_b32 v12, s11
            v_mov_b32 v13, s12
            ds_write_b64 v1, v[12:13] offset:{C_CTL}
            {nc}:
            s_cmp_lt_u32 s96, {last}
            s_cbranch_scc1 {lp}
            {dn}:""")

    def helper(self):
        o = self.o
        self.in_helper = True
        self(f"""
            L_helper:
            s_sub_u32 s72, s3, 4
            s_sub_u32 s74, s38, 48
            s_mul_i32 s61, s74, 43
            s_lshr_b32 s61, s61, 8
            s_mul_i32 s10, s61, 6
            s_sub_u32 s73, s74, s10
            s_add_u32 s61, s61, 32
            s_cmp_lt_u32 s8, 6
            s_cselect_b32 s61, s6, s61
            s_cselect_b32 s73, s8, s73
            s_cselect_b32 s74, 0, s74
            s_cselect_b32 s70, 12, 3
            s_lshl_b32 s70, s70, 10
            s_mul_i32 s71, s70, 25
            s_cmp_ge_u32 s73, 3
            s_cselect_b32 s14, 4, 0
            s_cselect_b32 s10, 3, 0
            s_add_u32 s14, s14, s72
            s_mul_i32 s14, s14, 80
            s_sub_u32 s10, s73, s10
            s_and_b32 s11, s61, 31
            s_mul_i32 s11, s11, 3
            s_add_u32 s10, s10, s11
            s_lshl_b32 s10, s10, 7
            s_mul_i32 s13, s14, s70
            s_add_u32 s13, s13, s10
            s_lshl_b32 s14, s14, 1
            v_and_b32 v3, 15, v2
            v_lshrrev_b32 v4, 4, v2
            v_mul_u32_u24 v5, 1280, v4
            v_lshl_add_u32 v5, v3, 4, v5
            v_lshrrev_b32 v6, 2, v3
            v_mul_u32_u24 v7, 1280, v6
            v_lshl_add_u32 v38, v4, 3, v7
            v_lshl_add_u32 v7, v4, 4, v7
            v_mul_u32_u24 v45, s70, v4
            v_add_lshl_u32 v44, v45, v3, 3
            v_lshlrev_b32 v45, 2, v45
            v_lshl_add_u32 v45, v3, 3, v45
            s_or_b32 s10, s2, s72""")
        self.args_ready()
        self(f"""
            s_cmp_lg_u32 s10, 0
            s_cbranch_scc1 L_nononce
            s_max_u32 s10, s94, 1
            v_mov_b32 v47, s10
            v_lshlrev_b32 v46, 2, v2
            global_store_dword v46, v47, s[34:35] sc1
            L_nononce:
            s_mov_b32 s42, {640 * 1536 * 2}
            s_cmp_lt_u32 s8, 6
            s_cselect_b32 s40, s22, s28
            s_cselect_b32 s41, s23, s29
            s_cselect_b32 s42, {640 * 6144 * 2}, s42
            s_and_b32 s41, s41, 0xffff
            s_mov_b32 s43, 0x20000""")
        self.srd(48, 16, 5120)
        self.srd(44, 36, WS_END)
        self.stamp(1, 2)
        if o["hprio"]:
            self("s_setprio 2")
        self("s_barrier\ns_barrier")
        self.stamp(2, 2)
        def w2_tile():
            self("s_sub_u32 s56, s38, 32\ns_cmp_ge_u32 s56, 40\ns_cbranch_scc1 L_now2")
            self.srd(52, 30, 1536 * 1280)
            self(f"""
                s_mul_i32 s57, s56, 52
                s_lshr_b32 s57, s57, 8
                s_mul_i32 s10, s57, 5
                s_sub_u32 s10, s56, s10
                s_lshl_b32 s10, s10, 8
                s_lshl_b32 s62, s57, 2
                s_add_u32 s62, s62, s72
                s_mul_i32 s62, s62, {48 * 1280}
                s_add_u32 s62, s62, s10
                s_add_u32 s63, s62, {48 * 1280}
                s_mul_i32 s10, s72, {12 * TROW}
                s_add_u32 m0, s10, {L_WT}
                s_movk_i32 s11, 1280""")
            self.tile_lanes()
            self.tile_issue("s63", o["tdepth0"], "s[52:55]", "s62")
            self("L_now2:")

        if not o["w2last"]:
            w2_tile()
        self("s_cmp_ge_u32 s74, 48\ns_cbranch_scc1 L_noloads")
        for i in range(5):
            self(f"buffer_load_dwordx4 v[{8 + 4*i}:{11 + 4*i}], v5, s[48:51], 0 offen offset:{256 * i}")
        self("""
            buffer_load_dwordx4 v[28:31], v7, s[48:51], s14 offen
            buffer_load_dwordx4 v[32:35], v7, s[48:51], s14 offen offset:64
            buffer_load_dwordx2 v[36:37], v38, s[48:51], s14 offen offset:128""")
        first = (3, 1, 2)[o["hsplit"]]
        for p in range(first):
            self.item_loads(p)
        self("L_noloads:")
        if o["w2last"]:
            w2_tile()
        self.stamp(3, 2)
        self.masks()
        self.roles()
        self.plan()
        self(f"""
            s_mov_b32 s68, 0x05040100
            s_mov_b32 s69, 0x07060302
            v_lshlrev_b32 v229, 4, v2
            v_and_b32 v47, 3, v2
            v_mul_u32_u24 v228, 384, v47
            v_lshl_add_u32 v228, v4, 4, v228
            v_mul_u32_u24 v233, 384, v4
            v_lshl_add_u32 v233, v6, 5, v233
            v_lshl_add_u32 v233, v47, 1, v233
            s_lshl_b32 s10, s72, 7
            v_add_u32 v233, s10, v233
            s_lshl_b32 s10, s72, 10
            v_add_u32 v230, s10, v229
            v_lshl_add_u32 v46, v6, 8, s10
            v_lshl_add_u32 v46, v4, 6, v46
            v_lshl_add_u32 v46, v47, 4, v46
            s_lshl_b32 s10, s72, 2
            v_mov_b32 v231, s10
            s_mov_b32 s60, 0
            s_cmp_ge_u32 s74, 48
            s_cbranch_scc1 L_noitem
            v_lshlrev_b32 v47, 6, v6
            s_mov_b32 s10, 0x3f803f80
            s_waitcnt vmcnt({(20, 8, 16)[o["hsplit"]]})""")
        self.stamp(4, 2)
        for i in range(20):
            self(f"v_dot2_f32_bf16 v40, v{8 + i}, s10, {'0' if i == 0 else 'v40'}")
        self("s_nop 1")
        self.row16_allreduce("v_add_f32", 40)
        self(f"v_mul_f32 v40, {f32(1 / 640)}, v40")
        for p in range(first, 3):
            self.item_loads(p)
        self("v_mov_b32 v41, 0\nv_mov_b32 v42, 0")
        for i in range(20):
            self(f"""
                v_lshlrev_b32 v38, 16, v{8 + i}
                v_and_b32 v39, 0xffff0000, v{8 + i}
                v_sub_f32 v38, v38, v40
                v_sub_f32 v39, v39, v40
                v_fmac_f32 v41, v38, v38
                v_fmac_f32 v42, v39, v39""")
        self("v_add_f32 v41, v41, v42")
        self.row16_allreduce("v_add_f32", 41)
        self(f"v_mul_f32 v41, {f32(1 / 640)}, v41")
        self.bf16_round(41)
        self(f"v_add_f32 v41, {f32(1e-5)}, v41")
        self.bf16_round(41)
        self("v_sqrt_f32 v41, v41\ns_nop 0")
        self.bf16_round(41)
        self("v_rcp_f32 v41, v41")
        self.bf16_round(40)
        self("ds_bpermute_b32 v40, v47, v40\nds_bpermute_b32 v41, v47, v41")
        self.frag_norm()
        self.stamp(5, 2)
        self.item_compute()
        self.lds_inc(C_ICNT, ret=True)
        self("s_mov_b32 s60, s10\nL_noitem:")
        self.stamp(1)
        self.stamp(6, 2)
        self.spin_lds(C_NONCE, 1, sleep=0)
        self("s_mov_b32 s92, s10")
        self.tags(236)
        self("s_cmp_lg_u32 s60, 3\ns_cbranch_scc1 L_nopub")
        for k in range(4):
            self(f"ds_read_b128 v[{8 + 4*k}:{11 + 4*k}], v229 offset:{L_ORED + 1024 * k}")
        self("""
            s_lshl_b32 s13, s61, 3
            s_add_u32 s13, s13, s73
            s_lshl_b32 s13, s13, 10
            s_waitcnt lgkmcnt(0)""")
        for e in range(4):
            self(f"v_add_f32 v{8 + e}, v{8 + e}, v{12 + e}\nv_add_f32 v{16 + e}, v{16 + e}, v{20 + e}")
        for e in range(4):
            self(f"v_add_f32 v{24 + e}, v{8 + e}, v{16 + e}")
        self.tag_data(24, 236)
        self(f"buffer_store_dwordx4 v[24:27], v229, s[44:47], s13 offen {o['qst']}\nL_nopub:")
        self.stamp(2)
        self.stamp(7, 2)
        self("""
            s_and_b32 s10, s95, 0x7fff
            s_flbit_i32_b32 s10, s10
            s_sub_u32 s11, 31, s10
            s_cmp_eq_u32 s72, 0
            s_cselect_b32 s11, 4, s11
            s_cmp_ge_u32 s72, 2
            s_cselect_b32 s11, 15, s11""")
        self.region_of("s11", "s68", "s69")
        self(f"""
            s_cmp_eq_u32 s72, 3
            s_cbranch_scc1 L_noq
            s_and_b32 s13, s68, 31
            s_lshl_b32 s13, s13, 5
            s_lshr_b32 s10, s68, 5
            s_add_u32 s13, s13, s10
            s_lshl_b32 s13, s13, 8
            v_lshlrev_b32 v47, 10, v4
            v_lshl_add_u32 v47, v3, 4, v47
            s_lshl_b32 s10, s72, 8
            v_add_u32 v46, s10, v233
            v_lshlrev_b32 v45, 8, v4
            v_sub_u32 v46, v46, v45""")
        self.spin_lds(C_MARK, 1, sleep=2)
        self("s_mov_b32 exec_hi, 0xffff")
        self.gather_tile("v47", "v46", o["qsleep"], False, L_Q)
        self.lds_inc(C_QRDY)
        self("L_noq:")
        if o["hprio"]:
            self("s_setprio 0")
        self.stamp(4)
        self.stamp(9, 2)
        self.tile_setup()
        self(f"""
            s_mov_b32 s96, -1
            s_mov_b32 s98, 0
            s_mov_b32 s100, -1
            s_mov_b32 s101, {((o["bias"] * 32) - o["gapr"] * 20) & 0xffffffff}
            s_cmp_eq_u32 s76, 0
            s_cselect_b32 s101, {((o["bias"] * 32) + o["gapr"] * 12) & 0xffffffff}, s101
            s_sub_u32 s99, s2, {8 * o["smp0"]}
            s_cmp_lt_u32 s99, 16
            s_cselect_b32 s99, s99, 64""")
        self.control(0)
        self.spin_lds(C_T, 1, sleep=16)
        self(f"""
            s_cmp_ge_u32 s56, 40
            s_cbranch_scc1 L_noffn
            s_lshl_b32 s75, s56, 2
            s_add_u32 s75, s75, s72
            s_lshl_b32 s75, s75, 9
            s_add_u32 s75, s75, {YP + 32 * 10240}
            s_add_u32 s13, s57, 32
            s_lshl_b32 s13, s13, 3
            s_add_u32 s13, s13, s72
            s_lshl_b32 s13, s13, 10
            s_cmp_eq_u32 s72, 3
            s_cbranch_scc1 L_fsync""")
        self.gather_tile("v229", "v233", 16, True, L_OBUF)
        self("L_fsync:\ns_waitcnt vmcnt(0)")
        self.lds_inc(C_HS)
        self.spin_lds(C_HS, 4, sleep=4)
        self.fragments()
        self("s_waitcnt lgkmcnt(0)")
        self.project(False)
        self(f"""
            L_noffn:
            s_cmp_lg_u32 s76, 0
            s_cbranch_scc1 L_noproj
            s_lshl_b32 s10, s39, 2
            s_add_u32 s10, s10, s72
            s_lshl_b32 s10, s10, 9
            s_mul_i32 s75, s77, 10240
            s_add_u32 s75, s75, s10
            s_add_u32 s75, s75, {YP}
            s_and_b32 s13, s2, 7
            s_lshl_b32 s13, s13, 7
            s_add_u32 s13, s13, {VR}
            v_lshlrev_b32 v9, 10, v2
            s_mov_b32 exec_hi, 0
            buffer_load_dwordx2 v[10:11], v9, s[44:47], s13 offen sc1
            s_waitcnt vmcnt(0)
            v_lshrrev_b32 v11, 1, v11
            v_xor_b32 v10, s92, v10
            v_bitop3_b32 v10, v10, v11, s7 bitop3:0xf6
            v_cmp_ne_u32 vcc, 0, v10
            s_mov_b32 exec_hi, -1
            s_cmp_eq_u64 vcc, 0
            s_cselect_b32 s58, 1, 0""")
        self("L_noproj:")
        self.stamp(5)
        self.stamp(10, 2)
        self.spin_lds(C_VOTE, 1, sleep=4, wide=True)
        self(f"""
            s_mov_b32 s59, s11""")
        self.prep(0)
        self.stamp(6)
        self.prep(1)
        self.stamp(7)
        self("s_cmp_lg_u32 s72, 3\ns_cbranch_scc1 L_pubo")
        self.control(o["sit"], check=False)
        self.scale()
        self.control(27, check=False, guard=True)
        if o["pf"] == 2:
            self("""
                s_cmp_ge_u32 s2, 16
                s_cbranch_scc1 L_nopf2
                s_getpc_b64 s[14:15]
                L_pf2pc:
                s_sub_u32 s14, s14, L_pf2pc-L_vflush
                s_subb_u32 s15, s15, 0
                v_lshlrev_b32 v9, 7, v2
                v_min_u32 v10, L_helper-L_vflush, v9
                v_add_u32 v9, L_pf2pc-L_vflush, v9
                v_min_u32 v9, L_table-L_vflush, v9
                global_load_dword v254, v10, s[14:15]
                global_load_dword v254, v9, s[14:15]
                L_nopf2:""")
        self.control(o['clast'], check=False)
        self("s_cmp_lg_u32 s76, 0\ns_cbranch_scc1 L_end")

        def across(r):
            self.rows4_reduce(r)
            for ctl in ("row_ror:4", "row_ror:8"):
                self(f"s_nop 1\nv_add_f32_dpp v{r}, v{r}, v{r} {ctl} row_mask:0xf bank_mask:0xf")
            self.bf16_round(r)

        self(f"""
            v_lshrrev_b32 v52, 2, v2
            v_mul_u32_u24 v52, 10240, v52
            v_and_b32 v5, 3, v2
            v_lshl_add_u32 v52, v5, 4, v52
            v_mul_u32_u24 v53, 1280, v4
            v_lshl_add_u32 v53, v5, 1, v53
            s_lshl_b32 s62, s39, 5
            s_add_u32 s62, s62, s77
            s_lshl_b32 s16, s62, 6
            s_add_u32 s16, s16, {YP}
            s_add_u32 s17, s16, {16 * 10240}
            s_add_u32 s18, s16, {32 * 10240}
            s_lshl_b32 s62, s62, 3
            buffer_load_ushort v54, v53, s[48:51], s62 offen""")
        for e in range(4):
            self(f"v_mov_b32 v{40 + e}, 0")
        self("s_mov_b32 exec_hi, 0")
        self.poll([(40, "buffer_load_dwordx4 v[40:43], v52, s[44:47], s18 offen sc1")], 16)
        self("s_mov_b32 exec_hi, -1")
        across(40)
        self("v_lshlrev_b32 v46, 16, v54")
        YL = [(8 + 4*i, f"buffer_load_dwordx4 v[{8 + 4*i}:{11 + 4*i}], v52, s[44:47], s{16 + i} offen sc1") for i in range(2)]
        trig = {"iss": (C_ISS, 4), "o1": (C_OCNT + 8, 1), "o4": (C_OCNT + 8, 4), "w": (C_WRDY, 1), "t15": (C_T + 120, 1),
                "t29": (C_T + 116, 1)}
        self.spin_lds(*trig[o["trig"]], sleep=o["tsleep"])
        self("s_setprio 3")
        if o["ytouch"] == 1:
            self("\n".join(ins for _, ins in YL))
        self.tile_issue("s71", o["tdepth"])
        if o["ytouch"] == 2:
            self("\n".join(ins for _, ins in YL))
        self("s_waitcnt vmcnt(0)")
        self.lds_inc(C_WRDY)
        self.stamp(8)
        self("s_branch L_frag")
        self(f"""
            L_pubo:
            v_mov_b32 v52, 0
            v_mov_b32 v53, 0
            s_bcnt1_i32_b32 s10, s95
            s_add_u32 s10, s10, s72
            s_cmp_lt_u32 s10, 3
            s_cbranch_scc1 L_pubdone
            s_cmp_eq_u32 s72, 2
            s_cbranch_scc1 L_pubdone
            s_mul_i32 s10, s72, 6144
            v_add_u32 v40, s10, v229
            v_mov_b32 v42, v229
            s_lshl_b32 s10, s69, 3
            v_mov_b32 v45, s10""")
        self.partial_slot("s68", "s69", "s13")
        self.spin_lds(C_SC, 1, sleep=16, wide=True, addr="v45")
        self("s_mov_b32 s73, s11\nv_mov_b32 v44, v236\nv_mov_b32 v45, v237\nv_mov_b32 v46, v238\nv_mov_b32 v47, v239")
        self.spin_lds(C_OCNT, 4, sleep=8, addr="v231")
        self.spin_lds(C_T + 4 * o["pit"], 1, sleep=4)
        self("s_branch L_pub\nL_pubdone:")
        self.stamp(8)
        self(f"""
            s_cmp_lg_u32 s76, 0
            s_cbranch_scc1 L_end
            s_mov_b32 s63, 0
            s_lshl_b32 s16, s77, 13
            s_lshl_b32 s10, s72, 8
            s_add_u32 s16, s16, s10
            s_add_u32 s16, s16, {OP}
            s_add_u32 s17, s16, 0x40000
            s_add_u32 s18, s16, 0x80000
            s_add_u32 s19, s16, 0xc0000
            s_cmp_ge_u32 s77, 22
            s_cselect_b32 s20, -1, 0
            v_lshlrev_b32 v47, 10, v4
            v_lshl_add_u32 v47, v3, 4, v47
            v_lshrrev_b32 v48, 1, v4
            v_mul_u32_u24 v48, 0x40800, v48
            v_sub_u32 v48, 0x41000, v48
            v_add_u32 v48, v48, v47
            v_lshlrev_b32 v44, 3, v3
            v_lshl_add_u32 v44, v4, 1, v44
            s_lshl_b32 s10, s72, 7
            v_add_u32 v44, s10, v44
            v_mov_b32 v24, 0
            v_mov_b32 v25, 0
            v_mov_b32 v26, 0
            v_mov_b32 v27, 0""")
        self.spin_lds(*trig[o["gtrig"]], sleep=o["tsleep"])
        self("s_setprio 3")
        if not o["g4"]:
            self.gather_o((0, 1), o["osleep"])
            if o["g3trig"]:
                self.spin_lds(*trig[o["g3trig"]], sleep=1)

        def early_fragments():
            self(f"""
                s_cmp_lg_u32 s63, 0
                s_cbranch_scc1 L_nofrag
                ds_read_b32 v6, v1 offset:{C_WRDY}
                s_waitcnt lgkmcnt(0)
                v_readfirstlane_b32 s63, v6
                s_cmp_eq_u32 s63, 0
                s_cbranch_scc1 L_nofrag""")
            self.fragments()
            self("L_nofrag:")

        self.gather_o((0, 1, 2, 3) if o["g4"] else (2, 3), o["psleep"], hook=early_fragments)
        self.stamp(9)
        self("s_cmp_lg_u32 s63, 0\ns_cbranch_scc1 L_proj\nL_fragwait:")
        self.spin_lds(C_WRDY, 1, sleep=o["wsleep"])
        self("L_frag:")
        self.fragments()
        self("L_proj:")
        self.project(True)
        self.stamp(10)
        self("s_cmp_lg_u32 s72, 3\ns_cbranch_scc1 L_end")
        self.srd(52, 32, 5120)

        def result():
            for i in range(4):
                self(f"v_add_f32 v{8 + i}, v{8 + i}, v{12 + i}")
            across(8)
            self("v_add_f32 v8, v46, v8")
            self.bf16_round(8)
            self("v_add_f32 v8, v8, v40\nv_cvt_pk_bf16_f32 v8, v8, v8")

        self.poll(YL, o["psleep"], inner=result)
        self(f"""
            s_mov_b32 exec_lo, 0x000f000f
            s_mov_b32 exec_hi, 0x000f000f
            buffer_store_short v8, v53, s[52:55], s62 offen {o['outst']}""")
        self.stamp(9)

    def finish(self):
        self("L_end:")
        if self.o["stamps"]:
            self(f"""
                s_waitcnt vmcnt(0)
                s_memrealtime s[78:79]
                s_getreg_b32 s101, hwreg(HW_REG_XCC_ID)
                s_waitcnt lgkmcnt(0)
                s_mov_b32 s91, s78
                s_mov_b64 exec, 1
                s_lshl_b32 s10, s2, 3
                s_add_u32 s10, s10, s3
                s_lshl_b32 s10, s10, 6
                s_add_u32 s10, s10, {STAMPS}
                v_mov_b32 v5, s10""")
            for i in range(12):
                self(f"v_mov_b32 v{8 + i}, s{80 + i}")
            self("v_mov_b32 v20, s101\nv_mov_b32 v21, s59\nv_mov_b32 v22, s6\nv_mov_b32 v23, s76")
            for i in range(4):
                self(f"global_store_dwordx4 v5, v[{8 + 4*i}:{11 + 4*i}], s[36:37] offset:{16 * i}")
        if self.o["enc"]:
            wave, idx, mult = (int(x) for x in self.o["enc"].split("x"))
            self(f"""
                s_cmp_lg_u32 s3, {wave}
                s_cbranch_scc1 L_exit
                s_sub_u32 s10, s{80 + idx}, s80
                s_mul_i32 s10, s10, {mult}
                s_min_u32 s10, s10, 40000
                s_add_u32 s10, s10, 20000
                L_encl:
                s_memrealtime s[78:79]
                s_waitcnt lgkmcnt(0)
                s_sub_u32 s11, s78, s80
                s_cmp_lt_u32 s11, s10
                s_cbranch_scc1 L_encl""")
        self("L_exit:\ns_endpgm")

    def build(self):
        head = open(f"cdna_kernels/{NAME}.s.ref").read().split("\n") if self.o["head"] else []
        out = [ln for ln in head if ln.startswith(";") and "@launch" not in ln][:14]
        out.append(f"; @launch grid=(256,1,1) block=(512,1,1) lds={LDS_BYTES}")
        out.append(DOC.strip("\n"))
        out += ['.amdgcn_target "amdgcn-amd-amdhsa--gfx950"', ".text", f".globl {NAME}_kernel", ".p2align 8",
                f".type {NAME}_kernel,@function", f"{NAME}_kernel:"]
        self.entry()
        self.streamer()
        self.helper()
        self.finish()
        out += self.L
        out += [".p2align 8", ".type L_table,@object", "L_table:"]
        T = row_table()
        for sig in range(2):
            for w in range(4):
                for g in range(8):
                    out.append("  .long " + ", ".join(str(T[sig][w][g][t] * 384) for t in range(8)))
        out.append(".size L_table, 2048")
        out += ['.section .rodata,"a"', ".p2align 6", f".amdhsa_kernel {NAME}_kernel",
                "  .amdhsa_next_free_vgpr 256", "  .amdhsa_next_free_sgpr 102", "  .amdhsa_accum_offset 256",
                "  .amdhsa_group_segment_fixed_size 0", "  .amdhsa_kernarg_size 88", "  .amdhsa_user_sgpr_count 2",
                "  .amdhsa_user_sgpr_kernarg_segment_ptr 1", "  .amdhsa_system_sgpr_workgroup_id_x 1",
                ".end_amdhsa_kernel"]
        return "\n".join(out) + "\n"


DOC = """
"""

DEFAULTS = dict(stamps=0, head=1, gap=40, numa="near", scst="sc1", scld="sc1 nt", qst="sc1", asleep=8, qsleep=8,
                tsleep=2, psleep=0, fsleep=24, ntry=4, nsleep=2, enc="", series=0, ctl=2, gain=10000, gains=10000,
                cmax=15, bias=-50, tdepth=32, hsplit=0, ackfirst=0, oit=16, odelay=0, ost="sc1", old="sc1", agn=8, qdelay=0, sit=24, latepub=2, pdelay=0, osleep=4, cmaxs=12, pmin=1, ostart=1, tst="sc1", tld="sc1", outst="", pf=2, bar2=1, tat=1, wsleep=0, w0=3, trig="o1", gtrig="o4", tearly=0, tdepth0=40, vat=5, qat=11, mat=8, g4=0, g3trig="", rdelay=40, wadd=2, rot=0, tabe=2, tabsrc=0, ilv=0, warm=1, local=1, ytouch=2, gapr=55, early=0, edelay=0, esleep=8, pw=3, boost0=0, nominal=646, rlag=2, clast=29, nomn=3, cfirst=2, pest="avg", nsmp=16, stag=11, sst=1, skip="", hprio=1, hold=1, smp0=13, w2last=1, pit=30, tabw=1)

if __name__ == "__main__":
    opt = dict(DEFAULTS)
    for kv in sys.argv[2:]:
        k, v = kv.split("=")
        assert k in opt, k
        opt[k] = int(v) if isinstance(DEFAULTS[k], int) else v.replace("+", " ")
    open(sys.argv[1], "w").write(Gen(opt).build())
```

```python
import struct
import sys

NAME = "parallel_sum__mha_block_cached__dense_activation_silu__decode"
KV_BYTES = 4 * 32 * 8192 * 192 * 2
REGION = 3 << 20
WIN = 196608

QP, YP, FL, VR, ST, CT, SC, OP, WS_END = (
    0x0, 0x140000, 0x1E0000, 0x1B8000, 0x1C0000, 0x60000, 0x200000, 0x400000, 0x500000)
STAMPS = 0x1000000
L_S, L_P, L_ORED, L_OBUF, L_Q, L_C, L_SER, L_WT = 0x0, 0x2000, 0x4000, 0xA000, 0xA600, 0xAC00, 0xAE00, 0xB000
C_NONCE, C_WRDY, C_VOTE, C_KSEG, C_PRDY, C_MAXC, C_HS, C_F = (
    L_C + 0, L_C + 4, L_C + 8, L_C + 16, L_C + 20, L_C + 24, L_C + 28, L_C + 32)
C_CTL, C_QRDY, C_ICNT, C_OCNT, C_MAX, C_MARK, C_T = L_C + 40, L_C + 48, L_C + 52, L_C + 64, L_C + 80, L_C + 112, L_C + 256
C_WL, C_FCNT, C_SCNT, C_ISS, C_SC, L_STAT = L_C + 128, L_C + 56, L_C + 60, L_C + 120, L_C + 192, L_C + 384
TROW = 1088
LDS_BYTES = 0xB000 + 48 * TROW
NEG = "0xff7f0000"


def f32(x):
    return "0x%08x" % struct.unpack("<I", struct.pack("<f", x))[0]


def block_rows(b):
    t, r = divmod(b, 3)
    lo, hi = ((0, 21), (21, 43), (43, 64))[r]
    return list(range(64 * t + lo, 64 * t + hi))


def row_table():
    T = []
    for sig in range(2):
        lo = sum((block_rows(sig + o) for o in (0, 8, 16, 10, 18, 2)), [])
        up = sum((block_rows(sig + o + 4) for o in (0, 8, 16, 10, 18, 2)), [])
        T.append([[[(lo if g < 4 else up)[4 * (16 * (w >> 1) + 2 * t + (w & 1)) + (g & 3)] for t in range(8)]
                   for g in range(8)] for w in range(4)])
    assert sorted(r for s in T for w in s for g in w for r in g) == list(range(512))
    return T


class Gen:
    def __init__(self, opt):
        self.o = opt
        self.L = []
        self.nlab = 0
        self.in_helper = False

    def __call__(self, text):
        for line in text.strip("\n").split("\n"):
            line = line.strip()
            if line:
                self.L.append(line if line.endswith(":") else "  " + line)

    def note(self, text):
        for line in text.strip("\n").split("\n"):
            self.L.append("  ; " + line.strip())

    def lab(self, base):
        self.nlab += 1
        return f"L_{base}{self.nlab}"

    def stamp(self, idx, mode=1):
        if self.o["stamps"] == mode or (self.o["stamps"] and not self.in_helper):
            self(f"s_memrealtime s[78:79]\ns_waitcnt lgkmcnt(0)\ns_mov_b32 s{80 + idx}, s78")

    def spin_lds(self, off, target, sleep=1, wide=False, addr="v1"):
        lp, dn = self.lab("sp"), self.lab("sd")
        self("s_mov_b32 s12, 0x100000")
        self(f"{lp}:")
        if wide:
            self(f"ds_read_b64 v[6:7], {addr} offset:{off}")
        else:
            self(f"ds_read_b32 v6, {addr} offset:{off}")
        self("s_waitcnt lgkmcnt(0)\nv_readfirstlane_b32 s10, v6")
        if wide:
            self("v_readfirstlane_b32 s11, v7")
        self(f"""
            s_cmp_ge_u32 s10, {target}
            s_cbranch_scc1 {dn}
            s_sleep {sleep}
            s_sub_u32 s12, s12, 1
            s_cbranch_scc0 {lp}
            s_branch L_end
            {dn}:""")

    def lds_inc(self, off, ret=False, addr="v1"):
        self("s_mov_b64 exec, 1\nv_mov_b32 v5, 1")
        if ret:
            self(f"ds_add_rtn_u32 v6, {addr}, v5 offset:{off}\ns_waitcnt lgkmcnt(0)\nv_readfirstlane_b32 s10, v6")
        else:
            self(f"ds_add_u32 {addr}, v5 offset:{off}")
        self("s_mov_b64 exec, -1")

    def tags(self, t):
        self(f"""
            s_mul_i32 s10, s92, 0x9e3779b1
            s_mul_hi_u32 s11, s92, 0x85ebca6b
            s_mul_i32 s12, s92, 0xc2b2ae35
            s_xor_b32 s11, s11, s12
            v_mov_b32 v{t}, s10
            v_mov_b32 v{t+1}, s11
            v_and_b32 v{t+2}, 1, v0
            v_cndmask_b32 v{t}, v{t}, v{t+1}, s[64:65]
            v_lshlrev_b32 v{t+2}, 4, v{t+2}
            v_lshrrev_b32 v{t}, v{t+2}, v{t}
            v_lshrrev_b32 v{t+1}, 4, v{t}
            v_lshrrev_b32 v{t+2}, 8, v{t}
            v_lshrrev_b32 v{t+3}, 12, v{t}""")

    def tag_data(self, r, t):
        for e in range(4):
            self(f"v_bfi_b32 v{r + e}, 15, v{t + e}, v{r + e}")

    def poll(self, loads, sleep, t=236, half={}, hook=None, inner=None):
        lp, dn = self.lab("pl"), self.lab("pd")
        n = len(loads)
        self("s_mov_b32 s12, 0x40000")
        self(f"{lp}:")
        for i, (r, ins) in enumerate(loads):
            if i in half:
                self(f"s_mov_b32 exec_hi, {half[i]}\n{ins}\ns_mov_b32 exec_hi, -1")
            else:
                self(ins)
        if hook:
            hook()
        for i, (r, ins) in enumerate(loads):
            self(f"s_waitcnt vmcnt({n - 1 - i})")
            if i in half:
                self(f"s_mov_b32 exec_hi, {half[i]}")
            for e in range(4):
                if i == 0 and e == 0:
                    self(f"v_xor_b32 v5, v{r}, v{t}")
                else:
                    self(f"v_bitop3_b32 v5, v5, v{r + e}, v{t + e} bitop3:0xf6")
            for e in range(4):
                self(f"v_and_b32 v{r + e}, -16, v{r + e}")
            if i in half:
                self("s_mov_b32 exec_hi, -1")
        self("v_and_b32 v5, 15, v5\nv_cmp_ne_u32 vcc, 0, v5")
        if inner:
            inner()
        self(f"""
            s_cmp_eq_u64 vcc, 0
            s_cbranch_scc1 {dn}""")
        if sleep:
            self(f"s_sleep {sleep}")
        self(f"""
            s_sub_u32 s12, s12, 1
            s_cbranch_scc0 {lp}
            s_branch L_end
            {dn}:""")

    def rows4_reduce(self, *rs, extra=None):
        first = list(rs) + ([extra] if extra else [])
        self("s_nop 1")
        for r in first:
            self(f"v_permlane16_swap_b32 v{r}, v{r+1}\nv_permlane16_swap_b32 v{r+2}, v{r+3}")
        self("s_nop 0")
        for r in first:
            self(f"v_add_f32 v{r}, v{r}, v{r+1}\nv_add_f32 v{r+2}, v{r+2}, v{r+3}")
        if extra:
            self(f"""
                s_mov_b32 exec_hi, 0
                v_add_f32 v{rs[-1]}, v{rs[-1]}, v{extra}
                v_add_f32 v{rs[-1] + 2}, v{rs[-1] + 2}, v{extra + 2}
                s_mov_b32 exec_lo, 0
                s_mov_b32 exec_hi, -1
                v_add_f32 v{rs[-2]}, v{rs[-2]}, v{extra}
                v_add_f32 v{rs[-2] + 2}, v{rs[-2] + 2}, v{extra + 2}
                s_mov_b32 exec_lo, -1""")
        self("s_nop 1")
        for r in rs:
            self(f"v_permlane32_swap_b32 v{r}, v{r+2}")
        self("s_nop 0")
        for r in rs:
            self(f"v_add_f32 v{r}, v{r}, v{r+2}")

    def row16_allreduce(self, op, r):
        for ctl in ("quad_perm:[1,0,3,2]", "quad_perm:[2,3,0,1]", "row_half_mirror", "row_mirror"):
            self(f"s_nop 1\n{op}_dpp v{r}, v{r}, v{r} {ctl} row_mask:0xf bank_mask:0xf")

    def half_allreduce(self, op, r, t):
        self.row16_allreduce(op, r)
        for sw in ("v_permlane16_swap_b32",):
            self(f"v_mov_b32 v{t}, v{r}\ns_nop 1\n{sw} v{r}, v{t}\ns_nop 1\n{op} v{r}, v{r}, v{t}")

    def bf16_round(self, r):
        self(f"v_cvt_pk_bf16_f32 v{r}, v{r}, v{r}\nv_lshlrev_b32 v{r}, 16, v{r}")

    def srd(self, d, p, size):
        self(f"s_mov_b32 s{d}, s{p}\ns_and_b32 s{d+1}, s{p+1}, 0xffff\ns_mov_b32 s{d+2}, {size}\ns_mov_b32 s{d+3}, 0x20000")

    def entry(self):
        o = self.o
        PF = ""
        if o["pf"]:
            PF = f"""
                s_cmp_ge_u32 s2, 16
                s_cbranch_scc1 L_nopf
                s_getpc_b64 s[14:15]
                L_pfpc:
                v_lshlrev_b32 v3, 6, v0
                v_min_u32 v3, L_table+2044-L_pfpc, v3
                global_load_dword v254, v3, s[14:15]
                L_nopf:"""
        self(f"""
            s_cmp_ge_u32 s2, 256
            s_cbranch_scc1 L_exit
            s_load_dwordx16 s[16:31], s[0:1], 0
            {PF}
            s_load_dwordx4 s[32:35], s[0:1], 64
            s_load_dwordx2 s[36:37], s[0:1], 80
            s_memrealtime s[94:95]
            v_lshrrev_b32 v2, 6, v0
            v_mov_b32 v1, 0
            v_readfirstlane_b32 s3, v2
            v_and_b32 v2, 63, v0
            v_and_b32 v5, 0x7f, v0
            v_lshlrev_b32 v5, 2, v5
            ds_write_b32 v5, v1 offset:{L_C}
            s_getreg_b32 s7, hwreg(HW_REG_XCC_ID, 0, 4)
            s_bfe_u32 s9, s7, 0x10002
            s_bfe_u32 s4, s2, 0x10002
            s_bfe_u32 s5, s2, 0x20003
            s_and_b32 s11, s2, 3
            s_lshr_b32 s10, s2, 5
            s_lshl_b32 s6, s11, 3
            s_add_u32 s6, s6, s10
            s_lshl_b32 s8, s5, 1
            s_add_u32 s8, s8, s4""")
        self("""
            s_lshl_b32 s38, s10, 2
            s_add_u32 s38, s38, s11
            s_sub_u32 s11, s8, 5
            s_lshl_b32 s11, s11, 5
            s_add_u32 s38, s38, s11""")
        if o["stamps"]:
            for i in range(1, 12):
                self(f"s_mov_b32 s{80 + i}, 0")
        self("s_cmp_ge_u32 s3, 4\ns_cbranch_scc1 L_helper")

    def masks(self):
        self("""
            s_mov_b32 s64, 0xcccccccc
            s_mov_b32 s65, 0xcccccccc
            s_mov_b32 s66, 0xaaaaaaaa
            s_mov_b32 s67, 0xaaaaaaaa""")

    def roles(self):
        self("""
            s_and_b32 s10, s2, 7
            s_lshr_b32 s77, s2, 3
            s_sub_u32 s39, s10, s4
            s_lshr_b32 s76, 0x190, s10
            s_and_b32 s76, s76, 2""")

    def args_ready(self):
        self("s_waitcnt lgkmcnt(0)")
        if self.o["stamps"]:
            self("s_mov_b32 s80, s94")

    def plan(self):
        self("""
            s_lshr_b32 s27, s2, 3
            s_add_u32 s0, s2, s27
            s_and_b32 s0, s0, 3
            s_lshl_b32 s27, s27, 2
            s_add_u32 s27, s27, s0
            s_mul_i32 s1, s27, 171
            s_lshr_b32 s1, s1, 9
            s_mul_i32 s94, s1, 3
            s_sub_u32 s94, s27, s94
            s_lshl_b32 s95, s94, 3
            s_or_b32 s95, s95, 0x80000
            s_bfe_u32 s0, 0x150b00, s95
            s_lshl_b32 s26, s1, 5
            s_add_u32 s0, s0, s26
            s_bfe_u32 s95, 0x0b0600, s95
            s_lshl_b32 s1, s1, 4
            s_add_u32 s1, s1, s95
            s_add_u32 s1, s1, 1365
            s_movk_i32 s95, 0x400
            s_cmp_eq_u32 s94, 1
            s_cselect_b32 s26, 10, 11
            s_cselect_b32 s95, 0x210, s95
            s_cmp_eq_u32 s27, 126
            s_cselect_b32 s1, 1360, s1
            s_cmp_eq_u32 s27, 127
            s_cselect_b32 s1, s0, s1
            s_cselect_b32 s26, 5, s26
            s_cselect_b32 s95, 16, s95
            s_bitset1_b32 s95, 15""")

    def region_of(self, win, region, row):
        self(f"""
            s_cmp_lt_u32 {win}, s26
            s_cselect_b32 {region}, s0, s1
            s_add_u32 {region}, {region}, {win}
            s_lshr_b32 {region}, {region}, 4
            s_and_b32 {row}, {region}, 1
            s_cmp_ge_u32 {region}, 86
            s_cselect_b32 {row}, 2, {row}""")

    def partial_slot(self, region, row, dst):
        self(f"""
            s_cmp_lg_u32 s94, 1
            s_cselect_b32 s10, 1, 0
            s_cmp_eq_u32 {row}, 1
            s_cselect_b32 s10, s10, s94
            s_lshl_b32 {dst}, {region}, 2
            s_add_u32 {dst}, {dst}, s10
            s_lshl_b32 {dst}, {dst}, 1
            s_add_u32 {dst}, {dst}, s4
            s_lshl_b32 {dst}, {dst}, 10
            s_add_u32 {dst}, {dst}, {OP}""")

    def lane_window(self, i, dst):
        self(f"""
            v_cmp_gt_u32 vcc, s26, v{i}
            v_add_u32 v{dst}, s1, v{i}
            v_add_u32 v7, s0, v{i}
            v_cndmask_b32 v{dst}, v{dst}, v7, vcc""")

    def vote_load(self):
        self(f"""
            s_mul_i32 s10, s0, 6
            s_add_u32 s10, s10, 33
            s_lshr_b32 s10, s10, 10
            s_mul_i32 s11, s1, 6
            s_add_u32 s11, s11, 81
            s_lshr_b32 s11, s11, 10
            s_sub_u32 s11, s11, s10
            v_bfe_u32 v9, v0, 4, 1
            v_mul_u32_u24 v9, s11, v9
            v_bfe_u32 v10, v0, 5, 1
            v_mad_u32_u24 v9, v10, 12, v9
            v_add_u32 v9, s10, v9
            v_and_b32 v10, 15, v0
            v_mad_u32_u24 v9, v9, 10, v10
            v_cmp_lt_u32 vcc, 8, v10
            s_andn2_b32 s11, s2, 4
            v_add_u32 v9, 16, v9
            v_mov_b32 v10, s11
            v_cndmask_b32 v9, v9, v10, vcc
            v_lshlrev_b32 v9, 7, v9
            s_mov_b32 s15, {VR}
            buffer_load_dwordx2 v[12:13], v9, s[44:47], s15 offen sc1""")

    def vote_eval(self):
        o = self.o
        self.spin_lds(C_NONCE, 1, sleep=0)
        self(f"""
            s_mov_b32 s92, s10
            s_mov_b32 s12, 0x40000
            L_vchk:
            v_cmp_ne_u32 vcc, s92, v12
            s_cmp_eq_u64 vcc, 0
            s_cbranch_scc1 L_vok
            s_sleep {o["asleep"]}
            buffer_load_dwordx2 v[12:13], v9, s[44:47], s15 offen sc1
            s_waitcnt vmcnt(0)
            s_sub_u32 s12, s12, 1
            s_cbranch_scc0 L_vchk
            s_branch L_end
            L_vok:
            v_readlane_b32 s11, v13, 15
            v_and_b32 v9, 15, v0""")
        self.lane_window(9, 10)
        self("""
            v_cndmask_b32 v11, 16, 0, vcc
            v_and_b32 v8, 1, v13
            v_cmp_eq_u32 vcc, 1, v8
            v_and_b32 v9, 16, v0
            v_lshl_add_u32 v11, v9, 1, v11
            v_mad_u32_u24 v10, v10, 6, 3
            v_lshrrev_b32 v10, 6, v10
            s_lshr_b32 s11, s11, 3
            s_xor_b32 s11, s11, s4
            v_lshrrev_b64 v[8:9], v11, vcc
            v_and_b32 v8, 0x1ff, v8
            v_bcnt_u32_b32 v8, v8, 3
            v_lshrrev_b32 v8, 3, v8
            v_xor_b32 v8, v8, v10
            v_xor_b32 v8, s11, v8
            v_and_b32 v8, 1, v8
            v_cmp_eq_u32 vcc, 1, v8
            s_mov_b32 s59, vcc_lo""")
        if o["numa"] == "far":
            self("s_not_b32 s59, s59")
        elif o["numa"] == "mix":
            self("s_xor_b32 s10, s4, s6\ns_bitcmp1_b32 s10, 0\ns_cselect_b32 s59, -1, 0\ns_xor_b32 s59, s59, 0x33335555")
        self(f"""
            v_mov_b32 v6, 1
            v_mov_b32 v7, s59
            ds_write_b64 v1, v[6:7] offset:{C_VOTE}""")

    def series(self):
        if self.o["series"]:
            self(f"""
                s_memrealtime s[78:79]
                s_lshl_b32 s10, s3, 5
                s_add_u32 s10, s10, s58
                s_lshl_b32 s10, s10, 2
                v_mov_b32 v6, s10
                s_waitcnt lgkmcnt(0)
                v_mov_b32 v7, s78
                ds_write_b32 v6, v7 offset:{L_SER}""")

    def advance_window(self, may_switch):
        self.series()
        self(f"""
            s_add_u32 s58, s58, 1
            s_and_b32 s10, s58, 15
            s_cmp_lt_u32 s10, s26
            s_cselect_b32 s57, s0, s1
            s_add_u32 s57, s57, s10
            s_mul_i32 s57, s57, {WIN}""")
        if may_switch:
            self("s_cmp_eq_u32 s58, 16\ns_cselect_b32 s40, s20, s40\ns_cselect_b32 s41, s63, s41")
        self("s_bitcmp1_b32 s59, s58\ns_cselect_b64 s[60:61], -1, 0")

    def issue(self, t, slot, wait):
        vo = 2 + (slot & 1)
        self(f"v_cndmask_b32 v{vo}, v{48 + t}, v{56 + t}, s[60:61]")
        if wait == "ctl":
            go = self.lab("go")
            self(f"""
                s_waitcnt vmcnt({6 + self.o["wadd"]})
                s_add_u32 s70, s70, s68
                s_cbranch_scc1 {go}
                s_waitcnt vmcnt({3 + self.o["wadd"]})
                s_add_u32 s71, s71, s69
                s_cbranch_scc0 {go}
                s_waitcnt vmcnt({self.o["wadd"]})
                {go}:""")
        elif wait is not None:
            self(f"s_waitcnt vmcnt({wait})")
        for j in range(3):
            r = 64 + slot * 12 + j * 4
            self(f"buffer_load_dwordx4 v[{r}:{r+3}], v{vo}, s[40:43], s57 offen offset:{128 * j} nt")

    def consume_k(self, slot):
        t = slot & 7
        r = 64 + slot * 12
        for i in range(1 if "k" in self.o["skip"] else 12):
            c = "0" if i == 0 else f"v{20 + t}"
            self(f"v_dot2_f32_bf16 v{20 + t}, v{r + i}, v{8 + i}, {c}")
        if t == 7:
            self("s_nop 2")
            for k in range(4):
                self(f"v_add_f32_dpp v{20 + k}, v{20 + k}, v{20 + k} row_shl:4 row_mask:0xf bank_mask:0x5")
            for k in range(4):
                self(f"v_add_f32_dpp v{20 + k}, v{24 + k}, v{24 + k} row_shr:4 row_mask:0xf bank_mask:0xa")
            for k in range(4):
                self(f"v_add_f32_dpp v{24 + k}, v{20 + k}, v{20 + k} quad_perm:[2,3,0,1] row_mask:0xf bank_mask:0xf")
            self("""
                v_cndmask_b32 v20, v24, v26, s[64:65]
                v_cndmask_b32 v21, v25, v27, s[64:65]
                s_nop 0
                v_add_f32_dpp v24, v20, v20 quad_perm:[1,0,3,2] row_mask:0xf bank_mask:0xf
                v_add_f32_dpp v25, v21, v21 quad_perm:[1,0,3,2] row_mask:0xf bank_mask:0xf
                v_cndmask_b32 v28, v24, v25, s[66:67]""")
            self.bf16_round(28)
            self(f"""
                v_mul_f32 v28, {f32(192 ** -0.5)}, v28
                v_cvt_pk_bf16_f32 v28, v28, v28
                ds_write_b16 v4, v28 offset:{L_S + (slot >> 3) * 512}""")

    def consume_v(self, slot):
        t = slot & 7
        r = 64 + slot * 12
        a = 20 + (slot & 1) * 4
        if t == 0:
            self("s_waitcnt lgkmcnt(0)")
        for w in range(4):
            self(f"v_perm_b32 v{a + w}, v{28 + (t >> 1)}, v{28 + (t >> 1)}, v{32 + (t & 1) * 4 + w}")
        self("s_nop 1")
        for j in range(3):
            self(f"v_mfma_f32_16x16x32_bf16 v[{8 + 4*j}:{11 + 4*j}], v[{a}:{a+3}], v[{r + 4*j}:{r + 4*j + 3}], v[{8 + 4*j}:{11 + 4*j}]")

    def flush_acc(self):
        self(f"""
            s_mov_b32 exec_lo, 0x00ff00ff
            s_mov_b32 exec_hi, 0xff00ff00
            s_nop 5
            ds_write_b128 v41, v[8:11] offset:{L_ORED}
            ds_write_b128 v41, v[12:15] offset:{L_ORED + 256}
            ds_write_b128 v41, v[16:19] offset:{L_ORED + 512}""")

    def publish_o(self):
        r = 64
        self("L_pub:\ns_mov_b32 exec_hi, 0xffff")
        for k in range(8):
            self(f"ds_read_b128 v[{r + 4*k}:{r + 3 + 4*k}], v40 offset:{L_ORED + 768 * k}")
        for k in range(4):
            self(f"s_waitcnt lgkmcnt({6 - 2*k})")
            for e in range(4):
                self(f"v_add_f32 v{r + 8*k + e}, v{r + 8*k + e}, v{r + 4 + 8*k + e}")
        for e in range(4):
            self(f"v_add_f32 v{r + e}, v{r + e}, v{r + 8 + e}\nv_add_f32 v{r + 16 + e}, v{r + 16 + e}, v{r + 24 + e}")
        for e in range(4):
            self(f"v_add_f32 v{r + e}, v{r + e}, v{r + 16 + e}")
        for e in range(4):
            self(f"v_mul_f32 v{r + e}, s73, v{r + e}")
        self.tag_data(r, 44)
        self(f"""
            buffer_store_dwordx4 v[{r}:{r+3}], v42, s[44:47], s13 offen {self.o["tst"]}
            s_mov_b64 exec, -1
            s_cmp_ge_u32 s3, 4
            s_cbranch_scc1 L_pubdone""")

    def streamer(self):
        o = self.o
        W = "ctl" if o["ctl"] else 3
        TAB = "\n".join(f"global_load_dwordx4 v[{48 + 4*i}:{51 + 4*i}], v8, s[14:15] offset:{(i >> 1) * 1024 + (i & 1) * 16}"
                        for i in range(4))
        self(f"""
            s_getpc_b64 s[14:15]
            L_pc:
            s_add_u32 s14, s14, L_table-L_pc
            s_addc_u32 s15, s15, 0
            v_lshrrev_b32 v8, 3, v0
            v_lshlrev_b32 v8, 5, v8
            s_max_u32 s12, s2, 16
            s_sub_u32 s12, s12, 16
            s_mul_i32 s12, s12, 205
            s_lshr_b32 s12, s12, 11
            s_cmp_ge_u32 s12, 12
            s_cselect_b32 s13, 12, 0
            s_sub_u32 s10, s12, s13
            s_lshl_b32 s10, s10, 3
            s_and_b32 s11, s2, 7
            s_add_u32 s10, s10, s11
            s_lshl_b32 s10, s10, 22
            s_and_b32 s11, s2, 63
            s_lshl_b32 s11, s11, 7
            s_add_u32 s10, s10, s11
            s_add_u32 s10, s10, 0x80000
            s_add_u32 s11, s10, 0x2000
            s_mov_b32 s54, {KV_BYTES}
            s_mov_b32 s55, 0x20000
            s_setprio {3 if o["hprio"] else 2}""")
        if o["tabw"] != 2:
            self(TAB)
        self.args_ready()
        if o["tabw"] == 2:
            self(TAB)
        self("""
            s_cmp_eq_u32 s13, 0
            s_cselect_b32 s52, s18, s20
            s_cselect_b32 s53, s19, s21
            s_and_b32 s53, s53, 0xffff""")
        self.plan()
        if o["tabw"]:
            self("s_waitcnt vmcnt(0)")
        self("""
            s_barrier
            s_cmp_lg_u32 s3, 0
            s_cbranch_scc1 L_noprobe
            s_mov_b64 exec, 1
            buffer_load_dword v6, v1, s[52:55], s10 offen nt
            buffer_load_dword v7, v1, s[52:55], s11 offen nt
            s_mov_b64 exec, -1
            L_noprobe:
            s_barrier""")
        self.srd(44, 36, WS_END)
        self(f"""
            s_cmp_lg_u32 s3, 0
            s_cbranch_scc1 L_pre
            s_waitcnt vmcnt(1)
            s_memtime s[10:11]
            s_waitcnt vmcnt(0)
            s_memtime s[12:13]
            s_waitcnt lgkmcnt(0)
            s_sub_u32 s10, s12, s10
            s_cmp_le_u32 s10, {o["gap"]}
            s_cselect_b32 s62, 1, 0
            s_xor_b32 s62, s62, s9""")
        for k in range(4):
            self(f"""
                s_load_dword s92, s[34:35], {64 * k}
                s_waitcnt lgkmcnt(0)
                s_cmp_lg_u32 s92, 0
                s_cbranch_scc1 L_ndone
                s_sleep {o["nsleep"]}""")
        self(f"""
            s_mov_b32 s12, 0x40000
            L_npoll:
            global_load_dword v6, v1, s[34:35] sc1
            s_waitcnt vmcnt(0)
            v_readfirstlane_b32 s92, v6
            s_cmp_lg_u32 s92, 0
            s_cbranch_scc1 L_ndone
            s_sleep 4
            s_sub_u32 s12, s12, 1
            s_cbranch_scc0 L_npoll
            s_branch L_end
            L_ndone:
            s_lshl_b32 s11, s7, 1
            s_or_b32 s10, s62, s11
            s_lshl_b32 s11, s2, 7
            s_add_u32 s11, s11, {VR}
            v_mov_b32 v6, s92
            v_mov_b32 v7, s10
            v_lshlrev_b32 v5, 3, v2
            s_mov_b64 exec, 0xffff
            buffer_store_dwordx2 v[6:7], v5, s[44:47], s11 offen sc1
            v_mov_b32 v8, {NEG}
            v_mov_b32 v9, s92
            v_mov_b32 v10, 0
            v_mov_b32 v11, s92
            v_lshlrev_b32 v12, 4, v2
            s_mov_b64 exec, 0xff
            ds_write_b128 v12, v[8:11] offset:{L_STAT}
            ds_write_b32 v1, v6 offset:{C_NONCE}
            s_mov_b64 exec, -1""")
        self.stamp(1)
        self("""
            s_branch L_tabok
            L_pre:
            s_waitcnt vmcnt(0)
            L_tabok:
            s_setprio 1
            v_mov_b32 v9, 0
            v_and_b32 v40, 7, v0
            v_lshlrev_b32 v40, 4, v40""")
        for i in range(16):
            self(f"v_add_u32 v{48 + i}, v{48 + i}, v40")
        self.srd(40, 18, KV_BYTES)
        self(f"""
            s_and_b32 s63, s21, 0xffff
            v_lshlrev_b32 v4, 1, v0
            s_mul_i32 s57, s0, {WIN}
            s_mov_b32 s58, 0
            s_mov_b32 s68, 0
            s_mov_b32 s69, 0
            s_lshl_b32 s70, s3, 30
            s_lshl_b32 s71, s3, 30
            s_mov_b32 s72, -4
            s_mov_b32 s93, 1""")
        self("s_lshr_b32 s10, s3, 1\ns_cmp_lg_u32 s10, s4\ns_cselect_b64 s[60:61], -1, 0")

        def selectors(par):
            lo_sel, hi_sel = ((0x0c0c0100, 0x01000c0c), (0x0c0c0302, 0x03020c0c))[par]
            self(f"v_and_b32 v5, 7, v0\nv_mov_b32 v28, 0x0c0c0c0c\nv_mov_b32 v29, 0x{lo_sel:08x}\nv_mov_b32 v30, 0x{hi_sel:08x}")
            for w in range(4):
                r = 32 + par * 4 + w
                self(f"""
                    v_cmp_eq_u32 vcc, {2*w}, v5
                    v_cmp_eq_u32 s[10:11], {2*w + 1}, v5
                    s_nop 0
                    v_cndmask_b32 v{r}, v28, v29, vcc
                    v_cndmask_b32 v{r}, v{r}, v30, s[10:11]""")

        def addresses():
            self(f"""
                v_lshlrev_b32 v41, 1, v40
                v_bfe_u32 v6, v0, 4, 1
                v_lshl_add_u32 v41, v6, 4, v41
                v_lshrrev_b32 v6, 5, v0
                v_mul_u32_u24 v6, 768, v6
                v_add_u32 v41, v41, v6
                v_and_b32 v42, 63, v0
                v_lshlrev_b32 v42, 4, v42
                s_bcnt1_i32_b32 s10, s95
                s_sub_u32 s10, 3, s10
                s_mul_i32 s11, s10, 6144
                v_add_u32 v41, s11, v41
                s_mul_i32 s11, s10, 384
                v_add_u32 v40, s11, v40
                s_lshl_b32 s11, s10, 2
                v_mov_b32 v43, s11""")

        def last_unit():
            self.region_of("15", "s11", "s50")
            self.partial_slot("s11", "s50", "s13")
            self("s_lshl_b32 s50, s50, 3")

        def nonce_tags():
            self(f"ds_read_b32 v6, v1 offset:{C_NONCE}\ns_waitcnt lgkmcnt(0)\nv_readfirstlane_b32 s92, v6")
            self.tags(44)

        def only(wave, code):
            sk = self.lab("on")
            self(f"s_cmp_lg_u32 s3, {wave}\ns_cbranch_scc1 {sk}")
            code()
            self(f"{sk}:")

        if o["hold"]:
            self(f"s_sub_u32 s10, s38, 48\ns_cmp_ge_u32 s10, 24\ns_cbranch_scc1 L_nohold")
            self.spin_lds(C_ICNT, o["hold"], sleep=1)
            self("L_nohold:")
        idle = [self.masks, lambda: selectors(0), lambda: selectors(1), addresses, last_unit, nonce_tags]
        assert o["vat"] + 2 < o["agn"] <= 8
        for n in range(15):
            if n == o["agn"]:
                self.spin_lds(C_VOTE, 1, sleep=0, wide=True)
                self("s_mov_b32 s59, s11")
                self("s_bitcmp1_b32 s59, 0\ns_cselect_b64 s[60:61], -1, 0")
                self.stamp(2)
            if n == 8:
                self.advance_window(False)
            self.issue(n & 7, n, None if n < 2 else o["w0"] if n < o["agn"] else o["pw"])
            if n == o["vat"]:
                only(1, self.vote_load)
            if n == o["vat"] + 2:
                only(1, lambda: (self("s_waitcnt vmcnt(6)"), self.vote_eval()))
            if n == o["qat"]:
                only(2, lambda: self.lds_inc(C_MARK))
            if 8 <= n < 8 + len(idle):
                idle[n - 8]()
        self.stamp(3)
        self("s_mov_b32 s62, 0\ns_mov_b32 s51, s95")

        def progress(first=False, late=0):
            sk = self.lab("pg")
            self(f"""
                s_cmp_lg_u32 s3, 0
                s_cbranch_scc1 {sk}
                s_memrealtime s[10:11]
                s_add_u32 s72, s72, 4
                v_mov_b32 v6, s72
                s_waitcnt lgkmcnt(0)
                s_or_b32 s10, s10, 1
                v_mov_b32 v7, s10
                ds_write_b32 v6, v7 offset:{C_T}
                {sk}:""")
            if not first:
                self("v_add_u32 v4, 1024, v4\ns_add_u32 s62, s62, 1")

        def next_q():
            for j in range(3):
                self(f"ds_read_b128 v[{8 + 4*j}:{11 + 4*j}], v40 offset:{L_Q + 128 * j}")
            self("v_add_u32 v40, 384, v40\ns_waitcnt lgkmcnt(0)")

        def next_o():
            self("v_add_u32 v41, 6144, v41\nv_add_u32 v43, 4, v43")
            for i in range(12):
                self(f"v_mov_b32 v{8 + i}, 0")

        def body(consume, vphase=False):
            for i in range(16):
                if vphase and i in (0, 8):
                    self(f"ds_read_b128 v[28:31], v4 offset:{L_P + (i >> 3) * 512}")
                if vphase and i > 0:
                    self(f"s_cbranch_vccnz L_dr{i}" if (i >= 12 or i == 1) else f"s_cbranch_vccnz L_cons{i}")
                if i == 8:
                    progress(True)
                if o["ctl"] and i % 4 == 2:
                    self(f"ds_read_b64 v[6:7], v1 offset:{C_CTL}\ns_memrealtime s[74:75]")
                if o["ctl"] and i % 4 == 3:
                    self(f"""
                        s_waitcnt lgkmcnt(0)
                        v_readfirstlane_b32 s68, v6
                        v_readfirstlane_b32 s69, v7
                        s_lshl_b32 s10, s74, 5
                        s_mul_i32 s11, s69, s93
                        s_add_u32 s93, s93, 2
                        s_sub_u32 s10, s10, s68
                        s_sub_u32 s10, s10, s11
                        s_cmp_eq_u32 s69, 0
                        s_cselect_b32 s10, 0, s10""")
                    self.levels("s68", "s69")
                if i in (1, 9):
                    self.advance_window(i == 1)
                self.issue((i - 1) & 7, (i - 1) & 15, W)
                if i == 8:
                    sk = self.lab("mb")
                    self(f"s_bitcmp1_b32 s51, 0\ns_cbranch_scc0 {sk}")
                    if vphase:
                        self.flush_acc()
                        self.lds_inc(C_OCNT, addr="v43")
                        next_o()
                    else:
                        next_q()
                    self(f"{sk}:")
                if vphase:
                    self(f"L_cons{i}:")
                consume(i)

        self.spin_lds(C_QRDY, 3)
        progress(True)
        self.stamp(4)
        self("L_kq:")
        next_q()
        self("L_kloop:")
        body(self.consume_k)
        progress()
        self("s_and_b32 s10, s62, 3\ns_cbranch_scc1 L_knoseg")
        self.lds_inc(C_KSEG)
        self("""
            s_cmp_eq_u32 s62, 8
            s_cbranch_scc1 L_kdone
            L_knoseg:
            s_mov_b32 s10, s51
            s_lshr_b32 s51, s51, 2
            s_bitcmp1_b32 s10, 1
            s_cbranch_scc0 L_kloop
            s_branch L_kq
            L_kdone:""")
        self.stamp(5)
        self(f"""
            v_lshrrev_b32 v4, 3, v0
            v_lshlrev_b32 v4, 4, v4
            v_add_u32 v40, {2 * 6144}, v42
            s_mov_b32 s62, 0
            s_mov_b32 s51, s95
            s_mov_b64 vcc, 0""")
        for i in range(12):
            self(f"v_mov_b32 v{8 + i}, 0")
        self.spin_lds(C_PRDY, 4)
        self("L_vloop:")
        body(self.consume_v, vphase=True)
        self("s_cbranch_vccnz L_vflush")
        progress()
        self("s_bitcmp1_b32 s51, 1\ns_cbranch_scc0 L_vnoflush\nL_vflush:")
        self.flush_acc()
        self.lds_inc(C_OCNT, ret=True, addr="v43")
        self("s_cbranch_vccnz L_vlast")
        next_o()
        self("""
            L_vnoflush:
            s_lshr_b32 s51, s51, 2
            s_cmp_eq_u32 s62, 7
            s_cselect_b64 vcc, -1, 0
            s_cmp_lg_u32 s62, 4
            s_cbranch_scc1 L_vloop""")
        self.spin_lds(C_PRDY, 8)
        self(f"ds_read_b32 v6, v1 offset:{C_F}\ns_waitcnt lgkmcnt(0)")
        for i in range(12):
            self(f"v_mul_f32 v{8 + i}, v{8 + i}, v6")
        self("s_branch L_vloop")
        self("L_dr1:")
        self.lds_inc(C_ISS)
        self("v_mov_b32 v5, s50")
        self.spin_lds(C_SC, 1, wide=True, addr="v5")
        self("s_mov_b32 s73, s11\ns_branch L_cons1")
        for i in (12, 13, 14, 15):
            self(f"L_dr{i}:\ns_waitcnt vmcnt({3 * (15 - i)})\ns_branch L_cons{i}")
        self("L_vlast:")
        self.stamp(7)
        self("s_cmp_lg_u32 s10, 3\ns_cbranch_scc1 L_nolast")
        self.publish_o()
        self.stamp(8)
        self("L_nolast:")
        if o["series"]:
            self(f"""
                s_lshl_b32 s10, s3, 7
                v_mov_b32 v6, s10
                v_mov_b32 v7, s87
                ds_write_b32 v6, v7 offset:{L_SER + 124}
                v_and_b32 v6, 31, v0
                v_lshlrev_b32 v6, 2, v6
                v_add_u32 v6, s10, v6
                ds_read_b32 v7, v6 offset:{L_SER}
                s_lshl_b32 s10, s2, 9
                s_add_u32 s10, s10, {STAMPS + 0x100000}
                v_add_u32 v6, s10, v6
                s_waitcnt lgkmcnt(0)
                global_store_dword v6, v7, s[36:37]""")
        self("s_branch L_end")

    def item_loads(self, part):
        if part < 2:
            for rho in range(8):
                r = 48 + (part * 8 + rho) * 2
                self(f"buffer_load_dwordx2 v[{r}:{r+1}], v44, s[40:43], s13 offen nt")
                self(f"s_add_u32 s13, s13, {'s71' if rho == 7 else 's70'}")
        else:
            for rho in range(4):
                r = 80 + rho * 2
                self(f"buffer_load_dwordx2 v[{r}:{r+1}], v45, s[40:43], s13 offen nt")
                if rho < 3:
                    self("s_add_u32 s13, s13, s70")

    def frag_norm(self):
        for i in range(10):
            self(f"v_lshlrev_b32 v{8 + 2*i}, 16, v{28 + i}\nv_and_b32 v{9 + 2*i}, 0xffff0000, v{28 + i}")
        self("s_waitcnt lgkmcnt(0)")
        for i in range(20):
            self(f"v_sub_f32 v{8 + i}, v{8 + i}, v40")
        for i in range(10):
            self(f"v_cvt_pk_bf16_f32 v{28 + i}, v{8 + 2*i}, v{9 + 2*i}")
        for i in range(10):
            self(f"v_lshlrev_b32 v{8 + 2*i}, 16, v{28 + i}\nv_and_b32 v{9 + 2*i}, 0xffff0000, v{28 + i}")
        for i in range(20):
            self(f"v_mul_f32 v{8 + i}, v{8 + i}, v41")
        for i in range(10):
            self(f"v_cvt_pk_bf16_f32 v{144 + i}, v{8 + 2*i}, v{9 + 2*i}")

    def item_compute(self):
        for s in range(3):
            self(f"s_waitcnt vmcnt({(12, 4, 0)[s]})")
            nm = 4 if s < 2 else 2
            for e in range(4):
                for m in range(nm):
                    lo = 48 + (s * 8 + 2 * m) * 2 + (e >> 1)
                    self(f"v_perm_b32 v{88 + s*16 + e*nm + m}, v{lo + 2}, v{lo}, s{68 + (e & 1)}")
            self("s_nop 1")
            for e in range(4):
                a = 88 + s * 16 + e * nm
                d = 128 + e * 4
                c = "0" if s == 0 else f"v[{d}:{d+3}]"
                if s < 2:
                    self(f"v_mfma_f32_16x16x32_bf16 v[{d}:{d+3}], v[{a}:{a+3}], v[{144 + 4*s}:{147 + 4*s}], {c}")
                else:
                    self(f"v_mfma_f32_16x16x16_bf16 v[{d}:{d+3}], v[{a}:{a+1}], v[152:153], {c}")
        self("s_nop 7")
        for r in range(4):
            self(f"v_cndmask_b32 v{128 + r}, v{128 + r}, v{132 + r}, s[66:67]")
            self(f"v_cndmask_b32 v{136 + r}, v{136 + r}, v{140 + r}, s[66:67]")
        for r in range(4):
            self(f"v_cndmask_b32 v{128 + r}, v{128 + r}, v{136 + r}, s[64:65]")
        self(f"ds_write_b128 v46, v[128:131] offset:{L_ORED}")

    def gather_tile(self, vo, va, sleep, silu, dst):
        self.poll([(8, f"buffer_load_dwordx4 v[8:11], {vo}, s[44:47], s13 offen sc1"),
                   (12, f"buffer_load_dwordx4 v[12:15], {vo}, s[44:47], s13 offen offset:3072 sc1")], sleep)
        for e in range(4):
            self(f"v_add_f32 v{8 + e}, v{8 + e}, v{12 + e}")
        if silu:
            for e in range(4):
                self.bf16_round(8 + e)
            for e in range(4):
                self(f"v_mul_f32 v{12 + e}, {f32(-1.4426950408889634)}, v{8 + e}")
            for e in range(4):
                self(f"v_exp_f32 v{12 + e}, v{12 + e}")
            for e in range(4):
                self(f"v_add_f32 v{12 + e}, 1.0, v{12 + e}")
            for e in range(4):
                self(f"v_rcp_f32 v{12 + e}, v{12 + e}")
            for e in range(4):
                self(f"v_mul_f32 v{8 + e}, v{8 + e}, v{12 + e}")
        self(f"""
            v_cvt_pk_bf16_f32 v8, v8, v9
            v_cvt_pk_bf16_f32 v10, v10, v11
            ds_write_b16 {va}, v8 offset:{dst}
            ds_write_b16_d16_hi {va}, v8 offset:{dst + 8}
            ds_write_b16 {va}, v10 offset:{dst + 16}
            ds_write_b16_d16_hi {va}, v10 offset:{dst + 24}""")

    def gather_o(self, batches, sleep, hook=None):
        late = 3 in batches
        loads = [(8 + 4 * b, f"buffer_load_dwordx4 v[{8 + 4*b}:{11 + 4*b}], v47, s[44:47], s{16 + b} offen sc1")
                 for b in batches]
        if late:
            loads.append((24, "buffer_load_dwordx4 v[24:27], v48, s[44:47], s18 offen sc1"))

        def finish():
            self.rows4_reduce(*[8 + 4 * b for b in batches], extra=24 if late else None)
            for b in batches:
                r = 8 + 4 * b
                self(f"v_cvt_pk_bf16_f32 v{r}, v{r}, v{r}\nds_write_b16 v44, v{r} offset:{L_OBUF + 384 * b}")

        self.poll(loads, sleep, half={len(loads) - 1: "s20"} if late else {}, hook=hook, inner=finish)

    def tile_lanes(self):
        self("""
            v_lshlrev_b32 v232, 1, v4
            v_xor_b32 v232, v232, v3
            v_lshlrev_b32 v232, 4, v232
            v_mad_u32_u24 v232, v4, s11, v232""")

    def tile_setup(self):
        self.srd(40, 24, 6144 * 1280)
        self(f"""
            s_mul_i32 s70, s77, {192 * 1280}
            s_lshl_b32 s10, s39, 8
            s_add_u32 s70, s70, s10
            s_add_u32 s71, s70, {192 * 1280}
            s_mov_b32 m0, {L_WT}
            s_movk_i32 s11, 1280""")
        self.tile_lanes()
        self(f"""
            v_bfe_u32 v234, v2, 1, 1
            v_lshl_add_u32 v234, s72, 2, v234
            v_bfe_u32 v235, v2, 2, 2
            v_lshlrev_b32 v7, 1, v235
            v_xor_b32 v234, v234, v7
            v_lshlrev_b32 v234, 4, v234
            v_lshl_add_u32 v234, v235, 8, v234
            v_and_b32 v235, 1, v2
            v_lshl_add_u32 v234, v235, 3, v234
            v_xor_b32 v235, 32, v234
            v_mul_u32_u24 v7, {2 * TROW}, v4
            v_add_u32 v7, {L_WT}, v7
            v_add_u32 v234, v234, v7
            v_add_u32 v235, v235, v7""")

    def tile_issue(self, limit, depth, srd="s[40:43]", off="s70"):
        lp = self.lab("tl")
        self(f"""
            {lp}:
            s_waitcnt vmcnt({depth - 1})
            buffer_load_dwordx4 v232, {srd}, {off} offen nt lds
            s_add_u32 m0, m0, {TROW}
            s_add_u32 {off}, {off}, {4 * 1280}
            s_cmp_lt_u32 {off}, {limit}
            s_cbranch_scc1 {lp}""")

    def fragments(self):
        for s in range(6):
            for e in range(2):
                for hf in range(2):
                    r = 180 + s * 8 + e * 4 + hf * 2
                    self(f"ds_read_b64_tr_b16 v[{r}:{r+1}], v{234 + e} offset:{(8 * s + hf) * TROW}")

    def project(self, final):
        if final:
            self("s_waitcnt lgkmcnt(0)\ns_barrier")
        for s in range(6):
            self(f"ds_read_b128 v[{8 + 4*s}:{11 + 4*s}], v228 offset:{L_OBUF + 64 * s}")
        for s in range(6):
            self(f"s_waitcnt lgkmcnt({5 - s})")
            for e in range(2):
                b = 180 + s * 8 + e * 4
                d = 32 + e * 4
                c = "0" if s == 0 else f"v[{d}:{d+3}]"
                self(f"v_mfma_f32_16x16x32_bf16 v[{d}:{d+3}], v[{8 + 4*s}:{11 + 4*s}], v[{b}:{b+3}], {c}")
        self("s_mov_b32 vcc_lo, 0xffff0000\ns_mov_b32 vcc_hi, 0\ns_nop 6")
        for r in range(4):
            self(f"v_cndmask_b32 v{32 + r}, v{32 + r}, v{36 + r}, vcc")
        self.tag_data(32, 236)
        self("s_mov_b32 exec_hi, 0")
        if final and self.o["local"]:
            self("""
                s_cmp_eq_u32 s58, 0
                s_cbranch_scc1 L_ythru
                buffer_store_dwordx4 v[32:35], v229, s[44:47], s75 offen
                s_branch L_ydone
                L_ythru:""")
        self("buffer_store_dwordx4 v[32:35], v229, s[44:47], s75 offen sc1")
        self("L_ydone:\ns_mov_b64 exec, -1" if final else "s_mov_b64 exec, -1")

    def prep(self, g):
        o = self.o
        lp, dn, keep = self.lab("fl"), self.lab("fd"), self.lab("fk")
        AGN = "s_mov_b64 s[60:61], s[52:53]\ns_mov_b64 s[54:55], s[52:53]"
        if g == 0 and o["agn"] and "a" not in o["skip"]:
            AGN = """
                s_lshr_b32 s10, s59, 16
                s_xor_b32 s10, s10, s4
                s_bitcmp1_b32 s10, 0
                s_cselect_b32 s54, -1, 0
                s_xor_b32 s54, s54, 0xffff0000
                s_cmp_eq_u32 s72, 0
                s_cselect_b32 s54, s54, s52
                s_mov_b32 s55, s53
                s_or_b64 s[60:61], s[52:53], s[54:55]"""
        SCA = {"wg": f"s_lshl_b32 s13, s2, 13\ns_add_u32 s13, s13, {SC + 4096 * g}\ns_xor_b32 s14, s13, {4 << 13}\nv_mov_b32 v30, v230",
               "seg": f"s_lshl_b32 s13, s2, 12\ns_add_u32 s13, s13, {SC + (g << 20)}\ns_xor_b32 s14, s13, {4 << 12}\nv_mov_b32 v30, v230",
               "page": f"""
                   s_lshr_b32 s13, s2, 4
                   s_lshl_b32 s13, s13, 16
                   s_and_b32 s14, s2, 15
                   s_lshl_b32 s14, s14, 11
                   s_add_u32 s13, s13, s14
                   s_lshl_b32 s14, s72, 9
                   s_add_u32 s13, s13, s14
                   s_add_u32 s13, s13, {SC + (g << 20)}
                   s_xor_b32 s14, s13, {4 << 11}
                   v_lshrrev_b32 v30, 5, v2
                   v_mul_u32_u24 v30, {32768 - 512}, v30
                   v_add_u32 v30, v30, v229"""}[o["scl"]]
        self.control(8 * g + 8)
        self.spin_lds(C_KSEG, 4 * (g + 1), sleep=8)
        self(f"""
            ds_read_b128 v[32:35], v230 offset:{L_S + 4096 * g}
            s_lshr_b32 s62, s59, 16
            s_xor_b32 s62, s62, s59
            s_lshl_b32 s11, s72, 1
            s_add_u32 s11, s11, {8 * g}
            s_lshr_b32 s10, s62, s11
            s_bitcmp1_b32 s10, 0
            s_cselect_b32 s52, -1, 0
            s_bitcmp1_b32 s10, 1
            s_cselect_b32 s53, -1, 0
            {AGN}
            {SCA}
            s_lshl_b32 s15, s2, 8
            s_add_u32 s15, s15, {FL + 128 * g}
            s_waitcnt lgkmcnt(0)
            s_cmp_eq_u64 s[60:61], 0
            s_cbranch_scc1 {keep}s
            s_mov_b64 exec, s[60:61]
            buffer_store_dwordx4 v[32:35], v30, s[44:47], s13 offen {o["scst"]}
            s_waitcnt vmcnt(0)
            {keep}s:""")
        self.lds_inc(C_FCNT, ret=True)
        self(f"""
            s_cmp_lg_u32 s10, {4 * g + 3}
            s_cbranch_scc1 {keep}f
            s_bfe_u32 s10, s62, {(8 << 16) | (8 * g)}
            {"" if (g == 0 and o["agn"] and "a" not in o["skip"]) else f"s_cbranch_scc0 {keep}f"}
            v_mov_b32 v5, s92
            v_lshlrev_b32 v6, 2, v2
            s_mov_b32 exec_hi, 0
            buffer_store_dword v5, v6, s[44:47], s15 offen sc1
            s_mov_b32 exec_hi, -1
            {keep}f:
            s_xor_b32 s56, s15, {4 << 8}
            s_mov_b32 s57, s14""")
        self.control(8 * g + 8 + o["rlag"])
        self(f"s_cmp_eq_u64 s[60:61], 0\ns_cbranch_scc1 {keep}")
        self.spin_lds(C_T + 4 * (8 * g + 8 + o["rlag"]), 1, sleep=16)
        self(f"""
            s_mov_b32 s12, 0x40000
            s_mov_b64 exec, 1
            {lp}:
            buffer_load_dword v6, v1, s[44:47], s56 offen sc1
            s_waitcnt vmcnt(0)
            v_readfirstlane_b32 s10, v6
            s_cmp_eq_u32 s10, s92
            s_cbranch_scc1 {dn}
            s_sleep {o["fsleep"]}
            s_sub_u32 s12, s12, 1
            s_cbranch_scc0 {lp}
            s_branch L_end
            {dn}:
            s_mov_b64 exec, s[60:61]
            buffer_load_dwordx4 v[36:39], v30, s[44:47], s57 offen {o["scld"]}
            s_mov_b64 exec, -1
            s_waitcnt vmcnt(0)""")
        for i in range(4):
            self(f"v_cndmask_b32 v{32 + i}, v{32 + i}, v{36 + i}, {'s[54:55]' if 2 * i < o['agn'] else 's[52:53]'}")
        self(f"{keep}:")
        for i in range(4):
            self(f"v_lshlrev_b32 v{8 + 2*i}, 16, v{32 + i}\nv_and_b32 v{9 + 2*i}, 0xffff0000, v{32 + i}")
        self("v_max3_f32 v24, v8, v9, v10\nv_max3_f32 v24, v24, v11, v12\nv_max3_f32 v24, v24, v13, v14\nv_max_f32 v24, v24, v15")
        self.half_allreduce("v_max_f32", 24, 25)
        self(f"""
            v_lshrrev_b32 v27, 5, v2
            v_lshl_add_u32 v27, s72, 1, v27
            v_add_u32 v27, {8 * g}, v27""")
        self.lane_row(27, 26)
        self("v_lshlrev_b32 v26, 5, v26\nv_lshlrev_b32 v27, 2, v27")
        if g == 1:
            self(f"ds_read_b32 v25, v26 offset:{L_STAT}\ns_waitcnt lgkmcnt(0)\nv_max_f32 v24, v24, v25")
        self(f"""
            s_mov_b32 exec_lo, 1
            s_mov_b32 exec_hi, 1
            ds_max_f32 v26, v24 offset:{L_STAT + 16 * g}""")
        self.lds_inc(C_MAXC)
        self.spin_lds(C_MAXC, 4 * (g + 1), sleep=2)
        self(f"""
            ds_read_b32 v24, v26 offset:{L_STAT + 16 * g}
            s_mov_b32 s10, {f32(1.4426950408889634)}
            s_waitcnt lgkmcnt(0)""")
        if g == 1:
            self(f"""
                v_sub_f32 v25, v25, v24
                v_mul_f32 v25, s10, v25
                v_exp_f32 v25, v25
                s_cmp_lg_u32 s72, 0
                s_cbranch_scc1 L_nofact
                s_mov_b64 exec, 1
                ds_write_b32 v1, v25 offset:{C_F}
                s_mov_b64 exec, -1
                L_nofact:""")
        for i in range(8):
            self(f"v_sub_f32 v{8 + i}, v{8 + i}, v24")
        for i in range(8):
            self(f"v_mul_f32 v{8 + i}, s10, v{8 + i}")
        for i in range(8):
            self(f"v_exp_f32 v{8 + i}, v{8 + i}")
        for i in range(4):
            self(f"v_cvt_pk_bf16_f32 v{32 + i}, v{8 + 2*i}, v{9 + 2*i}")
        self(f"ds_write_b128 v230, v[32:35] offset:{L_P + 4096 * g}")
        self.lds_inc(C_PRDY)
        for step in (4, 2, 1):
            for i in range(step):
                self(f"v_add_f32 v{8 + i}, v{8 + i}, v{8 + step + i}")
        self.half_allreduce("v_add_f32", 8, 9)
        self(f"ds_write_b32 v27, v8 offset:{C_WL}")
        if g == 1:
            self.lds_inc(C_SCNT, ret=True)
            self(f"""
                s_cmp_lg_u32 s10, 3
                s_cbranch_scc1 L_nostat
                v_lshlrev_b32 v9, 2, v3
                ds_read_b32 v8, v9 offset:{C_WL}""")
            self.lane_row(3, 10)
            self("""
                v_cmp_eq_u32 vcc, v10, v4
                v_lshlrev_b32 v9, 1, v2
                s_waitcnt lgkmcnt(0)
                v_cndmask_b32 v8, 0, v8, vcc""")
            for ctl in ("quad_perm:[1,0,3,2]", "quad_perm:[2,3,0,1]", "row_half_mirror"):
                self(f"s_nop 1\nv_add_f32_dpp v8, v8, v8 {ctl} row_mask:0xf bank_mask:0xf")
            self(f"""
                s_mov_b32 exec_lo, 0x01010101
                s_mov_b32 exec_hi, 0x01010101
                ds_write_b32 v9, v8 offset:{L_STAT + 8}
                s_mov_b64 exec, 0xff
                ds_read_b128 v[24:27], v229 offset:{L_STAT}
                s_lshl_b32 s13, s27, 1
                s_add_u32 s13, s13, s4
                s_lshl_b32 s13, s13, 7
                s_add_u32 s13, s13, {ST}
                s_waitcnt lgkmcnt(0)
                buffer_store_dwordx4 v[24:27], v229, s[44:47], s13 offen sc1
                s_mov_b64 exec, -1
                L_nostat:""")

    def lane_row(self, i, dst):
        self.lane_window(i, dst)
        self(f"""
            v_cmp_le_u32 vcc, {86 * 16}, v{dst}
            v_bfe_u32 v{dst}, v{dst}, 4, 1
            s_nop 0
            v_cndmask_b32 v{dst}, v{dst}, 2, vcc""")

    def scale(self):
        self.note("softmax scale per region from the (max, sum) records of the workgroups that share it")
        lp, dn = self.lab("sl"), self.lab("sd")
        self(f"""
            v_bfe_u32 v12, v2, 1, 3
            v_lshlrev_b32 v12, 7, v12
            v_lshl_add_u32 v12, v4, 5, v12
            v_and_b32 v13, 1, v2
            v_lshl_add_u32 v12, v13, 4, v12
            v_mov_b32 v8, {NEG}
            v_mov_b32 v10, 0
            s_sub_u32 s13, s27, s94
            s_lshl_b32 s13, s13, 8
            s_add_u32 s13, s13, {ST}
            s_mov_b32 s10, 0x00ff00ff
            s_cmp_lt_u32 s27, 126
            s_cselect_b32 exec_lo, 0x0fff0fff, s10
            s_mov_b32 exec_hi, exec_lo
            s_mov_b32 s12, 0x40000
            {lp}:
            buffer_load_dwordx4 v[8:11], v12, s[44:47], s13 offen sc1
            s_waitcnt vmcnt(0)
            v_xor_b32 v13, s92, v9
            v_bitop3_b32 v13, v13, v11, s92 bitop3:0xf6
            v_cmp_ne_u32 vcc, 0, v13
            s_cmp_eq_u64 vcc, 0
            s_cbranch_scc1 {dn}
            s_sleep 24
            s_sub_u32 s12, s12, 1
            s_cbranch_scc0 {lp}
            s_branch L_end
            {dn}:
            s_mov_b64 exec, -1
            v_max_f32_dpp v13, v8, v8 quad_perm:[1,0,3,2] row_mask:0xf bank_mask:0xf
            v_mov_b32 v9, v8""")
        self.row16_allreduce("v_max_f32", 9)
        self(f"""
            v_sub_f32 v8, v8, v9
            v_sub_f32 v13, v13, v9
            v_mul_f32 v8, {f32(1.4426950408889634)}, v8
            v_mul_f32 v13, {f32(1.4426950408889634)}, v13
            v_exp_f32 v8, v8
            v_exp_f32 v13, v13
            v_mul_f32 v10, v10, v8""")
        self.row16_allreduce("v_add_f32", 10)
        self(f"""
            v_rcp_f32 v10, v10
            v_lshlrev_b32 v11, 3, v4
            v_mul_f32 v9, v13, v10
            v_mov_b32 v8, 1
            s_lshl_b32 s10, s94, 1
            s_add_u32 s10, s10, s4
            s_lshl_b32 s10, s10, 1
            s_lshl_b32 exec_lo, 0x10001, s10
            s_mov_b32 exec_hi, exec_lo
            ds_write_b64 v11, v[8:9] offset:{C_SC}
            s_mov_b64 exec, -1""")

    def levels(self, up, down):
        o = self.o
        self(f"""
            s_min_i32 s10, s10, {(o["cmax"] << 22) // o["gain"]}
            s_max_i32 s10, s10, {-((o["cmaxs"] << 22) // o["gains"])}
            s_max_i32 {up}, s10, 0
            s_sub_i32 {down}, 0, s10
            s_max_i32 {down}, {down}, 0
            s_mul_i32 {up}, {up}, {o["gain"] << 6}
            s_mul_i32 {down}, {down}, {o["gains"] << 6}""")

    def control(self, last, check=True, guard=False):
        o = self.o
        if not o["ctl"]:
            return
        lp, dn, np_, nc = self.lab("cl"), self.lab("cd"), self.lab("cp"), self.lab("cn")
        if check:
            self(f"s_cmp_lg_u32 s72, 3\ns_cbranch_scc1 {dn}")
        if guard:
            self(f"s_cmp_ge_u32 s96, {last}\ns_cbranch_scc1 {dn}")
        self(f"""
            {lp}:
            s_add_u32 s96, s96, 1
            s_lshl_b32 s10, s96, 2
            v_mov_b32 v9, s10""")
        self.spin_lds(C_T, 1, sleep=4, addr="v9")
        self(f"""
            s_mov_b32 s97, s10
            s_lshl_b32 s13, s96, 12
            s_add_u32 s13, s13, {CT}
            s_cmp_lt_u32 s96, {max(1, min(o['cfirst'], o['nomn']))}
            s_cselect_b32 s10, 0x80000000, 0
            v_lshl_or_b32 v9, v2, 7, s10
            s_mov_b32 exec_hi, 0
            s_mov_b32 exec_lo, {"-1" if o["nsmp"] == 32 else "0xffff"}
            buffer_load_dwordx2 v[10:11], v9, s[44:47], s13 offen sc1
            s_cmp_ge_u32 s99, {o["nsmp"]}
            s_cbranch_scc1 {np_}
            s_lshl_b32 s14, s99, 7
            s_add_u32 s14, s14, s13
            s_add_u32 s14, s14, 4096
            v_mov_b32 v12, s92
            v_mov_b32 v13, s97
            v_lshlrev_b32 v14, 3, v2
            s_mov_b32 exec_lo, 0xffff
            buffer_store_dwordx2 v[12:13], v14, s[44:47], s14 offen sc1
            s_mov_b32 exec_lo, {"-1" if o["nsmp"] == 32 else "0xffff"}
            s_waitcnt vmcnt(1)
            s_branch {np_}w
            {np_}:
            s_waitcnt vmcnt(0)
            {np_}w:
            v_cmp_eq_u32 vcc, s92, v10
            v_sub_u32 v11, s97, v11
            s_nop 0
            v_cndmask_b32 v11, 0, v11, vcc""")
        self.row16_allreduce("v_add_u32", 11)
        self(f"""
            s_nop 0
            v_readlane_b32 s10, v11, 0
            v_readlane_b32 s11, v11, {16 if o['nsmp'] == 32 else 0}
            s_mov_b64 exec, -1
            s_add_u32 s10, s10, s11
            s_lshl_b32 s11, s97, 5
            s_sub_u32 s11, s11, s10
            s_sub_u32 s12, s11, s98
            s_mov_b32 s98, s11
            s_cmp_le_u32 s96, {o["nomn"]}
            s_cselect_b32 s12, {o["nominal"] * 16}, s12
            s_mov_b32 s14, s100
            s_mov_b32 s100, s12
            s_cmp_lt_u32 s96, {o["cfirst"]}
            s_cbranch_scc1 {nc}""")
        self({"last": "s_lshr_b32 s12, s12, 2",
              "min": "s_min_u32 s12, s12, s14\ns_lshr_b32 s12, s12, 2",
              "avg": "s_add_u32 s12, s12, s14\ns_lshr_b32 s12, s12, 3"}[o["pest"]])
        self("""
            s_sub_u32 s10, s96, 1
            s_mul_i32 s10, s10, s12
            s_lshl_b32 s10, s10, 2
            s_sub_u32 s11, s11, s10
            s_sub_u32 s11, s11, s101""")
        self(f"""
            v_mov_b32 v12, s11
            v_mov_b32 v13, s12
            ds_write_b64 v1, v[12:13] offset:{C_CTL}
            {nc}:
            s_cmp_lt_u32 s96, {last}
            s_cbranch_scc1 {lp}
            {dn}:""")

    def helper(self):
        o = self.o
        self.in_helper = True
        self(f"""
            L_helper:
            s_sub_u32 s72, s3, 4
            s_sub_u32 s74, s38, 48
            s_mul_i32 s61, s74, 43
            s_lshr_b32 s61, s61, 8
            s_mul_i32 s10, s61, 6
            s_sub_u32 s73, s74, s10
            s_add_u32 s61, s61, 32
            s_cmp_lt_u32 s8, 6
            s_cselect_b32 s61, s6, s61
            s_cselect_b32 s73, s8, s73
            s_cselect_b32 s74, 0, s74
            s_cselect_b32 s70, 12, 3
            s_lshl_b32 s70, s70, 10
            s_mul_i32 s71, s70, 25
            s_cmp_ge_u32 s73, 3
            s_cselect_b32 s14, 4, 0
            s_cselect_b32 s10, 3, 0
            s_add_u32 s14, s14, s72
            s_mul_i32 s14, s14, 80
            s_sub_u32 s10, s73, s10
            s_and_b32 s11, s61, 31
            s_mul_i32 s11, s11, 3
            s_add_u32 s10, s10, s11
            s_lshl_b32 s10, s10, 7
            s_mul_i32 s13, s14, s70
            s_add_u32 s13, s13, s10
            s_lshl_b32 s14, s14, 1
            v_and_b32 v3, 15, v2
            v_lshrrev_b32 v4, 4, v2
            v_mul_u32_u24 v5, 1280, v4
            v_lshl_add_u32 v5, v3, 4, v5
            v_lshrrev_b32 v6, 2, v3
            v_mul_u32_u24 v7, 1280, v6
            v_lshl_add_u32 v38, v4, 3, v7
            v_lshl_add_u32 v7, v4, 4, v7
            v_mul_u32_u24 v45, s70, v4
            v_add_lshl_u32 v44, v45, v3, 3
            v_lshlrev_b32 v45, 2, v45
            v_lshl_add_u32 v45, v3, 3, v45
            s_or_b32 s10, s2, s72""")
        self.args_ready()
        self(f"""
            s_cmp_lg_u32 s10, 0
            s_cbranch_scc1 L_nononce
            s_max_u32 s10, s94, 1
            v_mov_b32 v47, s10
            v_lshlrev_b32 v46, 2, v2
            global_store_dword v46, v47, s[34:35] sc1
            L_nononce:
            s_mov_b32 s42, {640 * 1536 * 2}
            s_cmp_lt_u32 s8, 6
            s_cselect_b32 s40, s22, s28
            s_cselect_b32 s41, s23, s29
            s_cselect_b32 s42, {640 * 6144 * 2}, s42
            s_and_b32 s41, s41, 0xffff
            s_mov_b32 s43, 0x20000""")
        self.srd(48, 16, 5120)
        self.srd(44, 36, WS_END)
        self.stamp(1, 2)
        if o["hprio"]:
            self("s_setprio 2")
        self("s_barrier\ns_barrier")
        self.stamp(2, 2)
        def w2_tile():
            self("s_sub_u32 s56, s38, 32\ns_cmp_ge_u32 s56, 40\ns_cbranch_scc1 L_now2")
            self.srd(52, 30, 1536 * 1280)
            self(f"""
                s_mul_i32 s57, s56, 52
                s_lshr_b32 s57, s57, 8
                s_mul_i32 s10, s57, 5
                s_sub_u32 s10, s56, s10
                s_lshl_b32 s10, s10, 8
                s_lshl_b32 s62, s57, 2
                s_add_u32 s62, s62, s72
                s_mul_i32 s62, s62, {48 * 1280}
                s_add_u32 s62, s62, s10
                s_add_u32 s63, s62, {48 * 1280}
                s_mul_i32 s10, s72, {12 * TROW}
                s_add_u32 m0, s10, {L_WT}
                s_movk_i32 s11, 1280""")
            self.tile_lanes()
            self.tile_issue("s63", o["tdepth0"], "s[52:55]", "s62")
            self("L_now2:")

        if not o["w2last"]:
            w2_tile()
        self("s_cmp_ge_u32 s74, 48\ns_cbranch_scc1 L_noloads")
        for i in range(5):
            self(f"buffer_load_dwordx4 v[{8 + 4*i}:{11 + 4*i}], v5, s[48:51], 0 offen offset:{256 * i}")
        self("""
            buffer_load_dwordx4 v[28:31], v7, s[48:51], s14 offen
            buffer_load_dwordx4 v[32:35], v7, s[48:51], s14 offen offset:64
            buffer_load_dwordx2 v[36:37], v38, s[48:51], s14 offen offset:128""")
        first = (3, 1, 2)[o["hsplit"]]
        for p in range(first):
            self.item_loads(p)
        self("L_noloads:")
        if o["w2last"]:
            w2_tile()
        self.stamp(3, 2)
        self.masks()
        self.roles()
        self.plan()
        self(f"""
            s_mov_b32 s68, 0x05040100
            s_mov_b32 s69, 0x07060302
            v_lshlrev_b32 v229, 4, v2
            v_and_b32 v47, 3, v2
            v_mul_u32_u24 v228, 384, v47
            v_lshl_add_u32 v228, v4, 4, v228
            v_mul_u32_u24 v233, 384, v4
            v_lshl_add_u32 v233, v6, 5, v233
            v_lshl_add_u32 v233, v47, 1, v233
            s_lshl_b32 s10, s72, 7
            v_add_u32 v233, s10, v233
            s_lshl_b32 s10, s72, 10
            v_add_u32 v230, s10, v229
            v_lshl_add_u32 v46, v6, 8, s10
            v_lshl_add_u32 v46, v4, 6, v46
            v_lshl_add_u32 v46, v47, 4, v46
            s_lshl_b32 s10, s72, 2
            v_mov_b32 v231, s10
            s_mov_b32 s60, 0
            s_cmp_ge_u32 s74, 48
            s_cbranch_scc1 L_noitem
            v_lshlrev_b32 v47, 6, v6
            s_mov_b32 s10, 0x3f803f80
            s_waitcnt vmcnt({(20, 8, 16)[o["hsplit"]]})""")
        self.stamp(4, 2)
        for i in range(20):
            self(f"v_dot2_f32_bf16 v40, v{8 + i}, s10, {'0' if i == 0 else 'v40'}")
        self("s_nop 1")
        self.row16_allreduce("v_add_f32", 40)
        self(f"v_mul_f32 v40, {f32(1 / 640)}, v40")
        for p in range(first, 3):
            self.item_loads(p)
        self("v_mov_b32 v41, 0\nv_mov_b32 v42, 0")
        for i in range(20):
            self(f"""
                v_lshlrev_b32 v38, 16, v{8 + i}
                v_and_b32 v39, 0xffff0000, v{8 + i}
                v_sub_f32 v38, v38, v40
                v_sub_f32 v39, v39, v40
                v_fmac_f32 v41, v38, v38
                v_fmac_f32 v42, v39, v39""")
        self("v_add_f32 v41, v41, v42")
        self.row16_allreduce("v_add_f32", 41)
        self(f"v_mul_f32 v41, {f32(1 / 640)}, v41")
        self.bf16_round(41)
        self(f"v_add_f32 v41, {f32(1e-5)}, v41")
        self.bf16_round(41)
        self("v_sqrt_f32 v41, v41\ns_nop 0")
        self.bf16_round(41)
        self("v_rcp_f32 v41, v41")
        self.bf16_round(40)
        self("ds_bpermute_b32 v40, v47, v40\nds_bpermute_b32 v41, v47, v41")
        self.frag_norm()
        self.stamp(5, 2)
        self.item_compute()
        self.lds_inc(C_ICNT, ret=True)
        self("s_mov_b32 s60, s10\nL_noitem:")
        self.stamp(1)
        self.stamp(6, 2)
        self.spin_lds(C_NONCE, 1, sleep=0)
        self("s_mov_b32 s92, s10")
        self.tags(236)
        self("s_cmp_lg_u32 s60, 3\ns_cbranch_scc1 L_nopub")
        for k in range(4):
            self(f"ds_read_b128 v[{8 + 4*k}:{11 + 4*k}], v229 offset:{L_ORED + 1024 * k}")
        self("""
            s_lshl_b32 s13, s61, 3
            s_add_u32 s13, s13, s73
            s_lshl_b32 s13, s13, 10
            s_waitcnt lgkmcnt(0)""")
        for e in range(4):
            self(f"v_add_f32 v{8 + e}, v{8 + e}, v{12 + e}\nv_add_f32 v{16 + e}, v{16 + e}, v{20 + e}")
        for e in range(4):
            self(f"v_add_f32 v{24 + e}, v{8 + e}, v{16 + e}")
        self.tag_data(24, 236)
        self(f"buffer_store_dwordx4 v[24:27], v229, s[44:47], s13 offen {o['qst']}\nL_nopub:")
        self.stamp(2)
        self.stamp(7, 2)
        self("""
            s_and_b32 s10, s95, 0x7fff
            s_flbit_i32_b32 s10, s10
            s_sub_u32 s11, 31, s10
            s_cmp_eq_u32 s72, 0
            s_cselect_b32 s11, 4, s11
            s_cmp_ge_u32 s72, 2
            s_cselect_b32 s11, 15, s11""")
        self.region_of("s11", "s68", "s69")
        self(f"""
            s_cmp_eq_u32 s72, 3
            s_cbranch_scc1 L_noq
            s_and_b32 s13, s68, 31
            s_lshl_b32 s13, s13, 5
            s_lshr_b32 s10, s68, 5
            s_add_u32 s13, s13, s10
            s_lshl_b32 s13, s13, 8
            v_lshlrev_b32 v47, 10, v4
            v_lshl_add_u32 v47, v3, 4, v47
            s_lshl_b32 s10, s72, 8
            v_add_u32 v46, s10, v233
            v_lshlrev_b32 v45, 8, v4
            v_sub_u32 v46, v46, v45""")
        self.spin_lds(C_MARK, 1, sleep=2)
        self("s_mov_b32 exec_hi, 0xffff")
        self.gather_tile("v47", "v46", o["qsleep"], False, L_Q)
        self.lds_inc(C_QRDY)
        self("L_noq:")
        if o["hprio"]:
            self("s_setprio 0")
        self.stamp(4)
        self.stamp(9, 2)
        self.tile_setup()
        self(f"""
            s_mov_b32 s96, -1
            s_mov_b32 s98, 0
            s_mov_b32 s100, -1
            s_mov_b32 s101, {((o["bias"] * 32) - o["gapr"] * 20) & 0xffffffff}
            s_cmp_eq_u32 s76, 0
            s_cselect_b32 s101, {((o["bias"] * 32) + o["gapr"] * 12) & 0xffffffff}, s101
            s_sub_u32 s99, s2, {8 * o["smp0"]}
            s_cmp_lt_u32 s99, 16
            s_cselect_b32 s99, s99, 64""")
        self.control(0)
        self.spin_lds(C_T, 1, sleep=16)
        self(f"""
            s_cmp_ge_u32 s56, 40
            s_cbranch_scc1 L_noffn
            s_lshl_b32 s75, s56, 2
            s_add_u32 s75, s75, s72
            s_lshl_b32 s75, s75, 9
            s_add_u32 s75, s75, {YP + 32 * 10240}
            s_add_u32 s13, s57, 32
            s_lshl_b32 s13, s13, 3
            s_add_u32 s13, s13, s72
            s_lshl_b32 s13, s13, 10
            s_cmp_eq_u32 s72, 3
            s_cbranch_scc1 L_fsync""")
        self.gather_tile("v229", "v233", 16, True, L_OBUF)
        self("L_fsync:\ns_waitcnt vmcnt(0)")
        self.lds_inc(C_HS)
        self.spin_lds(C_HS, 4, sleep=4)
        self.fragments()
        self("s_waitcnt lgkmcnt(0)")
        self.project(False)
        self(f"""
            L_noffn:
            s_cmp_lg_u32 s76, 0
            s_cbranch_scc1 L_noproj
            s_lshl_b32 s10, s39, 2
            s_add_u32 s10, s10, s72
            s_lshl_b32 s10, s10, 9
            s_mul_i32 s75, s77, 10240
            s_add_u32 s75, s75, s10
            s_add_u32 s75, s75, {YP}
            s_and_b32 s13, s2, 7
            s_lshl_b32 s13, s13, 7
            s_add_u32 s13, s13, {VR}
            v_lshlrev_b32 v9, 10, v2
            s_mov_b32 exec_hi, 0
            buffer_load_dwordx2 v[10:11], v9, s[44:47], s13 offen sc1
            s_waitcnt vmcnt(0)
            v_lshrrev_b32 v11, 1, v11
            v_xor_b32 v10, s92, v10
            v_bitop3_b32 v10, v10, v11, s7 bitop3:0xf6
            v_cmp_ne_u32 vcc, 0, v10
            s_mov_b32 exec_hi, -1
            s_cmp_eq_u64 vcc, 0
            s_cselect_b32 s58, 1, 0""")
        self("L_noproj:")
        self.stamp(5)
        self.stamp(10, 2)
        self.spin_lds(C_VOTE, 1, sleep=4, wide=True)
        self(f"""
            s_mov_b32 s59, s11""")
        self.prep(0)
        self.stamp(6)
        self.prep(1)
        self.stamp(7)
        self("s_cmp_lg_u32 s72, 3\ns_cbranch_scc1 L_pubo")
        self.control(o["sit"], check=False)
        self.scale()
        self.control(27, check=False, guard=True)
        if o["pf"] == 2:
            self("""
                s_cmp_ge_u32 s2, 16
                s_cbranch_scc1 L_nopf2
                s_getpc_b64 s[14:15]
                L_pf2pc:
                s_sub_u32 s14, s14, L_pf2pc-L_vflush
                s_subb_u32 s15, s15, 0
                v_lshlrev_b32 v9, 7, v2
                v_min_u32 v10, L_helper-L_vflush, v9
                v_add_u32 v9, L_pf2pc-L_vflush, v9
                v_min_u32 v9, L_table-L_vflush, v9
                global_load_dword v254, v10, s[14:15]
                global_load_dword v254, v9, s[14:15]
                L_nopf2:""")
        self.control(o['clast'], check=False)
        self("s_cmp_lg_u32 s76, 0\ns_cbranch_scc1 L_end")

        def across(r):
            self.rows4_reduce(r)
            for ctl in ("row_ror:4", "row_ror:8"):
                self(f"s_nop 1\nv_add_f32_dpp v{r}, v{r}, v{r} {ctl} row_mask:0xf bank_mask:0xf")
            self.bf16_round(r)

        self(f"""
            v_lshrrev_b32 v52, 2, v2
            v_mul_u32_u24 v52, 10240, v52
            v_and_b32 v5, 3, v2
            v_lshl_add_u32 v52, v5, 4, v52
            v_mul_u32_u24 v53, 1280, v4
            v_lshl_add_u32 v53, v5, 1, v53
            s_lshl_b32 s62, s39, 5
            s_add_u32 s62, s62, s77
            s_lshl_b32 s16, s62, 6
            s_add_u32 s16, s16, {YP}
            s_add_u32 s17, s16, {16 * 10240}
            s_add_u32 s18, s16, {32 * 10240}
            s_lshl_b32 s62, s62, 3
            buffer_load_ushort v54, v53, s[48:51], s62 offen""")
        for e in range(4):
            self(f"v_mov_b32 v{40 + e}, 0")
        self("s_mov_b32 exec_hi, 0")
        self.poll([(40, "buffer_load_dwordx4 v[40:43], v52, s[44:47], s18 offen sc1")], 16)
        self("s_mov_b32 exec_hi, -1")
        across(40)
        self("v_lshlrev_b32 v46, 16, v54")
        YL = [(8 + 4*i, f"buffer_load_dwordx4 v[{8 + 4*i}:{11 + 4*i}], v52, s[44:47], s{16 + i} offen sc1") for i in range(2)]
        trig = {"iss": (C_ISS, 4), "o1": (C_OCNT + 8, 1), "o4": (C_OCNT + 8, 4), "w": (C_WRDY, 1), "t15": (C_T + 120, 1),
                "t29": (C_T + 116, 1)}
        self.spin_lds(*trig[o["trig"]], sleep=o["tsleep"])
        self("s_setprio 3")
        if o["ytouch"] == 1:
            self("\n".join(ins for _, ins in YL))
        self.tile_issue("s71", o["tdepth"])
        if o["ytouch"] == 2:
            self("\n".join(ins for _, ins in YL))
        self("s_waitcnt vmcnt(0)")
        self.lds_inc(C_WRDY)
        self.stamp(8)
        self("s_branch L_frag")
        self(f"""
            L_pubo:
            v_mov_b32 v52, 0
            v_mov_b32 v53, 0
            s_bcnt1_i32_b32 s10, s95
            s_add_u32 s10, s10, s72
            s_cmp_lt_u32 s10, 3
            s_cbranch_scc1 L_pubdone
            s_cmp_eq_u32 s72, 2
            s_cbranch_scc1 L_pubdone
            s_mul_i32 s10, s72, 6144
            v_add_u32 v40, s10, v229
            v_mov_b32 v42, v229
            s_lshl_b32 s10, s69, 3
            v_mov_b32 v45, s10""")
        self.partial_slot("s68", "s69", "s13")
        self.spin_lds(C_SC, 1, sleep=16, wide=True, addr="v45")
        self("s_mov_b32 s73, s11\nv_mov_b32 v44, v236\nv_mov_b32 v45, v237\nv_mov_b32 v46, v238\nv_mov_b32 v47, v239")
        self.spin_lds(C_OCNT, 4, sleep=8, addr="v231")
        self.spin_lds(C_T + 4 * o["pit"], 1, sleep=4)
        self("s_branch L_pub\nL_pubdone:")
        self.stamp(8)
        self(f"""
            s_cmp_lg_u32 s76, 0
            s_cbranch_scc1 L_end
            s_mov_b32 s63, 0
            s_lshl_b32 s16, s77, 13
            s_lshl_b32 s10, s72, 8
            s_add_u32 s16, s16, s10
            s_add_u32 s16, s16, {OP}
            s_add_u32 s17, s16, 0x40000
            s_add_u32 s18, s16, 0x80000
            s_add_u32 s19, s16, 0xc0000
            s_cmp_ge_u32 s77, 22
            s_cselect_b32 s20, -1, 0
            v_lshlrev_b32 v47, 10, v4
            v_lshl_add_u32 v47, v3, 4, v47
            v_lshrrev_b32 v48, 1, v4
            v_mul_u32_u24 v48, 0x40800, v48
            v_sub_u32 v48, 0x41000, v48
            v_add_u32 v48, v48, v47
            v_lshlrev_b32 v44, 3, v3
            v_lshl_add_u32 v44, v4, 1, v44
            s_lshl_b32 s10, s72, 7
            v_add_u32 v44, s10, v44
            v_mov_b32 v24, 0
            v_mov_b32 v25, 0
            v_mov_b32 v26, 0
            v_mov_b32 v27, 0""")
        self.spin_lds(*trig[o["gtrig"]], sleep=o["tsleep"])
        self("s_setprio 3")
        if not o["g4"]:
            self.gather_o((0, 1), o["osleep"])
            if o["g3trig"]:
                self.spin_lds(*trig[o["g3trig"]], sleep=1)

        def early_fragments():
            self(f"""
                s_cmp_lg_u32 s63, 0
                s_cbranch_scc1 L_nofrag
                ds_read_b32 v6, v1 offset:{C_WRDY}
                s_waitcnt lgkmcnt(0)
                v_readfirstlane_b32 s63, v6
                s_cmp_eq_u32 s63, 0
                s_cbranch_scc1 L_nofrag""")
            self.fragments()
            self("L_nofrag:")

        self.gather_o((0, 1, 2, 3) if o["g4"] else (2, 3), o["psleep"], hook=early_fragments)
        self.stamp(9)
        self("s_cmp_lg_u32 s63, 0\ns_cbranch_scc1 L_proj\nL_fragwait:")
        self.spin_lds(C_WRDY, 1, sleep=o["wsleep"])
        self("L_frag:")
        self.fragments()
        self("L_proj:")
        self.project(True)
        self.stamp(10)
        self("s_cmp_lg_u32 s72, 3\ns_cbranch_scc1 L_end")
        self.srd(52, 32, 5120)

        def result():
            for i in range(4):
                self(f"v_add_f32 v{8 + i}, v{8 + i}, v{12 + i}")
            across(8)
            self("v_add_f32 v8, v46, v8")
            self.bf16_round(8)
            self("v_add_f32 v8, v8, v40\nv_cvt_pk_bf16_f32 v8, v8, v8")

        self.poll(YL, o["psleep"], inner=result)
        self(f"""
            s_mov_b32 exec_lo, 0x000f000f
            s_mov_b32 exec_hi, 0x000f000f
            buffer_store_short v8, v53, s[52:55], s62 offen {o['outst']}""")
        self.stamp(9)

    def finish(self):
        self("L_end:")
        if self.o["stamps"]:
            self(f"""
                s_waitcnt vmcnt(0)
                s_memrealtime s[78:79]
                s_getreg_b32 s101, hwreg(HW_REG_XCC_ID)
                s_waitcnt lgkmcnt(0)
                s_mov_b32 s91, s78
                s_mov_b64 exec, 1
                s_lshl_b32 s10, s2, 3
                s_add_u32 s10, s10, s3
                s_lshl_b32 s10, s10, 6
                s_add_u32 s10, s10, {STAMPS}
                v_mov_b32 v5, s10""")
            for i in range(12):
                self(f"v_mov_b32 v{8 + i}, s{80 + i}")
            self("v_mov_b32 v20, s101\nv_mov_b32 v21, s59\nv_mov_b32 v22, s6\nv_mov_b32 v23, s76")
            for i in range(4):
                self(f"global_store_dwordx4 v5, v[{8 + 4*i}:{11 + 4*i}], s[36:37] offset:{16 * i}")
        if self.o["enc"]:
            wave, idx, mult = (int(x) for x in self.o["enc"].split("x"))
            if wave < 4:
                self("s_and_b32 s10, s2, 7\ns_cmp_lg_u32 s10, 3\ns_cbranch_scc1 L_exit")
            self(f"""
                s_cmp_lg_u32 s3, {wave}
                s_cbranch_scc1 L_exit
                s_sub_u32 s10, s{80 + idx}, s80
                s_mul_i32 s10, s10, {mult}
                s_min_u32 s10, s10, 40000
                s_add_u32 s10, s10, 20000
                L_encl:
                s_memrealtime s[78:79]
                s_waitcnt lgkmcnt(0)
                s_sub_u32 s11, s78, s80
                s_cmp_lt_u32 s11, s10
                s_cbranch_scc1 L_encl""")
        self("L_exit:\ns_endpgm")

    def build(self):
        head = open(f"cdna_kernels/{NAME}.s.ref").read().split("\n") if self.o["head"] else []
        out = [ln for ln in head if ln.startswith(";") and "@launch" not in ln][:14]
        out.append(f"; @launch grid=(256,1,1) block=(512,1,1) lds={LDS_BYTES}")
        out.append(DOC.strip("\n"))
        out += ['.amdgcn_target "amdgcn-amd-amdhsa--gfx950"', ".text", f".globl {NAME}_kernel", ".p2align 8",
                f".type {NAME}_kernel,@function", f"{NAME}_kernel:"]
        self.entry()
        self.streamer()
        self.helper()
        self.finish()
        out += self.L
        out += [".p2align 8", ".type L_table,@object", "L_table:"]
        T = row_table()
        for sig in range(2):
            for w in range(4):
                for g in range(8):
                    out.append("  .long " + ", ".join(str(T[sig][w][g][t] * 384) for t in range(8)))
        out.append(".size L_table, 2048")
        out += ['.section .rodata,"a"', ".p2align 6", f".amdhsa_kernel {NAME}_kernel",
                "  .amdhsa_next_free_vgpr 256", "  .amdhsa_next_free_sgpr 102", "  .amdhsa_accum_offset 256",
                "  .amdhsa_group_segment_fixed_size 0", "  .amdhsa_kernarg_size 88", "  .amdhsa_user_sgpr_count 2",
                "  .amdhsa_user_sgpr_kernarg_segment_ptr 1", "  .amdhsa_system_sgpr_workgroup_id_x 1",
                ".end_amdhsa_kernel"]
        return "\n".join(out) + "\n"


DOC = """
"""

DEFAULTS = dict(stamps=0, head=1, gap=40, numa="near", scst="sc1", scld="sc1", qst="sc1", asleep=8, qsleep=8,
                tsleep=1, psleep=0, fsleep=24, ntry=4, nsleep=2, enc="", series=0, ctl=2, gain=13000, gains=13000,
                cmax=15, bias=-50, tdepth=32, hsplit=0, ackfirst=0, oit=16, odelay=0, ost="sc1", old="sc1", agn=8, qdelay=0, sit=24, latepub=2, pdelay=0, osleep=4, cmaxs=12, pmin=1, ostart=1, tst="sc1", tld="sc1", outst="", pf=1, bar2=1, tat=1, wsleep=0, w0=3, trig="o1", gtrig="o4", tearly=0, tdepth0=40, vat=5, qat=11, mat=8, g4=0, g3trig="", rdelay=40, wadd=2, rot=0, tabe=2, tabsrc=0, ilv=0, warm=1, local=1, ytouch=2, gapr=55, early=0, edelay=0, esleep=8, pw=3, boost0=0, nominal=646, rlag=2, clast=29, nomn=3, cfirst=2, pest="avg", nsmp=16, stag=11, sst=1, skip="", hprio=1, hold=0, smp0=13, w2last=1, pit=30, tabw=1, scl="seg")

if __name__ == "__main__":
    opt = dict(DEFAULTS)
    for kv in sys.argv[2:]:
        k, v = kv.split("=")
        assert k in opt, k
        opt[k] = int(v) if isinstance(DEFAULTS[k], int) else v.replace("+", " ")
    open(sys.argv[1], "w").write(Gen(opt).build())
```

```python
import struct
import sys

NAME = "parallel_sum__mha_block_cached__dense_activation_silu__decode"
KV_BYTES = 4 * 32 * 8192 * 192 * 2
REGION = 3 << 20
WIN = 196608

QP, YP, FL, VR, ST, CT, SC, OP, WS_END = (
    0x0, 0x140000, 0x1E0000, 0x1B8000, 0x1C0000, 0x60000, 0x200000, 0x400000, 0x500000)
STAMPS = 0x1000000
L_S, L_P, L_ORED, L_OBUF, L_Q, L_C, L_SER, L_WT = 0x0, 0x2000, 0x4000, 0xA000, 0xA600, 0xAC00, 0xAE00, 0xB000
C_NONCE, C_WRDY, C_VOTE, C_KSEG, C_PRDY, C_MAXC, C_HS, C_F = (
    L_C + 0, L_C + 4, L_C + 8, L_C + 80, L_C + 20, L_C + 24, L_C + 28, L_C + 32)
C_CTL, C_QRDY, C_ICNT, C_OCNT, C_MARK, C_T = L_C + 40, L_C + 48, L_C + 52, L_C + 64, L_C + 112, L_C + 256
C_WL, C_FCNT, C_SCNT, C_ISS, C_SC, L_STAT = L_C + 128, L_C + 56, L_C + 60, L_C + 120, L_C + 192, L_C + 384
TROW = 1088
LDS_BYTES = 0xB000 + 48 * TROW
NEG = "0xff7f0000"


def f32(x):
    return "0x%08x" % struct.unpack("<I", struct.pack("<f", x))[0]


def NT(o, c):
    return "nt" if c in o["nt"] else ""


def block_rows(b):
    t, r = divmod(b, 3)
    lo, hi = ((0, 21), (21, 43), (43, 64))[r]
    return list(range(64 * t + lo, 64 * t + hi))


def row_table():
    T = []
    for sig in range(2):
        lo = sum((block_rows(sig + o) for o in (0, 8, 16, 10, 18, 2)), [])
        up = sum((block_rows(sig + o + 4) for o in (0, 8, 16, 10, 18, 2)), [])
        T.append([[[(lo if g < 4 else up)[4 * (16 * (w >> 1) + 2 * t + (w & 1)) + (g & 3)] for t in range(8)]
                   for g in range(8)] for w in range(4)])
    assert sorted(r for s in T for w in s for g in w for r in g) == list(range(512))
    return T


class Gen:
    def __init__(self, opt):
        self.o = opt
        self.L = []
        self.nlab = 0
        self.in_helper = False

    def __call__(self, text):
        for line in text.strip("\n").split("\n"):
            line = line.strip()
            if line:
                self.L.append(line if line.endswith(":") else "  " + line)

    def note(self, text):
        for line in text.strip("\n").split("\n"):
            self.L.append("  ; " + line.strip())

    def jitter(self, kind, salt):
        if kind not in self.o["jit"]:
            return
        lp, dn = self.lab("jl"), self.lab("jd")
        who = "s_mov_b32 s78, s2" if kind == "e" else "s_lshl_b32 s78, s2, 3\ns_add_u32 s78, s78, s3"
        self(f"""
            {who}
            s_add_u32 s78, s78, {salt * 7919 * (self.o["jseed"] + 1) if kind != "e" or self.o["jseed"] else 0}
            s_mul_i32 s78, s78, 0x9e3779b1
            s_lshr_b32 s79, s78, 29
            s_cmp_lg_u32 s79, 0
            s_cbranch_scc1 {dn}
            s_bfe_u32 s78, s78, 0x40018
            {lp}:
            s_sleep 127
            s_sub_u32 s78, s78, 1
            s_cbranch_scc0 {lp}
            {dn}:""")

    def lab(self, base):
        self.nlab += 1
        return f"L_{base}{self.nlab}"

    def stamp(self, idx, mode=1):
        if self.o["stamps"] == mode or (self.o["stamps"] and not self.in_helper):
            self(f"s_memrealtime s[78:79]\ns_waitcnt lgkmcnt(0)\ns_mov_b32 s{80 + idx}, s78")

    def spin_lds(self, off, target, sleep=1, wide=False, addr="v1"):
        lp, dn = self.lab("sp"), self.lab("sd")
        self("s_mov_b32 s12, 0x100000")
        self(f"{lp}:")
        if wide:
            self(f"ds_read_b64 v[6:7], {addr} offset:{off}")
        else:
            self(f"ds_read_b32 v6, {addr} offset:{off}")
        self("s_waitcnt lgkmcnt(0)\nv_readfirstlane_b32 s10, v6")
        if wide:
            self("v_readfirstlane_b32 s11, v7")
        self(f"""
            s_cmp_ge_u32 s10, {target}
            s_cbranch_scc1 {dn}
            s_sleep {sleep}
            s_sub_u32 s12, s12, 1
            s_cbranch_scc0 {lp}
            s_branch L_end
            {dn}:""")

    def lds_inc(self, off, ret=False, addr="v1"):
        self("s_mov_b64 exec, 1\nv_mov_b32 v5, 1")
        if ret:
            self(f"ds_add_rtn_u32 v6, {addr}, v5 offset:{off}\ns_waitcnt lgkmcnt(0)\nv_readfirstlane_b32 s10, v6")
        else:
            self(f"ds_add_u32 {addr}, v5 offset:{off}")
        self("s_mov_b64 exec, -1")

    def tags(self, t):
        self(f"""
            s_mul_i32 s10, s92, 0x9e3779b1
            s_mul_hi_u32 s11, s92, 0x85ebca6b
            s_mul_i32 s12, s92, 0xc2b2ae35
            s_xor_b32 s11, s11, s12
            v_mov_b32 v{t}, s10
            v_mov_b32 v{t+1}, s11
            v_and_b32 v{t+2}, 1, v0
            v_cndmask_b32 v{t}, v{t}, v{t+1}, s[64:65]
            v_lshlrev_b32 v{t+2}, 4, v{t+2}
            v_lshrrev_b32 v{t}, v{t+2}, v{t}
            v_lshrrev_b32 v{t+1}, 4, v{t}
            v_lshrrev_b32 v{t+2}, 8, v{t}
            v_lshrrev_b32 v{t+3}, 12, v{t}""")

    def tag_data(self, r, t):
        for e in range(4):
            self(f"v_bfi_b32 v{r + e}, 15, v{t + e}, v{r + e}")

    def poll(self, loads, sleep, t=236, half={}, hook=None, inner=None):
        lp, dn = self.lab("pl"), self.lab("pd")
        n = len(loads)
        self("s_mov_b32 s12, 0x40000")
        self(f"{lp}:")
        for i, (r, ins) in enumerate(loads):
            if i in half:
                self(f"s_mov_b32 exec_hi, {half[i]}\n{ins}\ns_mov_b32 exec_hi, -1")
            else:
                self(ins)
        if hook:
            hook()
        for i, (r, ins) in enumerate(loads):
            self(f"s_waitcnt vmcnt({n - 1 - i})")
            if i in half:
                self(f"s_mov_b32 exec_hi, {half[i]}")
            for e in range(4):
                if i == 0 and e == 0:
                    self(f"v_xor_b32 v5, v{r}, v{t}")
                else:
                    self(f"v_bitop3_b32 v5, v5, v{r + e}, v{t + e} bitop3:0xf6")
            for e in range(4):
                self(f"v_and_b32 v{r + e}, -16, v{r + e}")
            if i in half:
                self("s_mov_b32 exec_hi, -1")
        self("v_and_b32 v5, 15, v5\nv_cmp_ne_u32 vcc, 0, v5")
        if inner:
            inner()
        self(f"""
            s_cmp_eq_u64 vcc, 0
            s_cbranch_scc1 {dn}""")
        if sleep:
            self(f"s_sleep {sleep}")
        self(f"""
            s_sub_u32 s12, s12, 1
            s_cbranch_scc0 {lp}
            s_branch L_end
            {dn}:""")

    def rows4_reduce(self, *rs, extra=None):
        first = list(rs) + ([extra] if extra else [])
        self("s_nop 1")
        for r in first:
            self(f"v_permlane16_swap_b32 v{r}, v{r+1}\nv_permlane16_swap_b32 v{r+2}, v{r+3}")
        self("s_nop 0")
        for r in first:
            self(f"v_add_f32 v{r}, v{r}, v{r+1}\nv_add_f32 v{r+2}, v{r+2}, v{r+3}")
        if extra:
            self(f"""
                s_mov_b32 exec_hi, 0
                v_add_f32 v{rs[-1]}, v{rs[-1]}, v{extra}
                v_add_f32 v{rs[-1] + 2}, v{rs[-1] + 2}, v{extra + 2}
                s_mov_b32 exec_lo, 0
                s_mov_b32 exec_hi, -1
                v_add_f32 v{rs[-2]}, v{rs[-2]}, v{extra}
                v_add_f32 v{rs[-2] + 2}, v{rs[-2] + 2}, v{extra + 2}
                s_mov_b32 exec_lo, -1""")
        self("s_nop 1")
        for r in rs:
            self(f"v_permlane32_swap_b32 v{r}, v{r+2}")
        self("s_nop 0")
        for r in rs:
            self(f"v_add_f32 v{r}, v{r}, v{r+2}")

    def row16_allreduce(self, op, r):
        for ctl in ("quad_perm:[1,0,3,2]", "quad_perm:[2,3,0,1]", "row_half_mirror", "row_mirror"):
            self(f"s_nop 1\n{op}_dpp v{r}, v{r}, v{r} {ctl} row_mask:0xf bank_mask:0xf")

    def half_allreduce(self, op, r, t):
        self.row16_allreduce(op, r)
        for sw in ("v_permlane16_swap_b32",):
            self(f"v_mov_b32 v{t}, v{r}\ns_nop 1\n{sw} v{r}, v{t}\ns_nop 1\n{op} v{r}, v{r}, v{t}")

    def bf16_round(self, r):
        self(f"v_cvt_pk_bf16_f32 v{r}, v{r}, v{r}\nv_lshlrev_b32 v{r}, 16, v{r}")

    def srd(self, d, p, size):
        self(f"s_mov_b32 s{d}, s{p}\ns_and_b32 s{d+1}, s{p+1}, 0xffff\ns_mov_b32 s{d+2}, {size}\ns_mov_b32 s{d+3}, 0x20000")

    def entry(self):
        o = self.o
        PF = ""
        if o["pf"]:
            PF = f"""
                s_cmp_ge_u32 s2, 16
                s_cbranch_scc1 L_nopf
                s_getpc_b64 s[14:15]
                L_pfpc:
                v_lshlrev_b32 v3, 6, v0
                v_min_u32 v3, L_table+2044-L_pfpc, v3
                global_load_dword v254, v3, s[14:15]
                L_nopf:"""
        self(f"""
            s_cmp_ge_u32 s2, 256
            s_cbranch_scc1 L_exit
            s_load_dwordx16 s[16:31], s[0:1], 0
            {PF}
            s_load_dwordx4 s[32:35], s[0:1], 64
            s_load_dwordx2 s[36:37], s[0:1], 80
            s_memrealtime s[94:95]
            v_lshrrev_b32 v2, 6, v0
            v_mov_b32 v1, 0
            v_readfirstlane_b32 s3, v2
            v_and_b32 v2, 63, v0
            v_and_b32 v5, 0x7f, v0
            v_lshlrev_b32 v5, 2, v5
            ds_write_b32 v5, v1 offset:{L_C}
            s_getreg_b32 s7, hwreg(HW_REG_XCC_ID, 0, 4)
            s_bfe_u32 s9, s7, 0x10002
            s_bfe_u32 s4, s2, 0x10002
            s_bfe_u32 s5, s2, 0x20003
            s_and_b32 s11, s2, 3
            s_lshr_b32 s10, s2, 5
            s_lshl_b32 s6, s11, 3
            s_add_u32 s6, s6, s10
            s_lshl_b32 s8, s5, 1
            s_add_u32 s8, s8, s4""")
        self("""
            s_lshl_b32 s38, s10, 2
            s_add_u32 s38, s38, s11
            s_sub_u32 s11, s8, 5
            s_lshl_b32 s11, s11, 5
            s_add_u32 s38, s38, s11""")
        if o["stamps"]:
            for i in range(1, 12):
                self(f"s_mov_b32 s{80 + i}, 0")
        self.jitter("e", 1)
        self("s_cmp_ge_u32 s3, 4\ns_cbranch_scc1 L_helper")

    def masks(self):
        self("""
            s_mov_b32 s64, 0xcccccccc
            s_mov_b32 s65, 0xcccccccc
            s_mov_b32 s66, 0xaaaaaaaa
            s_mov_b32 s67, 0xaaaaaaaa""")

    def roles(self):
        self("""
            s_and_b32 s10, s2, 7
            s_lshr_b32 s77, s2, 3
            s_sub_u32 s39, s10, s4
            s_lshr_b32 s76, 0x190, s10
            s_and_b32 s76, s76, 2""")

    def args_ready(self):
        self("s_waitcnt lgkmcnt(0)")
        if self.o["stamps"]:
            self("s_mov_b32 s80, s94")

    def plan(self):
        self("""
            s_lshr_b32 s27, s2, 3
            s_add_u32 s0, s2, s27
            s_and_b32 s0, s0, 3
            s_lshl_b32 s27, s27, 2
            s_add_u32 s27, s27, s0
            s_mul_i32 s1, s27, 171
            s_lshr_b32 s1, s1, 9
            s_mul_i32 s94, s1, 3
            s_sub_u32 s94, s27, s94
            s_lshl_b32 s95, s94, 3
            s_or_b32 s95, s95, 0x80000
            s_bfe_u32 s0, 0x150b00, s95
            s_lshl_b32 s26, s1, 5
            s_add_u32 s0, s0, s26
            s_bfe_u32 s95, 0x0b0600, s95
            s_lshl_b32 s1, s1, 4
            s_add_u32 s1, s1, s95
            s_add_u32 s1, s1, 1365
            s_movk_i32 s95, 0x400
            s_cmp_eq_u32 s94, 1
            s_cselect_b32 s26, 10, 11
            s_cselect_b32 s95, 0x210, s95
            s_cmp_eq_u32 s27, 126
            s_cselect_b32 s1, 1360, s1
            s_cmp_eq_u32 s27, 127
            s_cselect_b32 s1, s0, s1
            s_cselect_b32 s26, 5, s26
            s_cselect_b32 s95, 16, s95
            s_bitset1_b32 s95, 15""")

    def region_of(self, win, region, row):
        self(f"""
            s_cmp_lt_u32 {win}, s26
            s_cselect_b32 {region}, s0, s1
            s_add_u32 {region}, {region}, {win}
            s_lshr_b32 {region}, {region}, 4
            s_and_b32 {row}, {region}, 1
            s_cmp_ge_u32 {region}, 86
            s_cselect_b32 {row}, 2, {row}""")

    def partial_slot(self, region, row, dst):
        self(f"""
            s_cmp_lg_u32 s94, 1
            s_cselect_b32 s10, 1, 0
            s_cmp_eq_u32 {row}, 1
            s_cselect_b32 s10, s10, s94
            s_lshl_b32 {dst}, {region}, 2
            s_add_u32 {dst}, {dst}, s10
            s_lshl_b32 {dst}, {dst}, 1
            s_add_u32 {dst}, {dst}, s4
            s_lshl_b32 {dst}, {dst}, 10
            s_add_u32 {dst}, {dst}, {OP}""")

    def lane_window(self, i, dst):
        self(f"""
            v_cmp_gt_u32 vcc, s26, v{i}
            v_add_u32 v{dst}, s1, v{i}
            v_add_u32 v7, s0, v{i}
            v_cndmask_b32 v{dst}, v{dst}, v7, vcc""")

    def vote_load(self):
        self(f"""
            s_mul_i32 s10, s0, 6
            s_add_u32 s10, s10, 33
            s_lshr_b32 s10, s10, 10
            s_mul_i32 s11, s1, 6
            s_add_u32 s11, s11, 81
            s_lshr_b32 s11, s11, 10
            s_sub_u32 s11, s11, s10
            v_bfe_u32 v9, v0, 4, 1
            v_mul_u32_u24 v9, s11, v9
            v_bfe_u32 v10, v0, 5, 1
            v_mad_u32_u24 v9, v10, 12, v9
            v_add_u32 v9, s10, v9
            v_and_b32 v10, 15, v0
            v_mad_u32_u24 v9, v9, 10, v10
            v_cmp_lt_u32 vcc, 8, v10
            s_andn2_b32 s11, s2, 4
            v_add_u32 v9, 16, v9
            v_mov_b32 v10, s11
            v_cndmask_b32 v9, v9, v10, vcc
            v_lshlrev_b32 v9, {self.o["vsh"]}, v9
            s_mov_b32 s15, {VR}
            buffer_load_dwordx2 v[12:13], v9, s[44:47], s15 offen sc1 {NT(self.o, 'R')}""")

    def vote_eval(self):
        o = self.o
        self.spin_lds(C_NONCE, 1, sleep=0)
        self(f"""
            s_mov_b32 s92, s10
            s_mov_b32 s12, 0x40000
            L_vchk:
            v_cmp_ne_u32 vcc, s92, v12
            s_cmp_eq_u64 vcc, 0
            s_cbranch_scc1 L_vok
            s_sleep {o["asleep"]}
            buffer_load_dwordx2 v[12:13], v9, s[44:47], s15 offen sc1 {NT(self.o, 'R')}
            s_waitcnt vmcnt(0)
            s_sub_u32 s12, s12, 1
            s_cbranch_scc0 L_vchk
            s_branch L_end
            L_vok:
            v_readlane_b32 s11, v13, 15
            v_and_b32 v9, 15, v0""")
        self.lane_window(9, 10)
        self("""
            v_cndmask_b32 v11, 16, 0, vcc
            v_and_b32 v8, 1, v13
            v_cmp_eq_u32 vcc, 1, v8
            v_and_b32 v9, 16, v0
            v_lshl_add_u32 v11, v9, 1, v11
            v_mad_u32_u24 v10, v10, 6, 3
            v_lshrrev_b32 v10, 6, v10
            s_lshr_b32 s11, s11, 3
            s_xor_b32 s11, s11, s4
            v_lshrrev_b64 v[8:9], v11, vcc
            v_and_b32 v8, 0x1ff, v8
            v_bcnt_u32_b32 v8, v8, 3
            v_lshrrev_b32 v8, 3, v8
            v_xor_b32 v8, v8, v10
            v_xor_b32 v8, s11, v8
            v_and_b32 v8, 1, v8
            v_cmp_eq_u32 vcc, 1, v8
            s_mov_b32 s59, vcc_lo""")
        if o["numa"] == "far":
            self("s_not_b32 s59, s59")
        elif o["numa"] == "mix":
            self("s_xor_b32 s10, s4, s6\ns_bitcmp1_b32 s10, 0\ns_cselect_b32 s59, -1, 0\ns_xor_b32 s59, s59, 0x33335555")
        self(f"""
            v_mov_b32 v6, 1
            v_mov_b32 v7, s59
            ds_write_b64 v1, v[6:7] offset:{C_VOTE}""")

    def series(self):
        if self.o["series"]:
            self(f"""
                s_memrealtime s[78:79]
                s_lshl_b32 s10, s3, 5
                s_add_u32 s10, s10, s58
                s_lshl_b32 s10, s10, 2
                v_mov_b32 v6, s10
                s_waitcnt lgkmcnt(0)
                v_mov_b32 v7, s78
                ds_write_b32 v6, v7 offset:{L_SER}""")

    def advance_window(self, may_switch):
        self.series()
        self(f"""
            s_add_u32 s58, s58, 1
            s_and_b32 s10, s58, 15
            s_cmp_lt_u32 s10, s26
            s_cselect_b32 s57, s0, s1
            s_add_u32 s57, s57, s10
            s_mul_i32 s57, s57, {WIN}""")
        if may_switch:
            self("s_cmp_eq_u32 s58, 16\ns_cselect_b32 s40, s20, s40\ns_cselect_b32 s41, s63, s41")
        self("s_bitcmp1_b32 s59, s58\ns_cselect_b64 s[60:61], -1, 0")

    def issue(self, t, slot, wait):
        vo = 2 + (slot & 1)
        self(f"v_cndmask_b32 v{vo}, v{48 + t}, v{56 + t}, s[60:61]")
        if wait == "ctl":
            go = self.lab("go")
            self(f"""
                s_waitcnt vmcnt({6 + self.o["wadd"]})
                s_add_u32 s70, s70, s68
                s_cbranch_scc1 {go}
                s_waitcnt vmcnt({3 + self.o["wadd"]})
                s_add_u32 s71, s71, s69
                s_cbranch_scc0 {go}
                s_waitcnt vmcnt({self.o["wadd"]})
                {go}:""")
        elif wait is not None:
            self(f"s_waitcnt vmcnt({wait})")
        for j in range(3):
            r = 64 + slot * 12 + j * 4
            self(f"buffer_load_dwordx4 v[{r}:{r+3}], v{vo}, s[40:43], s57 offen offset:{128 * j} nt")

    def consume_k(self, slot):
        t = slot & 7
        r = 64 + slot * 12
        for i in range(1 if "k" in self.o["skip"] else 12):
            c = "0" if i == 0 else f"v{20 + t}"
            self(f"v_dot2_f32_bf16 v{20 + t}, v{r + i}, v{8 + i}, {c}")
        if t == 7:
            self("s_nop 2")
            for k in range(4):
                self(f"v_add_f32_dpp v{20 + k}, v{20 + k}, v{20 + k} row_shl:4 row_mask:0xf bank_mask:0x5")
            for k in range(4):
                self(f"v_add_f32_dpp v{20 + k}, v{24 + k}, v{24 + k} row_shr:4 row_mask:0xf bank_mask:0xa")
            for k in range(4):
                self(f"v_add_f32_dpp v{24 + k}, v{20 + k}, v{20 + k} quad_perm:[2,3,0,1] row_mask:0xf bank_mask:0xf")
            self("""
                v_cndmask_b32 v20, v24, v26, s[64:65]
                v_cndmask_b32 v21, v25, v27, s[64:65]
                s_nop 0
                v_add_f32_dpp v24, v20, v20 quad_perm:[1,0,3,2] row_mask:0xf bank_mask:0xf
                v_add_f32_dpp v25, v21, v21 quad_perm:[1,0,3,2] row_mask:0xf bank_mask:0xf
                v_cndmask_b32 v28, v24, v25, s[66:67]""")
            self.bf16_round(28)
            self(f"""
                v_mul_f32 v28, {f32(192 ** -0.5)}, v28
                v_cvt_pk_bf16_f32 v28, v28, v28
                ds_write_b16 v4, v28 offset:{L_S + (slot >> 3) * 512}""")

    def consume_v(self, slot):
        t = slot & 7
        r = 64 + slot * 12
        a = 20 + (slot & 1) * 4
        if t == 0:
            self("s_waitcnt lgkmcnt(0)")
        for w in range(4):
            self(f"v_perm_b32 v{a + w}, v{28 + (t >> 1)}, v{28 + (t >> 1)}, v{32 + (t & 1) * 4 + w}")
        self("s_nop 1")
        for j in range(3):
            self(f"v_mfma_f32_16x16x32_bf16 v[{8 + 4*j}:{11 + 4*j}], v[{a}:{a+3}], v[{r + 4*j}:{r + 4*j + 3}], v[{8 + 4*j}:{11 + 4*j}]")

    def flush_acc(self):
        self(f"""
            s_mov_b32 exec_lo, 0x00ff00ff
            s_mov_b32 exec_hi, 0xff00ff00
            s_nop 5
            ds_write_b128 v41, v[8:11] offset:{L_ORED}
            ds_write_b128 v41, v[12:15] offset:{L_ORED + 256}
            ds_write_b128 v41, v[16:19] offset:{L_ORED + 512}""")

    def publish_o(self):
        r = 64
        self("L_pub:\ns_mov_b32 exec_hi, 0xffff")
        for k in range(8):
            self(f"ds_read_b128 v[{r + 4*k}:{r + 3 + 4*k}], v40 offset:{L_ORED + 768 * k}")
        for k in range(4):
            self(f"s_waitcnt lgkmcnt({6 - 2*k})")
            for e in range(4):
                self(f"v_add_f32 v{r + 8*k + e}, v{r + 8*k + e}, v{r + 4 + 8*k + e}")
        for e in range(4):
            self(f"v_add_f32 v{r + e}, v{r + e}, v{r + 8 + e}\nv_add_f32 v{r + 16 + e}, v{r + 16 + e}, v{r + 24 + e}")
        for e in range(4):
            self(f"v_add_f32 v{r + e}, v{r + e}, v{r + 16 + e}")
        for e in range(4):
            self(f"v_mul_f32 v{r + e}, s73, v{r + e}")
        self.tag_data(r, 44)
        self(f"""
            buffer_store_dwordx4 v[{r}:{r+3}], v42, s[44:47], s13 offen {self.o["tst"]}
            s_mov_b64 exec, -1
            s_cmp_ge_u32 s3, 4
            s_cbranch_scc1 L_pubdone""")

    def streamer(self):
        o = self.o
        W = "ctl" if o["ctl"] else 3
        TAB = "\n".join(f"global_load_dwordx4 v[{48 + 4*i}:{51 + 4*i}], v8, s[14:15] offset:{(i >> 1) * 1024 + (i & 1) * 16}"
                        for i in range(4))
        self(f"""
            s_getpc_b64 s[14:15]
            L_pc:
            s_add_u32 s14, s14, L_table-L_pc
            s_addc_u32 s15, s15, 0
            v_lshrrev_b32 v8, 3, v0
            v_lshlrev_b32 v8, 5, v8
            s_max_u32 s12, s2, 16
            s_sub_u32 s12, s12, 16
            s_mul_i32 s12, s12, 205
            s_lshr_b32 s12, s12, 11
            s_cmp_ge_u32 s12, 12
            s_cselect_b32 s13, 12, 0
            s_sub_u32 s10, s12, s13
            s_lshl_b32 s10, s10, 3
            s_and_b32 s11, s2, 7
            s_add_u32 s10, s10, s11
            s_lshl_b32 s10, s10, 22
            s_and_b32 s11, s2, 63
            s_lshl_b32 s11, s11, 7
            s_add_u32 s10, s10, s11
            s_add_u32 s10, s10, 0x80000
            s_add_u32 s11, s10, 0x2000
            s_mov_b32 s54, {KV_BYTES}
            s_mov_b32 s55, 0x20000
            s_setprio {3 if o["hprio"] else 2}""")
        if o["tabw"] != 2:
            self(TAB)
        self.args_ready()
        if o["tabw"] == 2:
            self(TAB)
        self("""
            s_cmp_eq_u32 s13, 0
            s_cselect_b32 s52, s18, s20
            s_cselect_b32 s53, s19, s21
            s_and_b32 s53, s53, 0xffff""")
        self.plan()
        if o["tabw"]:
            self("s_waitcnt vmcnt(0)")
        self("""
            s_barrier
            s_cmp_lg_u32 s3, 0
            s_cbranch_scc1 L_noprobe
            s_mov_b64 exec, 1
            buffer_load_dword v6, v1, s[52:55], s10 offen nt
            buffer_load_dword v7, v1, s[52:55], s11 offen nt
            s_mov_b64 exec, -1
            L_noprobe:
            s_barrier""")
        self.srd(44, 36, WS_END)
        self(f"""
            s_cmp_lg_u32 s3, 0
            s_cbranch_scc1 L_pre
            s_waitcnt vmcnt(1)
            s_memtime s[10:11]
            s_waitcnt vmcnt(0)
            s_memtime s[12:13]
            s_waitcnt lgkmcnt(0)
            s_sub_u32 s10, s12, s10
            s_cmp_le_u32 s10, {o["gap"]}
            s_cselect_b32 s62, 1, 0
            s_xor_b32 s62, s62, s9""")
        self.jitter("s", 2)
        for k in range(4):
            self(f"""
                s_load_dword s92, s[34:35], {64 * k}
                s_waitcnt lgkmcnt(0)
                s_cmp_lg_u32 s92, 0
                s_cbranch_scc1 L_ndone
                s_sleep {o["nsleep"]}""")
        self(f"""
            s_mov_b32 s12, 0x40000
            L_npoll:
            global_load_dword v6, v1, s[34:35] sc1
            s_waitcnt vmcnt(0)
            v_readfirstlane_b32 s92, v6
            s_cmp_lg_u32 s92, 0
            s_cbranch_scc1 L_ndone
            s_sleep 4
            s_sub_u32 s12, s12, 1
            s_cbranch_scc0 L_npoll
            s_branch L_end
            L_ndone:
            s_lshl_b32 s11, s7, 1
            s_or_b32 s10, s62, s11
            s_lshl_b32 s11, s2, {o["vsh"]}
            s_add_u32 s11, s11, {VR}
            v_mov_b32 v6, s92
            v_mov_b32 v7, s10
            v_lshlrev_b32 v5, 3, v2
            s_mov_b64 exec, {(1 << (1 << (o["vsh"] - 3))) - 1}
            buffer_store_dwordx2 v[6:7], v5, s[44:47], s11 offen sc1 {NT(o, 'r')}
            s_mov_b64 exec, 0xff
            v_mov_b32 v8, {NEG}
            v_mov_b32 v9, s92
            v_mov_b32 v10, 0
            v_mov_b32 v11, s92
            v_lshlrev_b32 v12, 4, v2
            ds_write_b128 v12, v[8:11] offset:{L_STAT}
            ds_write_b32 v1, v6 offset:{C_NONCE}
            s_mov_b64 exec, -1""")
        self.stamp(1)
        self("""
            s_branch L_tabok
            L_pre:
            s_waitcnt vmcnt(0)
            L_tabok:
            s_setprio 1
            v_mov_b32 v9, 0
            v_and_b32 v40, 7, v0
            v_lshlrev_b32 v40, 4, v40""")
        for i in range(16):
            self(f"v_add_u32 v{48 + i}, v{48 + i}, v40")
        self.srd(40, 18, KV_BYTES)
        self(f"""
            s_and_b32 s63, s21, 0xffff
            v_lshlrev_b32 v4, 1, v0
            s_mul_i32 s57, s0, {WIN}
            s_mov_b32 s58, 0
            s_mov_b32 s68, 0
            s_mov_b32 s69, 0
            s_lshl_b32 s70, s3, 30
            s_lshl_b32 s71, s3, 30
            s_mov_b32 s72, -4
            s_mov_b32 s93, 1""")
        self("s_lshr_b32 s10, s3, 1\ns_cmp_lg_u32 s10, s4\ns_cselect_b64 s[60:61], -1, 0")

        def selectors(par):
            lo_sel, hi_sel = ((0x0c0c0100, 0x01000c0c), (0x0c0c0302, 0x03020c0c))[par]
            self(f"v_and_b32 v5, 7, v0\nv_mov_b32 v28, 0x0c0c0c0c\nv_mov_b32 v29, 0x{lo_sel:08x}\nv_mov_b32 v30, 0x{hi_sel:08x}")
            for w in range(4):
                r = 32 + par * 4 + w
                self(f"""
                    v_cmp_eq_u32 vcc, {2*w}, v5
                    v_cmp_eq_u32 s[10:11], {2*w + 1}, v5
                    s_nop 0
                    v_cndmask_b32 v{r}, v28, v29, vcc
                    v_cndmask_b32 v{r}, v{r}, v30, s[10:11]""")

        def addresses():
            self(f"""
                v_lshlrev_b32 v41, 1, v40
                v_bfe_u32 v6, v0, 4, 1
                v_lshl_add_u32 v41, v6, 4, v41
                v_lshrrev_b32 v6, 5, v0
                v_mul_u32_u24 v6, 768, v6
                v_add_u32 v41, v41, v6
                v_and_b32 v42, 63, v0
                v_lshlrev_b32 v42, 4, v42
                s_bcnt1_i32_b32 s10, s95
                s_sub_u32 s10, 3, s10
                s_mul_i32 s11, s10, 6144
                v_add_u32 v41, s11, v41
                s_mul_i32 s11, s10, 384
                v_add_u32 v40, s11, v40
                s_lshl_b32 s11, s10, 2
                v_mov_b32 v43, s11""")

        def last_unit():
            self.region_of("15", "s11", "s50")
            self.partial_slot("s11", "s50", "s13")
            self("s_lshl_b32 s50, s50, 3")

        def nonce_tags():
            self(f"ds_read_b32 v6, v1 offset:{C_NONCE}\ns_waitcnt lgkmcnt(0)\nv_readfirstlane_b32 s92, v6")
            self.tags(44)

        def only(wave, code):
            sk = self.lab("on")
            self(f"s_cmp_lg_u32 s3, {wave}\ns_cbranch_scc1 {sk}")
            code()
            self(f"{sk}:")

        if o["hold"]:
            self(f"s_sub_u32 s10, s38, 48\ns_cmp_ge_u32 s10, 24\ns_cbranch_scc1 L_nohold")
            self.spin_lds(C_ICNT, o["hold"], sleep=1)
            self("L_nohold:")
        self.jitter("s", 3)
        idle = [self.masks, lambda: selectors(0), lambda: selectors(1), addresses, last_unit, nonce_tags]
        assert o["vat"] + 2 < o["agn"] <= 8
        for n in range(15):
            if n == o["agn"]:
                self.spin_lds(C_VOTE, 1, sleep=0, wide=True)
                self("s_mov_b32 s59, s11")
                self("s_bitcmp1_b32 s59, 0\ns_cselect_b64 s[60:61], -1, 0")
                self.stamp(2)
            if n == 8:
                self.advance_window(False)
            self.issue(n & 7, n, None if n < 2 else o["w0"] if n < o["agn"] else o["pw"])
            if n == o["vat"]:
                only(1, self.vote_load)
            if n == o["vat"] + 2:
                only(1, lambda: (self("s_waitcnt vmcnt(6)"), self.vote_eval()))
            if n == o["qat"]:
                only(2, lambda: self.lds_inc(C_MARK))
            if 8 <= n < 8 + len(idle):
                idle[n - 8]()
        self.stamp(3)
        self("s_mov_b32 s62, 0\ns_mov_b32 s51, s95")

        def progress(first=False, late=0):
            sk = self.lab("pg")
            self(f"""
                s_cmp_lg_u32 s3, 0
                s_cbranch_scc1 {sk}
                s_memrealtime s[10:11]
                s_add_u32 s72, s72, 4
                v_mov_b32 v6, s72
                s_waitcnt lgkmcnt(0)
                s_or_b32 s10, s10, 1
                v_mov_b32 v7, s10
                ds_write_b32 v6, v7 offset:{C_T}
                {sk}:""")
            if not first:
                self("v_add_u32 v4, 1024, v4\ns_add_u32 s62, s62, 1")

        def next_q():
            for j in range(3):
                self(f"ds_read_b128 v[{8 + 4*j}:{11 + 4*j}], v40 offset:{L_Q + 128 * j}")
            self("v_add_u32 v40, 384, v40\ns_waitcnt lgkmcnt(0)")

        def next_o():
            self("v_add_u32 v41, 6144, v41\nv_add_u32 v43, 4, v43")
            for i in range(12):
                self(f"v_mov_b32 v{8 + i}, 0")

        def body(consume, vphase=False):
            for i in range(16):
                if vphase and i in (0, 8):
                    self(f"ds_read_b128 v[28:31], v4 offset:{L_P + (i >> 3) * 512}")
                if vphase and i > 0:
                    self(f"s_cbranch_vccnz L_dr{i}" if (i >= 12 or i == 1) else f"s_cbranch_vccnz L_cons{i}")
                if i == 8:
                    progress(True)
                if o["ctl"] and i % 4 == 2:
                    self(f"ds_read_b64 v[6:7], v1 offset:{C_CTL}\ns_memrealtime s[74:75]")
                if o["ctl"] and i % 4 == 3:
                    self(f"""
                        s_waitcnt lgkmcnt(0)
                        v_readfirstlane_b32 s68, v6
                        v_readfirstlane_b32 s69, v7
                        s_lshl_b32 s10, s74, 5
                        s_mul_i32 s11, s69, s93
                        s_add_u32 s93, s93, 2
                        s_sub_u32 s10, s10, s68
                        s_sub_u32 s10, s10, s11
                        s_cmp_eq_u32 s69, 0
                        s_cselect_b32 s10, 0, s10""")
                    self.levels("s68", "s69")
                if i in (1, 9):
                    self.advance_window(i == 1)
                self.issue((i - 1) & 7, (i - 1) & 15, W)
                if i == 8:
                    sk = self.lab("mb")
                    self(f"s_bitcmp1_b32 s51, 0\ns_cbranch_scc0 {sk}")
                    if vphase:
                        self.flush_acc()
                        self.lds_inc(C_OCNT, addr="v43")
                        next_o()
                    else:
                        next_q()
                    self(f"{sk}:")
                if vphase:
                    self(f"L_cons{i}:")
                consume(i)

        self.spin_lds(C_QRDY, 3)
        progress(True)
        self.stamp(4)
        self("L_kq:")
        next_q()
        self("L_kloop:")
        body(self.consume_k)
        progress()
        self("s_and_b32 s10, s62, 3\ns_cbranch_scc1 L_knoseg")
        self.jitter("s", 4)
        self("v_mov_b32 v7, s62")
        self.lds_inc(C_KSEG - 4, addr="v7")
        self("""
            s_cmp_eq_u32 s62, 8
            s_cbranch_scc1 L_kdone
            L_knoseg:
            s_mov_b32 s10, s51
            s_lshr_b32 s51, s51, 2
            s_bitcmp1_b32 s10, 1
            s_cbranch_scc0 L_kloop
            s_branch L_kq
            L_kdone:""")
        self.stamp(5)
        self(f"""
            v_lshrrev_b32 v4, 3, v0
            v_lshlrev_b32 v4, 4, v4
            v_add_u32 v40, {2 * 6144}, v42
            s_mov_b32 s62, 0
            s_mov_b32 s51, s95
            s_mov_b64 vcc, 0""")
        for i in range(12):
            self(f"v_mov_b32 v{8 + i}, 0")
        self.spin_lds(C_PRDY, 4)
        self("L_vloop:")
        body(self.consume_v, vphase=True)
        self("s_cbranch_vccnz L_vflush")
        progress()
        self("s_bitcmp1_b32 s51, 1\ns_cbranch_scc0 L_vnoflush\nL_vflush:")
        self.flush_acc()
        self.lds_inc(C_OCNT, ret=True, addr="v43")
        self("s_cbranch_vccnz L_vlast")
        next_o()
        self("""
            L_vnoflush:
            s_lshr_b32 s51, s51, 2
            s_cmp_eq_u32 s62, 7
            s_cselect_b64 vcc, -1, 0
            s_cmp_lg_u32 s62, 4
            s_cbranch_scc1 L_vloop""")
        self.spin_lds(C_PRDY, 8)
        self(f"ds_read_b32 v6, v1 offset:{C_F}\ns_waitcnt lgkmcnt(0)")
        for i in range(12):
            self(f"v_mul_f32 v{8 + i}, v{8 + i}, v6")
        self("s_branch L_vloop")
        self("L_dr1:")
        self.jitter("s", 5)
        self.lds_inc(C_ISS)
        self("v_mov_b32 v5, s50")
        self.spin_lds(C_SC, 1, wide=True, addr="v5")
        self("s_mov_b32 s73, s11\ns_branch L_cons1")
        for i in (12, 13, 14, 15):
            self(f"L_dr{i}:\ns_waitcnt vmcnt({3 * (15 - i)})\ns_branch L_cons{i}")
        self("L_vlast:")
        self.stamp(7)
        self("s_cmp_lg_u32 s10, 3\ns_cbranch_scc1 L_nolast")
        self.publish_o()
        self.stamp(8)
        self("L_nolast:")
        if o["series"]:
            self(f"""
                s_lshl_b32 s10, s3, 7
                v_mov_b32 v6, s10
                v_mov_b32 v7, s87
                ds_write_b32 v6, v7 offset:{L_SER + 124}
                v_and_b32 v6, 31, v0
                v_lshlrev_b32 v6, 2, v6
                v_add_u32 v6, s10, v6
                ds_read_b32 v7, v6 offset:{L_SER}
                s_lshl_b32 s10, s2, 9
                s_add_u32 s10, s10, {STAMPS + 0x100000}
                v_add_u32 v6, s10, v6
                s_waitcnt lgkmcnt(0)
                global_store_dword v6, v7, s[36:37]""")
        self("s_branch L_end")

    def item_loads(self, part):
        if part < 2:
            for rho in range(8):
                r = 48 + (part * 8 + rho) * 2
                self(f"buffer_load_dwordx2 v[{r}:{r+1}], v44, s[40:43], s13 offen nt")
                self(f"s_add_u32 s13, s13, {'s71' if rho == 7 else 's70'}")
        else:
            for rho in range(4):
                r = 80 + rho * 2
                self(f"buffer_load_dwordx2 v[{r}:{r+1}], v45, s[40:43], s13 offen nt")
                if rho < 3:
                    self("s_add_u32 s13, s13, s70")

    def frag_norm(self):
        for i in range(10):
            self(f"v_lshlrev_b32 v{8 + 2*i}, 16, v{28 + i}\nv_and_b32 v{9 + 2*i}, 0xffff0000, v{28 + i}")
        self("s_waitcnt lgkmcnt(0)")
        for i in range(20):
            self(f"v_sub_f32 v{8 + i}, v{8 + i}, v40")
        for i in range(10):
            self(f"v_cvt_pk_bf16_f32 v{28 + i}, v{8 + 2*i}, v{9 + 2*i}")
        for i in range(10):
            self(f"v_lshlrev_b32 v{8 + 2*i}, 16, v{28 + i}\nv_and_b32 v{9 + 2*i}, 0xffff0000, v{28 + i}")
        for i in range(20):
            self(f"v_mul_f32 v{8 + i}, v{8 + i}, v41")
        for i in range(10):
            self(f"v_cvt_pk_bf16_f32 v{144 + i}, v{8 + 2*i}, v{9 + 2*i}")

    def item_compute(self):
        for s in range(3):
            self(f"s_waitcnt vmcnt({(12, 4, 0)[s]})")
            nm = 4 if s < 2 else 2
            for e in range(4):
                for m in range(nm):
                    lo = 48 + (s * 8 + 2 * m) * 2 + (e >> 1)
                    self(f"v_perm_b32 v{88 + s*16 + e*nm + m}, v{lo + 2}, v{lo}, s{68 + (e & 1)}")
            self("s_nop 1")
            for e in range(4):
                a = 88 + s * 16 + e * nm
                d = 128 + e * 4
                c = "0" if s == 0 else f"v[{d}:{d+3}]"
                if s < 2:
                    self(f"v_mfma_f32_16x16x32_bf16 v[{d}:{d+3}], v[{a}:{a+3}], v[{144 + 4*s}:{147 + 4*s}], {c}")
                else:
                    self(f"v_mfma_f32_16x16x16_bf16 v[{d}:{d+3}], v[{a}:{a+1}], v[152:153], {c}")
        self("s_nop 7")
        for r in range(4):
            self(f"v_cndmask_b32 v{128 + r}, v{128 + r}, v{132 + r}, s[66:67]")
            self(f"v_cndmask_b32 v{136 + r}, v{136 + r}, v{140 + r}, s[66:67]")
        for r in range(4):
            self(f"v_cndmask_b32 v{128 + r}, v{128 + r}, v{136 + r}, s[64:65]")
        self(f"ds_write_b128 v46, v[128:131] offset:{L_ORED}")

    def gather_tile(self, vo, va, sleep, silu, dst):
        self.poll([(8, f"buffer_load_dwordx4 v[8:11], {vo}, s[44:47], s13 offen sc1 {NT(self.o, 'Q')}"),
                   (12, f"buffer_load_dwordx4 v[12:15], {vo}, s[44:47], s13 offen offset:3072 sc1 {NT(self.o, 'Q')}")], sleep)
        for e in range(4):
            self(f"v_add_f32 v{8 + e}, v{8 + e}, v{12 + e}")
        if silu:
            for e in range(4):
                self.bf16_round(8 + e)
            for e in range(4):
                self(f"v_mul_f32 v{12 + e}, {f32(-1.4426950408889634)}, v{8 + e}")
            for e in range(4):
                self(f"v_exp_f32 v{12 + e}, v{12 + e}")
            for e in range(4):
                self(f"v_add_f32 v{12 + e}, 1.0, v{12 + e}")
            for e in range(4):
                self(f"v_rcp_f32 v{12 + e}, v{12 + e}")
            for e in range(4):
                self(f"v_mul_f32 v{8 + e}, v{8 + e}, v{12 + e}")
        self(f"""
            v_cvt_pk_bf16_f32 v8, v8, v9
            v_cvt_pk_bf16_f32 v10, v10, v11
            ds_write_b16 {va}, v8 offset:{dst}
            ds_write_b16_d16_hi {va}, v8 offset:{dst + 8}
            ds_write_b16 {va}, v10 offset:{dst + 16}
            ds_write_b16_d16_hi {va}, v10 offset:{dst + 24}""")

    def gather_o(self, batches, sleep, hook=None):
        late = 3 in batches
        loads = [(8 + 4 * b, f"buffer_load_dwordx4 v[{8 + 4*b}:{11 + 4*b}], v47, s[44:47], s{16 + b} offen sc1")
                 for b in batches]
        if late:
            loads.append((24, "buffer_load_dwordx4 v[24:27], v48, s[44:47], s18 offen sc1"))

        def finish():
            self.rows4_reduce(*[8 + 4 * b for b in batches], extra=24 if late else None)
            for b in batches:
                r = 8 + 4 * b
                self(f"v_cvt_pk_bf16_f32 v{r}, v{r}, v{r}\nds_write_b16 v44, v{r} offset:{L_OBUF + 384 * b}")

        self.poll(loads, sleep, half={len(loads) - 1: "s20"} if late else {}, hook=hook, inner=finish)

    def tile_lanes(self):
        self("""
            v_lshlrev_b32 v232, 1, v4
            v_xor_b32 v232, v232, v3
            v_lshlrev_b32 v232, 4, v232
            v_mad_u32_u24 v232, v4, s11, v232""")

    def tile_setup(self):
        self.srd(40, 24, 6144 * 1280)
        self(f"""
            s_mul_i32 s70, s77, {192 * 1280}
            s_lshl_b32 s10, s39, 8
            s_add_u32 s70, s70, s10
            s_add_u32 s71, s70, {192 * 1280}
            s_mov_b32 m0, {L_WT}
            s_movk_i32 s11, 1280""")
        self.tile_lanes()
        self(f"""
            v_bfe_u32 v234, v2, 1, 1
            v_lshl_add_u32 v234, s72, 2, v234
            v_bfe_u32 v235, v2, 2, 2
            v_lshlrev_b32 v7, 1, v235
            v_xor_b32 v234, v234, v7
            v_lshlrev_b32 v234, 4, v234
            v_lshl_add_u32 v234, v235, 8, v234
            v_and_b32 v235, 1, v2
            v_lshl_add_u32 v234, v235, 3, v234
            v_xor_b32 v235, 32, v234
            v_mul_u32_u24 v7, {2 * TROW}, v4
            v_add_u32 v7, {L_WT}, v7
            v_add_u32 v234, v234, v7
            v_add_u32 v235, v235, v7""")

    def tile_issue(self, limit, depth, srd="s[40:43]", off="s70"):
        lp = self.lab("tl")
        self(f"""
            {lp}:
            s_waitcnt vmcnt({depth - 1})
            buffer_load_dwordx4 v232, {srd}, {off} offen nt lds
            s_add_u32 m0, m0, {TROW}
            s_add_u32 {off}, {off}, {4 * 1280}
            s_cmp_lt_u32 {off}, {limit}
            s_cbranch_scc1 {lp}""")

    def fragments(self):
        for s in range(6):
            for e in range(2):
                for hf in range(2):
                    r = 180 + s * 8 + e * 4 + hf * 2
                    self(f"ds_read_b64_tr_b16 v[{r}:{r+1}], v{234 + e} offset:{(8 * s + hf) * TROW}")

    def project(self, final):
        if final:
            self("s_waitcnt lgkmcnt(0)\ns_barrier")
        for s in range(6):
            self(f"ds_read_b128 v[{8 + 4*s}:{11 + 4*s}], v228 offset:{L_OBUF + 64 * s}")
        for s in range(6):
            self(f"s_waitcnt lgkmcnt({5 - s})")
            for e in range(2):
                b = 180 + s * 8 + e * 4
                d = 32 + e * 4
                c = "0" if s == 0 else f"v[{d}:{d+3}]"
                self(f"v_mfma_f32_16x16x32_bf16 v[{d}:{d+3}], v[{8 + 4*s}:{11 + 4*s}], v[{b}:{b+3}], {c}")
        self("s_mov_b32 vcc_lo, 0xffff0000\ns_mov_b32 vcc_hi, 0\ns_nop 6")
        for r in range(4):
            self(f"v_cndmask_b32 v{32 + r}, v{32 + r}, v{36 + r}, vcc")
        self.tag_data(32, 236)
        self("s_mov_b32 exec_hi, 0")
        if final and self.o["local"]:
            self("""
                s_cmp_eq_u32 s58, 0
                s_cbranch_scc1 L_ythru
                buffer_store_dwordx4 v[32:35], v229, s[44:47], s75 offen
                s_branch L_ydone
                L_ythru:""")
        self(f"buffer_store_dwordx4 v[32:35], v229, s[44:47], s75 offen sc1 {'' if final else NT(self.o, 'y')}")
        self("L_ydone:\ns_mov_b64 exec, -1" if final else "s_mov_b64 exec, -1")

    def prep(self, g):
        o = self.o
        lp, dn, keep = self.lab("fl"), self.lab("fd"), self.lab("fk")
        AGN = "s_mov_b64 s[60:61], s[52:53]\ns_mov_b64 s[54:55], s[52:53]"
        if g == 0 and o["agn"] and "a" not in o["skip"]:
            AGN = """
                s_lshr_b32 s10, s59, 16
                s_xor_b32 s10, s10, s4
                s_bitcmp1_b32 s10, 0
                s_cselect_b32 s54, -1, 0
                s_xor_b32 s54, s54, 0xffff0000
                s_cmp_eq_u32 s72, 0
                s_cselect_b32 s54, s54, s52
                s_mov_b32 s55, s53
                s_or_b64 s[60:61], s[52:53], s[54:55]"""
        SCA = {"wg": f"s_lshl_b32 s13, s2, 13\ns_add_u32 s13, s13, {SC + 4096 * g}\ns_xor_b32 s14, s13, {4 << 13}\nv_mov_b32 v30, v230",
               "seg": f"s_lshl_b32 s13, s2, 12\ns_add_u32 s13, s13, {SC + (g << 20)}\ns_xor_b32 s14, s13, {4 << 12}\nv_mov_b32 v30, v230",
               "page": f"""
                   s_lshr_b32 s13, s2, 4
                   s_lshl_b32 s13, s13, 16
                   s_and_b32 s14, s2, 15
                   s_lshl_b32 s14, s14, 11
                   s_add_u32 s13, s13, s14
                   s_lshl_b32 s14, s72, 9
                   s_add_u32 s13, s13, s14
                   s_add_u32 s13, s13, {SC + (g << 20)}
                   s_xor_b32 s14, s13, {4 << 11}
                   v_lshrrev_b32 v30, 5, v2
                   v_mul_u32_u24 v30, {32768 - 512}, v30
                   v_add_u32 v30, v30, v229"""}[o["scl"]]
        self.control(8 * g + 8)
        self.spin_lds(C_KSEG + 4 * g, 4, sleep=8)
        self.jitter("h", 7 + g)
        self(f"""
            ds_read_b128 v[32:35], v230 offset:{L_S + 4096 * g}
            s_lshr_b32 s62, s59, 16
            s_xor_b32 s62, s62, s59
            s_lshl_b32 s11, s72, 1
            s_add_u32 s11, s11, {8 * g}
            s_lshr_b32 s10, s62, s11
            s_bitcmp1_b32 s10, 0
            s_cselect_b32 s52, -1, 0
            s_bitcmp1_b32 s10, 1
            s_cselect_b32 s53, -1, 0
            {AGN}
            {SCA}
            s_lshl_b32 s15, s2, {o["fsh"]}
            s_add_u32 s15, s15, {FL + 32768 * g}
            s_waitcnt lgkmcnt(0)
            s_cmp_eq_u64 s[60:61], 0
            s_cbranch_scc1 {keep}s
            s_mov_b64 exec, s[60:61]
            buffer_store_dwordx4 v[32:35], v30, s[44:47], s13 offen {o["scst"]}
            s_waitcnt vmcnt(0)
            {keep}s:""")
        self.lds_inc(C_FCNT, ret=True)
        self(f"""
            s_cmp_lg_u32 s10, {4 * g + 3}
            s_cbranch_scc1 {keep}f
            s_bfe_u32 s10, s62, {(8 << 16) | (8 * g)}
            {"" if (g == 0 and o["agn"] and "a" not in o["skip"]) else f"s_cbranch_scc0 {keep}f"}
            v_mov_b32 v5, s92
            v_lshlrev_b32 v6, 2, v2
            s_mov_b32 exec_lo, {hex((1 << (1 << (o["fsh"] - 2))) - 1)}
            s_mov_b32 exec_hi, 0
            buffer_store_dword v5, v6, s[44:47], s15 offen sc1 {NT(o, 'f')}
            s_mov_b64 exec, -1
            {keep}f:
            s_xor_b32 s56, s15, {4 << o['fsh']}
            s_mov_b32 s57, s14""")
        self.control(8 * g + 8 + o["rlag"])
        self(f"s_cmp_eq_u64 s[60:61], 0\ns_cbranch_scc1 {keep}")
        self.spin_lds(C_T + 4 * (8 * g + 8 + o["rlag"]), 1, sleep=16)
        if o["fsc"]:
            self(f"""
                s_load_dword s10, s[36:37], s56
                s_waitcnt lgkmcnt(0)
                s_cmp_eq_u32 s10, s92
                s_cbranch_scc1 {dn}""")
        self(f"""
            s_mov_b32 s12, 0x40000
            s_mov_b64 exec, 1
            {lp}:
            buffer_load_dword v6, v1, s[44:47], s56 offen sc1 {NT(o, 'F')}
            s_waitcnt vmcnt(0)
            v_readfirstlane_b32 s10, v6
            s_cmp_eq_u32 s10, s92
            s_cbranch_scc1 {dn}
            s_sleep {o["fsleep"]}
            s_sub_u32 s12, s12, 1
            s_cbranch_scc0 {lp}
            s_branch L_end
            {dn}:
            s_mov_b64 exec, s[60:61]
            buffer_load_dwordx4 v[36:39], v30, s[44:47], s57 offen {o["scld"]}
            s_mov_b64 exec, -1
            s_waitcnt vmcnt(0)""")
        for i in range(4):
            self(f"v_cndmask_b32 v{32 + i}, v{32 + i}, v{36 + i}, {'s[54:55]' if 2 * i < o['agn'] else 's[52:53]'}")
        self(f"{keep}:")
        for i in range(4):
            self(f"v_lshlrev_b32 v{8 + 2*i}, 16, v{32 + i}\nv_and_b32 v{9 + 2*i}, 0xffff0000, v{32 + i}")
        self("v_max3_f32 v24, v8, v9, v10\nv_max3_f32 v24, v24, v11, v12\nv_max3_f32 v24, v24, v13, v14\nv_max_f32 v24, v24, v15")
        self.half_allreduce("v_max_f32", 24, 25)
        self(f"""
            v_lshrrev_b32 v27, 5, v2
            v_lshl_add_u32 v27, s72, 1, v27
            v_add_u32 v27, {8 * g}, v27""")
        self.lane_row(27, 26)
        self("v_lshlrev_b32 v26, 5, v26\nv_lshlrev_b32 v27, 2, v27")
        if g == 1:
            self(f"ds_read_b32 v25, v26 offset:{L_STAT}\ns_waitcnt lgkmcnt(0)\nv_max_f32 v24, v24, v25")
        self(f"""
            s_mov_b32 exec_lo, 1
            s_mov_b32 exec_hi, 1
            ds_max_f32 v26, v24 offset:{L_STAT + 16 * g}""")
        self.lds_inc(C_MAXC)
        self.spin_lds(C_MAXC, 4 * (g + 1), sleep=2)
        self(f"""
            ds_read_b32 v24, v26 offset:{L_STAT + 16 * g}
            s_mov_b32 s10, {f32(1.4426950408889634)}
            s_waitcnt lgkmcnt(0)""")
        if g == 1:
            self(f"""
                v_sub_f32 v25, v25, v24
                v_mul_f32 v25, s10, v25
                v_exp_f32 v25, v25
                s_cmp_lg_u32 s72, 0
                s_cbranch_scc1 L_nofact
                s_mov_b64 exec, 1
                ds_write_b32 v1, v25 offset:{C_F}
                s_mov_b64 exec, -1
                L_nofact:""")
        for i in range(8):
            self(f"v_sub_f32 v{8 + i}, v{8 + i}, v24")
        for i in range(8):
            self(f"v_mul_f32 v{8 + i}, s10, v{8 + i}")
        for i in range(8):
            self(f"v_exp_f32 v{8 + i}, v{8 + i}")
        for i in range(4):
            self(f"v_cvt_pk_bf16_f32 v{32 + i}, v{8 + 2*i}, v{9 + 2*i}")
        self(f"ds_write_b128 v230, v[32:35] offset:{L_P + 4096 * g}")
        self.lds_inc(C_PRDY)
        for step in (4, 2, 1):
            for i in range(step):
                self(f"v_add_f32 v{8 + i}, v{8 + i}, v{8 + step + i}")
        self.jitter("h", 9 + g)
        self.half_allreduce("v_add_f32", 8, 9)
        self(f"ds_write_b32 v27, v8 offset:{C_WL}")
        if g == 1:
            self.lds_inc(C_SCNT, ret=True)
            self(f"""
                s_cmp_lg_u32 s10, 3
                s_cbranch_scc1 L_nostat
                v_lshlrev_b32 v9, 2, v3
                ds_read_b32 v8, v9 offset:{C_WL}""")
            self.lane_row(3, 10)
            self("""
                v_cmp_eq_u32 vcc, v10, v4
                v_lshlrev_b32 v9, 1, v2
                s_waitcnt lgkmcnt(0)
                v_cndmask_b32 v8, 0, v8, vcc""")
            for ctl in ("quad_perm:[1,0,3,2]", "quad_perm:[2,3,0,1]", "row_half_mirror"):
                self(f"s_nop 1\nv_add_f32_dpp v8, v8, v8 {ctl} row_mask:0xf bank_mask:0xf")
            self(f"""
                s_mov_b32 exec_lo, 0x01010101
                s_mov_b32 exec_hi, 0x01010101
                ds_write_b32 v9, v8 offset:{L_STAT + 8}
                s_mov_b64 exec, 0xff
                ds_read_b128 v[24:27], v229 offset:{L_STAT}
                s_lshl_b32 s13, s27, 1
                s_add_u32 s13, s13, s4
                s_lshl_b32 s13, s13, 7
                s_add_u32 s13, s13, {ST}
                s_waitcnt lgkmcnt(0)
                buffer_store_dwordx4 v[24:27], v229, s[44:47], s13 offen sc1 {NT(o, 's')}
                s_mov_b64 exec, -1
                L_nostat:""")

    def lane_row(self, i, dst):
        self.lane_window(i, dst)
        self(f"""
            v_cmp_le_u32 vcc, {86 * 16}, v{dst}
            v_bfe_u32 v{dst}, v{dst}, 4, 1
            s_nop 0
            v_cndmask_b32 v{dst}, v{dst}, 2, vcc""")

    def scale(self):
        self.note("softmax scale per region from the (max, sum) records of the workgroups that share it")
        lp, dn = self.lab("sl"), self.lab("sd")
        self(f"""
            v_bfe_u32 v12, v2, 1, 3
            v_lshlrev_b32 v12, 7, v12
            v_lshl_add_u32 v12, v4, 5, v12
            v_and_b32 v13, 1, v2
            v_lshl_add_u32 v12, v13, 4, v12
            v_mov_b32 v8, {NEG}
            v_mov_b32 v10, 0
            s_sub_u32 s13, s27, s94
            s_lshl_b32 s13, s13, 8
            s_add_u32 s13, s13, {ST}
            s_mov_b32 s10, 0x00ff00ff
            s_cmp_lt_u32 s27, 126
            s_cselect_b32 exec_lo, 0x0fff0fff, s10
            s_mov_b32 exec_hi, exec_lo
            s_mov_b32 s12, 0x40000
            {lp}:
            buffer_load_dwordx4 v[8:11], v12, s[44:47], s13 offen sc1 {NT(self.o, 'S')}
            s_waitcnt vmcnt(0)
            v_xor_b32 v13, s92, v9
            v_bitop3_b32 v13, v13, v11, s92 bitop3:0xf6
            v_cmp_ne_u32 vcc, 0, v13
            s_cmp_eq_u64 vcc, 0
            s_cbranch_scc1 {dn}
            s_sleep 24
            s_sub_u32 s12, s12, 1
            s_cbranch_scc0 {lp}
            s_branch L_end
            {dn}:
            s_mov_b64 exec, -1
            v_max_f32_dpp v13, v8, v8 quad_perm:[1,0,3,2] row_mask:0xf bank_mask:0xf
            v_mov_b32 v9, v8""")
        self.row16_allreduce("v_max_f32", 9)
        self(f"""
            v_sub_f32 v8, v8, v9
            v_sub_f32 v13, v13, v9
            v_mul_f32 v8, {f32(1.4426950408889634)}, v8
            v_mul_f32 v13, {f32(1.4426950408889634)}, v13
            v_exp_f32 v8, v8
            v_exp_f32 v13, v13
            v_mul_f32 v10, v10, v8""")
        self.row16_allreduce("v_add_f32", 10)
        self(f"""
            v_rcp_f32 v10, v10
            v_lshlrev_b32 v11, 3, v4
            v_mul_f32 v9, v13, v10
            v_mov_b32 v8, 1
            s_lshl_b32 s10, s94, 1
            s_add_u32 s10, s10, s4
            s_lshl_b32 s10, s10, 1
            s_lshl_b32 exec_lo, 0x10001, s10
            s_mov_b32 exec_hi, exec_lo
            ds_write_b64 v11, v[8:9] offset:{C_SC}
            s_mov_b64 exec, -1""")

    def levels(self, up, down):
        o = self.o
        self(f"""
            s_min_i32 s10, s10, {(o["cmax"] << 22) // o["gain"]}
            s_max_i32 s10, s10, {-((o["cmaxs"] << 22) // o["gains"])}
            s_max_i32 {up}, s10, 0
            s_sub_i32 {down}, 0, s10
            s_max_i32 {down}, {down}, 0
            s_mul_i32 {up}, {up}, {o["gain"] << 6}
            s_mul_i32 {down}, {down}, {o["gains"] << 6}""")

    def control(self, last, check=True, guard=False):
        o = self.o
        if not o["ctl"]:
            return
        lp, dn, np_, nc = self.lab("cl"), self.lab("cd"), self.lab("cp"), self.lab("cn")
        if check:
            self(f"s_cmp_lg_u32 s72, 3\ns_cbranch_scc1 {dn}")
        if guard:
            self(f"s_cmp_ge_u32 s96, {last}\ns_cbranch_scc1 {dn}")
        self(f"""
            {lp}:
            s_add_u32 s96, s96, 1
            s_lshl_b32 s10, s96, 2
            v_mov_b32 v9, s10""")
        self.spin_lds(C_T, 1, sleep=4, addr="v9")
        if o["cpack"] == 2:
            self(f"""
                s_mov_b32 s97, s10
                s_mul_i32 s13, s96, {o["cstr"]}
                s_add_u32 s13, s13, {CT}
                s_cmp_ge_u32 s99, 16
                s_cbranch_scc1 {np_}
                s_lshl_b32 s14, s99, 3
                s_add_u32 s14, s14, s13
                s_add_u32 s14, s14, {o["cstr"]}
                v_mov_b32 v12, s92
                v_mov_b32 v13, s97
                s_mov_b64 exec, 1
                buffer_store_dwordx2 v[12:13], v1, s[44:47], s14 offen sc1
                s_mov_b64 exec, -1
                {np_}:
                s_mov_b32 s10, 0
                s_cmp_lt_u32 s96, {max(1, min(o['cfirst'], o['nomn']))}
                s_cbranch_scc1 {np_}w""")
            for part in range(4):
                self(f"s_load_dwordx8 s[16:23], s[36:37], s13\ns_add_u32 s13, s13, 32\ns_waitcnt lgkmcnt(0)")
                for k in range(4):
                    self(f"""
                        s_sub_u32 s11, s97, s{17 + 2*k}
                        s_cmp_eq_u32 s{16 + 2*k}, s92
                        s_cselect_b32 s11, s11, 0
                        s_add_u32 s10, s10, s11""")
            self(f"{np_}w:\ns_lshl_b32 s10, s10, 1")
        else:
            sh = 3 if o["cpack"] else 7
            step = o["cstr"] if o["cpack"] else 4096
            self(f"""
                s_mov_b32 s97, s10
                s_mul_i32 s13, s96, {step}
                s_add_u32 s13, s13, {CT}
                s_cmp_lt_u32 s96, {max(1, min(o['cfirst'], o['nomn']))}
                s_cselect_b32 s10, 0x80000000, 0
                v_lshl_or_b32 v9, v2, {sh}, s10
                s_mov_b64 exec, 0xffff
                buffer_load_dwordx2 v[10:11], v9, s[44:47], s13 offen sc1
                s_cmp_ge_u32 s99, 16
                s_cbranch_scc1 {np_}
                s_lshl_b32 s14, s99, {sh}
                s_add_u32 s14, s14, s13
                s_add_u32 s14, s14, {step}
                v_mov_b32 v12, s92
                v_mov_b32 v13, s97
                v_lshlrev_b32 v14, 3, v2
                s_mov_b32 exec_lo, {1 if o["cpack"] else "0xffff"}
                buffer_store_dwordx2 v[12:13], v14, s[44:47], s14 offen sc1
                s_mov_b32 exec_lo, 0xffff
                s_waitcnt vmcnt(1)
                s_branch {np_}w
                {np_}:
                s_waitcnt vmcnt(0)
                {np_}w:
                v_cmp_eq_u32 vcc, s92, v10
                v_sub_u32 v11, s97, v11
                s_nop 0
                v_cndmask_b32 v11, 0, v11, vcc""")
            self.row16_allreduce("v_add_u32", 11)
            self("s_nop 0\nv_readlane_b32 s10, v11, 0\ns_mov_b64 exec, -1\ns_lshl_b32 s10, s10, 1")
        self(f"""
            s_lshl_b32 s11, s97, 5
            s_sub_u32 s11, s11, s10
            s_sub_u32 s12, s11, s98
            s_mov_b32 s98, s11
            s_cmp_le_u32 s96, {o["nomn"]}
            s_cselect_b32 s12, {o["nominal"] * 16}, s12
            s_mov_b32 s14, s100
            s_mov_b32 s100, s12
            s_cmp_lt_u32 s96, {o["cfirst"]}
            s_cbranch_scc1 {nc}""")
        self({"last": "s_lshr_b32 s12, s12, 2",
              "min": "s_min_u32 s12, s12, s14\ns_lshr_b32 s12, s12, 2",
              "avg": "s_add_u32 s12, s12, s14\ns_lshr_b32 s12, s12, 3"}[o["pest"]])
        self("""
            s_sub_u32 s10, s96, 1
            s_mul_i32 s10, s10, s12
            s_lshl_b32 s10, s10, 2
            s_sub_u32 s11, s11, s10""")
        if o["gfrom"]:
            self(f"""
                s_cmp_ge_u32 s96, {o["gfrom"]}
                s_cselect_b32 s10, s101, {(o["bias"] * 32) & 0xffffffff}
                s_sub_u32 s11, s11, s10""")
        else:
            self("s_sub_u32 s11, s11, s101")
        self(f"""
            v_mov_b32 v12, s11
            v_mov_b32 v13, s12
            ds_write_b64 v1, v[12:13] offset:{C_CTL}
            {nc}:
            s_cmp_lt_u32 s96, {last}
            s_cbranch_scc1 {lp}
            {dn}:""")

    def helper(self):
        o = self.o
        self.in_helper = True
        self(f"""
            L_helper:
            s_sub_u32 s72, s3, 4
            s_sub_u32 s74, s38, 48
            s_mul_i32 s61, s74, 43
            s_lshr_b32 s61, s61, 8
            s_mul_i32 s10, s61, 6
            s_sub_u32 s73, s74, s10
            s_add_u32 s61, s61, 32
            s_cmp_lt_u32 s8, 6
            s_cselect_b32 s61, s6, s61
            s_cselect_b32 s73, s8, s73
            s_cselect_b32 s74, 0, s74
            s_cselect_b32 s70, 12, 3
            s_lshl_b32 s70, s70, 10
            s_mul_i32 s71, s70, 25
            s_cmp_ge_u32 s73, 3
            s_cselect_b32 s14, 4, 0
            s_cselect_b32 s10, 3, 0
            s_add_u32 s14, s14, s72
            s_mul_i32 s14, s14, 80
            s_sub_u32 s10, s73, s10
            s_and_b32 s11, s61, 31
            s_mul_i32 s11, s11, 3
            s_add_u32 s10, s10, s11
            s_lshl_b32 s10, s10, 7
            s_mul_i32 s13, s14, s70
            s_add_u32 s13, s13, s10
            s_lshl_b32 s14, s14, 1
            v_and_b32 v3, 15, v2
            v_lshrrev_b32 v4, 4, v2
            v_mul_u32_u24 v5, 1280, v4
            v_lshl_add_u32 v5, v3, 4, v5
            v_lshrrev_b32 v6, 2, v3
            v_mul_u32_u24 v7, 1280, v6
            v_lshl_add_u32 v38, v4, 3, v7
            v_lshl_add_u32 v7, v4, 4, v7
            v_mul_u32_u24 v45, s70, v4
            v_add_lshl_u32 v44, v45, v3, 3
            v_lshlrev_b32 v45, 2, v45
            v_lshl_add_u32 v45, v3, 3, v45
            s_or_b32 s10, s2, s72""")
        self.args_ready()
        self(f"""
            s_cmp_lg_u32 s10, 0
            s_cbranch_scc1 L_nononce
            s_max_u32 s10, s94, 1
            v_mov_b32 v47, s10
            v_lshlrev_b32 v46, 2, v2
            global_store_dword v46, v47, s[34:35] sc1
            L_nononce:
            s_mov_b32 s42, {640 * 1536 * 2}
            s_cmp_lt_u32 s8, 6
            s_cselect_b32 s40, s22, s28
            s_cselect_b32 s41, s23, s29
            s_cselect_b32 s42, {640 * 6144 * 2}, s42
            s_and_b32 s41, s41, 0xffff
            s_mov_b32 s43, 0x20000""")
        self.srd(48, 16, 5120)
        self.srd(44, 36, WS_END)
        self.stamp(1, 2)
        if o["hprio"]:
            self("s_setprio 2")
        self("s_barrier\ns_barrier")
        self.stamp(2, 2)
        def w2_tile():
            self("s_sub_u32 s56, s38, 32\ns_cmp_ge_u32 s56, 40\ns_cbranch_scc1 L_now2")
            self.srd(52, 30, 1536 * 1280)
            self(f"""
                s_mul_i32 s57, s56, 52
                s_lshr_b32 s57, s57, 8
                s_mul_i32 s10, s57, 5
                s_sub_u32 s10, s56, s10
                s_lshl_b32 s10, s10, 8
                s_lshl_b32 s62, s57, 2
                s_add_u32 s62, s62, s72
                s_mul_i32 s62, s62, {48 * 1280}
                s_add_u32 s62, s62, s10
                s_add_u32 s63, s62, {48 * 1280}
                s_mul_i32 s10, s72, {12 * TROW}
                s_add_u32 m0, s10, {L_WT}
                s_movk_i32 s11, 1280""")
            self.tile_lanes()
            self.tile_issue("s63", o["tdepth0"], "s[52:55]", "s62")
            self("L_now2:")

        if not o["w2last"]:
            w2_tile()
        self("s_cmp_ge_u32 s74, 48\ns_cbranch_scc1 L_noloads")
        for i in range(5):
            self(f"buffer_load_dwordx4 v[{8 + 4*i}:{11 + 4*i}], v5, s[48:51], 0 offen offset:{256 * i}")
        self("""
            buffer_load_dwordx4 v[28:31], v7, s[48:51], s14 offen
            buffer_load_dwordx4 v[32:35], v7, s[48:51], s14 offen offset:64
            buffer_load_dwordx2 v[36:37], v38, s[48:51], s14 offen offset:128""")
        first = (3, 1, 2)[o["hsplit"]]
        for p in range(first):
            self.item_loads(p)
        self("L_noloads:")
        if o["w2last"]:
            w2_tile()
        self.stamp(3, 2)
        self.masks()
        self.roles()
        self.plan()
        self(f"""
            s_mov_b32 s68, 0x05040100
            s_mov_b32 s69, 0x07060302
            v_lshlrev_b32 v229, 4, v2
            v_and_b32 v47, 3, v2
            v_mul_u32_u24 v228, 384, v47
            v_lshl_add_u32 v228, v4, 4, v228
            v_mul_u32_u24 v233, 384, v4
            v_lshl_add_u32 v233, v6, 5, v233
            v_lshl_add_u32 v233, v47, 1, v233
            s_lshl_b32 s10, s72, 7
            v_add_u32 v233, s10, v233
            s_lshl_b32 s10, s72, 10
            v_add_u32 v230, s10, v229
            v_lshl_add_u32 v46, v6, 8, s10
            v_lshl_add_u32 v46, v4, 6, v46
            v_lshl_add_u32 v46, v47, 4, v46
            s_lshl_b32 s10, s72, 2
            v_mov_b32 v231, s10
            s_mov_b32 s60, 0
            s_cmp_ge_u32 s74, 48
            s_cbranch_scc1 L_noitem
            v_lshlrev_b32 v47, 6, v6
            s_mov_b32 s10, 0x3f803f80
            s_waitcnt vmcnt({(20, 8, 16)[o["hsplit"]]})""")
        self.stamp(4, 2)
        for i in range(20):
            self(f"v_dot2_f32_bf16 v40, v{8 + i}, s10, {'0' if i == 0 else 'v40'}")
        self("s_nop 1")
        self.row16_allreduce("v_add_f32", 40)
        self(f"v_mul_f32 v40, {f32(1 / 640)}, v40")
        for p in range(first, 3):
            self.item_loads(p)
        self("v_mov_b32 v41, 0\nv_mov_b32 v42, 0")
        for i in range(20):
            self(f"""
                v_lshlrev_b32 v38, 16, v{8 + i}
                v_and_b32 v39, 0xffff0000, v{8 + i}
                v_sub_f32 v38, v38, v40
                v_sub_f32 v39, v39, v40
                v_fmac_f32 v41, v38, v38
                v_fmac_f32 v42, v39, v39""")
        self("v_add_f32 v41, v41, v42")
        self.row16_allreduce("v_add_f32", 41)
        self(f"v_mul_f32 v41, {f32(1 / 640)}, v41")
        self.bf16_round(41)
        self(f"v_add_f32 v41, {f32(1e-5)}, v41")
        self.bf16_round(41)
        self("v_sqrt_f32 v41, v41\ns_nop 0")
        self.bf16_round(41)
        self("v_rcp_f32 v41, v41")
        self.bf16_round(40)
        self("ds_bpermute_b32 v40, v47, v40\nds_bpermute_b32 v41, v47, v41")
        self.frag_norm()
        self.stamp(5, 2)
        self.jitter("h", 6)
        self.item_compute()
        self.lds_inc(C_ICNT, ret=True)
        self("s_mov_b32 s60, s10\nL_noitem:")
        self.stamp(1)
        self.stamp(6, 2)
        self.spin_lds(C_NONCE, 1, sleep=0)
        self("s_mov_b32 s92, s10")
        self.tags(236)
        self("s_cmp_lg_u32 s60, 3\ns_cbranch_scc1 L_nopub")
        for k in range(4):
            self(f"ds_read_b128 v[{8 + 4*k}:{11 + 4*k}], v229 offset:{L_ORED + 1024 * k}")
        self("""
            s_lshl_b32 s13, s61, 3
            s_add_u32 s13, s13, s73
            s_lshl_b32 s13, s13, 10
            s_waitcnt lgkmcnt(0)""")
        for e in range(4):
            self(f"v_add_f32 v{8 + e}, v{8 + e}, v{12 + e}\nv_add_f32 v{16 + e}, v{16 + e}, v{20 + e}")
        for e in range(4):
            self(f"v_add_f32 v{24 + e}, v{8 + e}, v{16 + e}")
        self.tag_data(24, 236)
        self(f"buffer_store_dwordx4 v[24:27], v229, s[44:47], s13 offen {o['qst']}\nL_nopub:")
        self.stamp(2)
        self.stamp(7, 2)
        self("""
            s_and_b32 s10, s95, 0x7fff
            s_flbit_i32_b32 s10, s10
            s_sub_u32 s11, 31, s10
            s_cmp_eq_u32 s72, 0
            s_cselect_b32 s11, 4, s11
            s_cmp_ge_u32 s72, 2
            s_cselect_b32 s11, 15, s11""")
        self.region_of("s11", "s68", "s69")
        self(f"""
            s_cmp_eq_u32 s72, 3
            s_cbranch_scc1 L_noq
            s_and_b32 s13, s68, 31
            s_lshl_b32 s13, s13, 5
            s_lshr_b32 s10, s68, 5
            s_add_u32 s13, s13, s10
            s_lshl_b32 s13, s13, 8
            v_lshlrev_b32 v47, 10, v4
            v_lshl_add_u32 v47, v3, 4, v47
            s_lshl_b32 s10, s72, 8
            v_add_u32 v46, s10, v233
            v_lshlrev_b32 v45, 8, v4
            v_sub_u32 v46, v46, v45""")
        self.spin_lds(C_MARK, 1, sleep=2)
        self("s_mov_b32 exec_hi, 0xffff")
        self.gather_tile("v47", "v46", o["qsleep"], False, L_Q)
        self.lds_inc(C_QRDY)
        self("L_noq:")
        if o["hprio"]:
            self("s_setprio 0")
        self.stamp(4)
        self.stamp(9, 2)
        self.tile_setup()
        self(f"""
            s_mov_b32 s96, -1
            s_mov_b32 s98, 0
            s_mov_b32 s100, -1
            s_mov_b32 s101, {((o["bias"] * 32) - o["gapr"] * 20) & 0xffffffff}
            s_cmp_eq_u32 s76, 0
            s_cselect_b32 s101, {((o["bias"] * 32) + o["gapr"] * 12) & 0xffffffff}, s101
            s_sub_u32 s99, s2, {8 * o["smp0"]}
            s_cmp_lt_u32 s99, 16
            s_cselect_b32 s99, s99, 64""")
        self.control(0)
        self.spin_lds(C_T, 1, sleep=16)
        self(f"""
            s_cmp_ge_u32 s56, 40
            s_cbranch_scc1 L_noffn
            s_lshl_b32 s75, s56, 2
            s_add_u32 s75, s75, s72
            s_lshl_b32 s75, s75, 9
            s_add_u32 s75, s75, {YP + 32 * 10240}
            s_add_u32 s13, s57, 32
            s_lshl_b32 s13, s13, 3
            s_add_u32 s13, s13, s72
            s_lshl_b32 s13, s13, 10
            s_cmp_eq_u32 s72, 3
            s_cbranch_scc1 L_fsync""")
        self.gather_tile("v229", "v233", 16, True, L_OBUF)
        self("L_fsync:\ns_waitcnt vmcnt(0)")
        self.jitter("h", 13)
        self.lds_inc(C_HS)
        self.spin_lds(C_HS, 4, sleep=4)
        self.fragments()
        self("s_waitcnt lgkmcnt(0)")
        self.project(False)
        self(f"""
            L_noffn:
            s_cmp_lg_u32 s76, 0
            s_cbranch_scc1 L_noproj
            s_lshl_b32 s10, s39, 2
            s_add_u32 s10, s10, s72
            s_lshl_b32 s10, s10, 9
            s_mul_i32 s75, s77, 10240
            s_add_u32 s75, s75, s10
            s_add_u32 s75, s75, {YP}
            s_and_b32 s13, s2, 7
            s_lshl_b32 s13, s13, {o["vsh"]}
            s_add_u32 s13, s13, {VR}
            v_lshlrev_b32 v9, {o["vsh"] + 3}, v2
            s_mov_b32 exec_hi, 0
            buffer_load_dwordx2 v[10:11], v9, s[44:47], s13 offen sc1
            s_waitcnt vmcnt(0)
            v_lshrrev_b32 v11, 1, v11
            v_xor_b32 v10, s92, v10
            v_bitop3_b32 v10, v10, v11, s7 bitop3:0xf6
            v_cmp_ne_u32 vcc, 0, v10
            s_mov_b32 exec_hi, -1
            s_cmp_eq_u64 vcc, 0
            s_cselect_b32 s58, 1, 0""")
        self("L_noproj:")
        self.stamp(5)
        self.stamp(10, 2)
        self.spin_lds(C_VOTE, 1, sleep=4, wide=True)
        self(f"""
            s_mov_b32 s59, s11""")
        self.prep(0)
        self.stamp(6)
        self.prep(1)
        self.stamp(7)
        self("s_cmp_lg_u32 s72, 3\ns_cbranch_scc1 L_pubo")
        self.control(o["sit"], check=False)
        self.scale()
        self.control(27, check=False, guard=True)
        if o["pf"] == 2:
            self("""
                s_cmp_ge_u32 s2, 16
                s_cbranch_scc1 L_nopf2
                s_getpc_b64 s[14:15]
                L_pf2pc:
                s_sub_u32 s14, s14, L_pf2pc-L_vflush
                s_subb_u32 s15, s15, 0
                v_lshlrev_b32 v9, 7, v2
                v_min_u32 v10, L_helper-L_vflush, v9
                v_add_u32 v9, L_pf2pc-L_vflush, v9
                v_min_u32 v9, L_table-L_vflush, v9
                global_load_dword v254, v10, s[14:15]
                global_load_dword v254, v9, s[14:15]
                L_nopf2:""")
        self.control(o['clast'], check=False)
        self("s_cmp_lg_u32 s76, 0\ns_cbranch_scc1 L_end")

        def across(r):
            self.rows4_reduce(r)
            for ctl in ("row_ror:4", "row_ror:8"):
                self(f"s_nop 1\nv_add_f32_dpp v{r}, v{r}, v{r} {ctl} row_mask:0xf bank_mask:0xf")
            self.bf16_round(r)

        self(f"""
            v_lshrrev_b32 v52, 2, v2
            v_mul_u32_u24 v52, 10240, v52
            v_and_b32 v5, 3, v2
            v_lshl_add_u32 v52, v5, 4, v52
            v_mul_u32_u24 v53, 1280, v4
            v_lshl_add_u32 v53, v5, 1, v53
            s_lshl_b32 s62, s39, 5
            s_add_u32 s62, s62, s77
            s_lshl_b32 s16, s62, 6
            s_add_u32 s16, s16, {YP}
            s_add_u32 s17, s16, {16 * 10240}
            s_add_u32 s18, s16, {32 * 10240}
            s_lshl_b32 s62, s62, 3
            buffer_load_ushort v54, v53, s[48:51], s62 offen""")
        for e in range(4):
            self(f"v_mov_b32 v{40 + e}, 0")
        self("s_mov_b32 exec_hi, 0")
        self.poll([(40, f"buffer_load_dwordx4 v[40:43], v52, s[44:47], s18 offen sc1 {NT(o, 'Y')}")], 16)
        self("s_mov_b32 exec_hi, -1")
        across(40)
        self("v_lshlrev_b32 v46, 16, v54")
        YL = [(8 + 4*i, f"buffer_load_dwordx4 v[{8 + 4*i}:{11 + 4*i}], v52, s[44:47], s{16 + i} offen sc1") for i in range(2)]
        trig = {"iss": (C_ISS, 4), "o1": (C_OCNT + 8, 1), "o4": (C_OCNT + 8, 4), "w": (C_WRDY, 1), "t15": (C_T + 120, 1),
                "t29": (C_T + 116, 1)}
        self.spin_lds(*trig[o["trig"]], sleep=o["tsleep"])
        self("s_setprio 3")
        if o["ytouch"] == 1:
            self("\n".join(ins for _, ins in YL))
        self.jitter("h", 12)
        self.tile_issue("s71", o["tdepth"])
        if o["ytouch"] == 2:
            self("\n".join(f"{ins} {NT(o, 'T')}" for _, ins in YL))
        self("s_waitcnt vmcnt(0)")
        self.lds_inc(C_WRDY)
        self.stamp(8)
        self("s_branch L_frag")
        self(f"""
            L_pubo:
            v_mov_b32 v52, 0
            v_mov_b32 v53, 0
            s_bcnt1_i32_b32 s10, s95
            s_add_u32 s10, s10, s72
            s_cmp_lt_u32 s10, 3
            s_cbranch_scc1 L_pubdone
            s_cmp_eq_u32 s72, 2
            s_cbranch_scc1 L_pubdone
            s_mul_i32 s10, s72, 6144
            v_add_u32 v40, s10, v229
            v_mov_b32 v42, v229
            s_lshl_b32 s10, s69, 3
            v_mov_b32 v45, s10""")
        self.partial_slot("s68", "s69", "s13")
        self.spin_lds(C_SC, 1, sleep=16, wide=True, addr="v45")
        self("s_mov_b32 s73, s11\nv_mov_b32 v44, v236\nv_mov_b32 v45, v237\nv_mov_b32 v46, v238\nv_mov_b32 v47, v239")
        self.spin_lds(C_OCNT, 4, sleep=8, addr="v231")
        self.spin_lds(C_T + 4 * o["pit"], 1, sleep=4)
        self.jitter("h", 11)
        self("s_branch L_pub\nL_pubdone:")
        self.stamp(8)
        self(f"""
            s_cmp_lg_u32 s76, 0
            s_cbranch_scc1 L_end
            s_mov_b32 s63, 0
            s_lshl_b32 s16, s77, 13
            s_lshl_b32 s10, s72, 8
            s_add_u32 s16, s16, s10
            s_add_u32 s16, s16, {OP}
            s_add_u32 s17, s16, 0x40000
            s_add_u32 s18, s16, 0x80000
            s_add_u32 s19, s16, 0xc0000
            s_cmp_ge_u32 s77, 22
            s_cselect_b32 s20, -1, 0
            v_lshlrev_b32 v47, 10, v4
            v_lshl_add_u32 v47, v3, 4, v47
            v_lshrrev_b32 v48, 1, v4
            v_mul_u32_u24 v48, 0x40800, v48
            v_sub_u32 v48, 0x41000, v48
            v_add_u32 v48, v48, v47
            v_lshlrev_b32 v44, 3, v3
            v_lshl_add_u32 v44, v4, 1, v44
            s_lshl_b32 s10, s72, 7
            v_add_u32 v44, s10, v44
            v_mov_b32 v24, 0
            v_mov_b32 v25, 0
            v_mov_b32 v26, 0
            v_mov_b32 v27, 0""")
        self.spin_lds(*trig[o["gtrig"]], sleep=o["tsleep"])
        self("s_setprio 3")
        if not o["g4"]:
            self.gather_o((0, 1), o["osleep"])
            if o["g3trig"]:
                self.spin_lds(*trig[o["g3trig"]], sleep=1)

        def early_fragments():
            self(f"""
                s_cmp_lg_u32 s63, 0
                s_cbranch_scc1 L_nofrag
                ds_read_b32 v6, v1 offset:{C_WRDY}
                s_waitcnt lgkmcnt(0)
                v_readfirstlane_b32 s63, v6
                s_cmp_eq_u32 s63, 0
                s_cbranch_scc1 L_nofrag""")
            self.fragments()
            self("L_nofrag:")

        self.gather_o((0, 1, 2, 3) if o["g4"] else (2, 3), o["psleep"], hook=early_fragments)
        self.stamp(9)
        self("s_cmp_lg_u32 s63, 0\ns_cbranch_scc1 L_proj\nL_fragwait:")
        self.spin_lds(C_WRDY, 1, sleep=o["wsleep"])
        self("L_frag:")
        self.fragments()
        self("L_proj:")
        self.jitter("h", 14)
        self.project(True)
        self.stamp(10)
        self("s_cmp_lg_u32 s72, 3\ns_cbranch_scc1 L_end")
        self.srd(52, 32, 5120)

        def result():
            for i in range(4):
                self(f"v_add_f32 v{8 + i}, v{8 + i}, v{12 + i}")
            across(8)
            self("v_add_f32 v8, v46, v8")
            self.bf16_round(8)
            self("v_add_f32 v8, v8, v40\nv_cvt_pk_bf16_f32 v8, v8, v8")

        self.poll(YL, o["psleep"], inner=result)
        self(f"""
            s_mov_b32 exec_lo, 0x000f000f
            s_mov_b32 exec_hi, 0x000f000f
            buffer_store_short v8, v53, s[52:55], s62 offen {o['outst']}""")
        self.stamp(9)

    def finish(self):
        self("L_end:")
        if self.o["stamps"]:
            self(f"""
                s_waitcnt vmcnt(0)
                s_memrealtime s[78:79]
                s_getreg_b32 s101, hwreg(HW_REG_XCC_ID)
                s_waitcnt lgkmcnt(0)
                s_mov_b32 s91, s78
                s_mov_b64 exec, 1
                s_lshl_b32 s10, s2, 3
                s_add_u32 s10, s10, s3
                s_lshl_b32 s10, s10, 6
                s_add_u32 s10, s10, {STAMPS}
                v_mov_b32 v5, s10""")
            for i in range(12):
                self(f"v_mov_b32 v{8 + i}, s{80 + i}")
            self("v_mov_b32 v20, s101\nv_mov_b32 v21, s59\nv_mov_b32 v22, s6\nv_mov_b32 v23, s76")
            for i in range(4):
                self(f"global_store_dwordx4 v5, v[{8 + 4*i}:{11 + 4*i}], s[36:37] offset:{16 * i}")
        if self.o["enc"]:
            wave, idx, mult = (int(x) for x in self.o["enc"].split("x"))
            if wave < 4:
                self("s_and_b32 s10, s2, 7\ns_cmp_lg_u32 s10, 3\ns_cbranch_scc1 L_exit")
            self(f"""
                s_cmp_lg_u32 s3, {wave}
                s_cbranch_scc1 L_exit
                s_sub_u32 s10, s{80 + idx}, s80
                s_mul_i32 s10, s10, {mult}
                s_min_u32 s10, s10, 40000
                s_add_u32 s10, s10, 20000
                L_encl:
                s_memrealtime s[78:79]
                s_waitcnt lgkmcnt(0)
                s_sub_u32 s11, s78, s80
                s_cmp_lt_u32 s11, s10
                s_cbranch_scc1 L_encl""")
        self("L_exit:\ns_endpgm")

    def build(self):
        head = open(f"cdna_kernels/{NAME}.s.ref").read().split("\n") if self.o["head"] else []
        out = [ln for ln in head if ln.startswith(";") and "@launch" not in ln][:14]
        out.append(f"; @launch grid=(256,1,1) block=(512,1,1) lds={LDS_BYTES}")
        out.append(DOC.strip("\n"))
        out += ['.amdgcn_target "amdgcn-amd-amdhsa--gfx950"', ".text", f".globl {NAME}_kernel", ".p2align 8",
                f".type {NAME}_kernel,@function", f"{NAME}_kernel:"]
        self.entry()
        self.streamer()
        self.helper()
        self.finish()
        out += self.L
        out += [".p2align 8", ".type L_table,@object", "L_table:"]
        T = row_table()
        for sig in range(2):
            for w in range(4):
                for g in range(8):
                    out.append("  .long " + ", ".join(str(T[sig][w][g][t] * 384) for t in range(8)))
        out.append(".size L_table, 2048")
        out += ['.section .rodata,"a"', ".p2align 6", f".amdhsa_kernel {NAME}_kernel",
                "  .amdhsa_next_free_vgpr 256", "  .amdhsa_next_free_sgpr 102", "  .amdhsa_accum_offset 256",
                "  .amdhsa_group_segment_fixed_size 0", "  .amdhsa_kernarg_size 88", "  .amdhsa_user_sgpr_count 2",
                "  .amdhsa_user_sgpr_kernarg_segment_ptr 1", "  .amdhsa_system_sgpr_workgroup_id_x 1",
                ".end_amdhsa_kernel"]
        return "\n".join(out) + "\n"


DOC = """
; A region is the 3 MiB of one (batch, head), cut into 16 windows of 192 KiB. Three pairs of workgroups share
; hand-off through d_ws carries a launch nonce that workgroup 0 puts into d_debug. The number of loads in
"""

DEFAULTS = dict(stamps=0, head=1, gap=40, numa="near", scst="sc1 nt", scld="sc1 nt", qst="sc1", asleep=8, qsleep=8,
                tsleep=1, psleep=0, fsleep=24, ntry=4, nsleep=2, enc="", series=0, ctl=2, gain=13000, gains=13000,
                cmax=15, bias=-40, tdepth=32, hsplit=0, ackfirst=0, oit=16, odelay=0, ost="sc1", old="sc1", agn=8, qdelay=0, sit=24, latepub=2, pdelay=0, osleep=4, cmaxs=12, pmin=1, ostart=1, tst="sc1", tld="sc1", outst="", pf=1, bar2=1, tat=1, wsleep=0, w0=3, trig="o1", gtrig="o4", tearly=0, tdepth0=40, vat=5, qat=11, mat=8, g4=0, g3trig="", rdelay=40, wadd=2, rot=0, tabe=2, tabsrc=0, ilv=0, warm=1, local=1, ytouch=2, gapr=55, early=0, edelay=0, esleep=8, pw=3, boost0=0, nominal=646, rlag=2, clast=29, nomn=3, cfirst=2, pest="avg", nsmp=16, stag=11, sst=1, skip="", hprio=1, hold=0, smp0=13, w2last=1, pit=30, tabw=1, scl="seg", nt="", cpack=2, cstr=640, vsh=3, fsh=3, fsc=1, gfrom=0, jit="", jseed=0)

if __name__ == "__main__":
    opt = dict(DEFAULTS)
    for kv in sys.argv[2:]:
        k, v = kv.split("=")
        assert k in opt, k
        opt[k] = int(v) if isinstance(DEFAULTS[k], int) else v.replace("+", " ")
    open(sys.argv[1], "w").write(Gen(opt).build())
```

```python
import struct
import sys

NAME = "parallel_sum__mha_block_cached__dense_activation_silu__decode"
KV_BYTES = 4 * 32 * 8192 * 192 * 2
REGION = 3 << 20
WIN = 196608

QP, YP, FL, VR, ST, CT, SC, OP, WS_END = (
    0x0, 0x140000, 0x1E0000, 0x1B8000, 0x1C0000, 0x60000, 0x200000, 0x400000, 0x500000)
STAMPS = 0x1000000
L_S, L_P, L_ORED, L_OBUF, L_Q, L_C, L_SER, L_WT = 0x0, 0x2000, 0x4000, 0xA000, 0xA600, 0xAC00, 0xAE00, 0xB000
C_NONCE, C_WRDY, C_VOTE, C_KSEG, C_PRDY, C_MAXC, C_HS, C_F = (
    L_C + 0, L_C + 4, L_C + 8, L_C + 80, L_C + 20, L_C + 24, L_C + 28, L_C + 32)
C_CTL, C_QRDY, C_ICNT, C_OCNT, C_MARK, C_T = L_C + 40, L_C + 48, L_C + 52, L_C + 64, L_C + 112, L_C + 256
C_WL, C_FCNT, C_SCNT, C_ISS, C_SC, L_STAT = L_C + 128, L_C + 56, L_C + 60, L_C + 120, L_C + 192, L_C + 384
TROW = 1088
LDS_BYTES = 0xB000 + 48 * TROW
NEG = "0xff7f0000"


def f32(x):
    return "0x%08x" % struct.unpack("<I", struct.pack("<f", x))[0]


def NT(o, c):
    return "nt" if c in o["nt"] else ""


def block_rows(b):
    t, r = divmod(b, 3)
    lo, hi = ((0, 21), (21, 43), (43, 64))[r]
    return list(range(64 * t + lo, 64 * t + hi))


def row_table():
    T = []
    for sig in range(2):
        lo = sum((block_rows(sig + o) for o in (0, 8, 16, 10, 18, 2)), [])
        up = sum((block_rows(sig + o + 4) for o in (0, 8, 16, 10, 18, 2)), [])
        T.append([[[(lo if g < 4 else up)[4 * (16 * (w >> 1) + 2 * t + (w & 1)) + (g & 3)] for t in range(8)]
                   for g in range(8)] for w in range(4)])
    assert sorted(r for s in T for w in s for g in w for r in g) == list(range(512))
    return T


class Gen:
    def __init__(self, opt):
        self.o = opt
        self.L = []
        self.nlab = 0
        self.in_helper = False

    def __call__(self, text):
        for line in text.strip("\n").split("\n"):
            line = line.strip()
            if line:
                self.L.append(line if line.endswith(":") else "  " + line)

    def note(self, text):
        for line in text.strip("\n").split("\n"):
            self.L.append("  ; " + line.strip())

    def jitter(self, kind, salt):
        if kind not in self.o["jit"]:
            return
        lp, dn = self.lab("jl"), self.lab("jd")
        who = "s_mov_b32 s78, s2" if kind == "e" else "s_lshl_b32 s78, s2, 3\ns_add_u32 s78, s78, s3"
        self(f"""
            {who}
            s_add_u32 s78, s78, {salt * 7919 * (self.o["jseed"] + 1) if kind != "e" or self.o["jseed"] else 0}
            s_mul_i32 s78, s78, 0x9e3779b1
            s_lshr_b32 s79, s78, 29
            s_cmp_lg_u32 s79, 0
            s_cbranch_scc1 {dn}
            s_bfe_u32 s78, s78, 0x40018
            {lp}:
            s_sleep 127
            s_sub_u32 s78, s78, 1
            s_cbranch_scc0 {lp}
            {dn}:""")

    def lab(self, base):
        self.nlab += 1
        return f"L_{base}{self.nlab}"

    def stamp(self, idx, mode=1):
        if self.o["stamps"] == mode or (self.o["stamps"] and not self.in_helper):
            self(f"s_memrealtime s[78:79]\ns_waitcnt lgkmcnt(0)\ns_mov_b32 s{80 + idx}, s78")

    def spin_lds(self, off, target, sleep=1, wide=False, addr="v1"):
        lp, dn = self.lab("sp"), self.lab("sd")
        self("s_mov_b32 s12, 0x100000")
        self(f"{lp}:")
        if wide:
            self(f"ds_read_b64 v[6:7], {addr} offset:{off}")
        else:
            self(f"ds_read_b32 v6, {addr} offset:{off}")
        self("s_waitcnt lgkmcnt(0)\nv_readfirstlane_b32 s10, v6")
        if wide:
            self("v_readfirstlane_b32 s11, v7")
        self(f"""
            s_cmp_ge_u32 s10, {target}
            s_cbranch_scc1 {dn}
            s_sleep {sleep}
            s_sub_u32 s12, s12, 1
            s_cbranch_scc0 {lp}
            s_branch L_end
            {dn}:""")

    def lds_inc(self, off, ret=False, addr="v1"):
        self("s_mov_b64 exec, 1\nv_mov_b32 v5, 1")
        if ret:
            self(f"ds_add_rtn_u32 v6, {addr}, v5 offset:{off}\ns_waitcnt lgkmcnt(0)\nv_readfirstlane_b32 s10, v6")
        else:
            self(f"ds_add_u32 {addr}, v5 offset:{off}")
        self("s_mov_b64 exec, -1")

    def tags(self, t):
        self(f"""
            s_mul_i32 s10, s92, 0x9e3779b1
            s_mul_hi_u32 s11, s92, 0x85ebca6b
            s_mul_i32 s12, s92, 0xc2b2ae35
            s_xor_b32 s11, s11, s12
            v_mov_b32 v{t}, s10
            v_mov_b32 v{t+1}, s11
            v_and_b32 v{t+2}, 1, v0
            v_cndmask_b32 v{t}, v{t}, v{t+1}, s[64:65]
            v_lshlrev_b32 v{t+2}, 4, v{t+2}
            v_lshrrev_b32 v{t}, v{t+2}, v{t}
            v_lshrrev_b32 v{t+1}, 4, v{t}
            v_lshrrev_b32 v{t+2}, 8, v{t}
            v_lshrrev_b32 v{t+3}, 12, v{t}""")

    def tag_data(self, r, t):
        for e in range(4):
            self(f"v_bfi_b32 v{r + e}, 15, v{t + e}, v{r + e}")

    def poll(self, loads, sleep, t=236, half={}, hook=None, inner=None):
        lp, dn = self.lab("pl"), self.lab("pd")
        n = len(loads)
        self("s_mov_b32 s12, 0x40000")
        self(f"{lp}:")
        for i, (r, ins) in enumerate(loads):
            if i in half:
                self(f"s_mov_b32 exec_hi, {half[i]}\n{ins}\ns_mov_b32 exec_hi, -1")
            else:
                self(ins)
        if hook:
            hook()
        for i, (r, ins) in enumerate(loads):
            self(f"s_waitcnt vmcnt({n - 1 - i})")
            if i in half:
                self(f"s_mov_b32 exec_hi, {half[i]}")
            for e in range(4):
                if i == 0 and e == 0:
                    self(f"v_xor_b32 v5, v{r}, v{t}")
                else:
                    self(f"v_bitop3_b32 v5, v5, v{r + e}, v{t + e} bitop3:0xf6")
            for e in range(4):
                self(f"v_and_b32 v{r + e}, -16, v{r + e}")
            if i in half:
                self("s_mov_b32 exec_hi, -1")
        self("v_and_b32 v5, 15, v5\nv_cmp_ne_u32 vcc, 0, v5")
        if inner:
            inner()
        self(f"""
            s_cmp_eq_u64 vcc, 0
            s_cbranch_scc1 {dn}""")
        if sleep:
            self(f"s_sleep {sleep}")
        self(f"""
            s_sub_u32 s12, s12, 1
            s_cbranch_scc0 {lp}
            s_branch L_end
            {dn}:""")

    def rows4_reduce(self, *rs, extra=None):
        first = list(rs) + ([extra] if extra else [])
        self("s_nop 1")
        for r in first:
            self(f"v_permlane16_swap_b32 v{r}, v{r+1}\nv_permlane16_swap_b32 v{r+2}, v{r+3}")
        self("s_nop 0")
        for r in first:
            self(f"v_add_f32 v{r}, v{r}, v{r+1}\nv_add_f32 v{r+2}, v{r+2}, v{r+3}")
        if extra:
            self(f"""
                s_mov_b32 exec_hi, 0
                v_add_f32 v{rs[-1]}, v{rs[-1]}, v{extra}
                v_add_f32 v{rs[-1] + 2}, v{rs[-1] + 2}, v{extra + 2}
                s_mov_b32 exec_lo, 0
                s_mov_b32 exec_hi, -1
                v_add_f32 v{rs[-2]}, v{rs[-2]}, v{extra}
                v_add_f32 v{rs[-2] + 2}, v{rs[-2] + 2}, v{extra + 2}
                s_mov_b32 exec_lo, -1""")
        self("s_nop 1")
        for r in rs:
            self(f"v_permlane32_swap_b32 v{r}, v{r+2}")
        self("s_nop 0")
        for r in rs:
            self(f"v_add_f32 v{r}, v{r}, v{r+2}")

    def row16_allreduce(self, op, r):
        for ctl in ("quad_perm:[1,0,3,2]", "quad_perm:[2,3,0,1]", "row_half_mirror", "row_mirror"):
            self(f"s_nop 1\n{op}_dpp v{r}, v{r}, v{r} {ctl} row_mask:0xf bank_mask:0xf")

    def half_allreduce(self, op, r, t):
        self.row16_allreduce(op, r)
        for sw in ("v_permlane16_swap_b32",):
            self(f"v_mov_b32 v{t}, v{r}\ns_nop 1\n{sw} v{r}, v{t}\ns_nop 1\n{op} v{r}, v{r}, v{t}")

    def bf16_round(self, r):
        self(f"v_cvt_pk_bf16_f32 v{r}, v{r}, v{r}\nv_lshlrev_b32 v{r}, 16, v{r}")

    def srd(self, d, p, size):
        self(f"s_mov_b32 s{d}, s{p}\ns_and_b32 s{d+1}, s{p+1}, 0xffff\ns_mov_b32 s{d+2}, {size}\ns_mov_b32 s{d+3}, 0x20000")

    def entry(self):
        o = self.o
        PF = ""
        if o["pf"]:
            PF = f"""
                s_cmp_ge_u32 s2, 16
                s_cbranch_scc1 L_nopf
                s_getpc_b64 s[14:15]
                L_pfpc:
                v_lshlrev_b32 v3, 6, v0
                v_min_u32 v3, L_table+2044-L_pfpc, v3
                global_load_dword v254, v3, s[14:15]
                L_nopf:"""
        self(f"""
            s_cmp_ge_u32 s2, 256
            s_cbranch_scc1 L_exit
            s_load_dwordx16 s[16:31], s[0:1], 0
            {PF}
            s_load_dwordx4 s[32:35], s[0:1], 64
            s_load_dwordx2 s[36:37], s[0:1], 80
            s_memrealtime s[94:95]
            v_lshrrev_b32 v2, 6, v0
            v_mov_b32 v1, 0
            v_readfirstlane_b32 s3, v2
            v_and_b32 v2, 63, v0
            v_and_b32 v5, 0x7f, v0
            v_lshlrev_b32 v5, 2, v5
            ds_write_b32 v5, v1 offset:{L_C}
            s_getreg_b32 s7, hwreg(HW_REG_XCC_ID, 0, 4)
            s_bfe_u32 s9, s7, 0x10002
            s_bfe_u32 s4, s2, 0x10002
            s_bfe_u32 s5, s2, 0x20003
            s_and_b32 s11, s2, 3
            s_lshr_b32 s10, s2, 5
            s_lshl_b32 s6, s11, 3
            s_add_u32 s6, s6, s10
            s_lshl_b32 s8, s5, 1
            s_add_u32 s8, s8, s4""")
        self("""
            s_lshl_b32 s38, s10, 2
            s_add_u32 s38, s38, s11
            s_sub_u32 s11, s8, 5
            s_lshl_b32 s11, s11, 5
            s_add_u32 s38, s38, s11""")
        if o["stamps"]:
            for i in range(1, 12):
                self(f"s_mov_b32 s{80 + i}, 0")
        self.jitter("e", 1)
        self("s_cmp_ge_u32 s3, 4\ns_cbranch_scc1 L_helper")

    def masks(self):
        self("""
            s_mov_b32 s64, 0xcccccccc
            s_mov_b32 s65, 0xcccccccc
            s_mov_b32 s66, 0xaaaaaaaa
            s_mov_b32 s67, 0xaaaaaaaa""")

    def roles(self):
        self("""
            s_and_b32 s10, s2, 7
            s_lshr_b32 s77, s2, 3
            s_sub_u32 s39, s10, s4
            s_lshr_b32 s76, 0x190, s10
            s_and_b32 s76, s76, 2""")

    def args_ready(self):
        self("s_waitcnt lgkmcnt(0)")
        if self.o["stamps"]:
            self("s_mov_b32 s80, s94")

    def plan(self):
        self("""
            s_lshr_b32 s27, s2, 3
            s_add_u32 s0, s2, s27
            s_and_b32 s0, s0, 3
            s_lshl_b32 s27, s27, 2
            s_add_u32 s27, s27, s0
            s_mul_i32 s1, s27, 171
            s_lshr_b32 s1, s1, 9
            s_mul_i32 s94, s1, 3
            s_sub_u32 s94, s27, s94
            s_lshl_b32 s95, s94, 3
            s_or_b32 s95, s95, 0x80000
            s_bfe_u32 s0, 0x150b00, s95
            s_lshl_b32 s26, s1, 5
            s_add_u32 s0, s0, s26
            s_bfe_u32 s95, 0x0b0600, s95
            s_lshl_b32 s1, s1, 4
            s_add_u32 s1, s1, s95
            s_add_u32 s1, s1, 1365
            s_movk_i32 s95, 0x400
            s_cmp_eq_u32 s94, 1
            s_cselect_b32 s26, 10, 11
            s_cselect_b32 s95, 0x210, s95
            s_cmp_eq_u32 s27, 126
            s_cselect_b32 s1, 1360, s1
            s_cmp_eq_u32 s27, 127
            s_cselect_b32 s1, s0, s1
            s_cselect_b32 s26, 5, s26
            s_cselect_b32 s95, 16, s95
            s_bitset1_b32 s95, 15""")

    def region_of(self, win, region, row):
        self(f"""
            s_cmp_lt_u32 {win}, s26
            s_cselect_b32 {region}, s0, s1
            s_add_u32 {region}, {region}, {win}
            s_lshr_b32 {region}, {region}, 4
            s_and_b32 {row}, {region}, 1
            s_cmp_ge_u32 {region}, 86
            s_cselect_b32 {row}, 2, {row}""")

    def partial_slot(self, region, row, dst):
        self(f"""
            s_cmp_lg_u32 s94, 1
            s_cselect_b32 s10, 1, 0
            s_cmp_eq_u32 {row}, 1
            s_cselect_b32 s10, s10, s94
            s_lshl_b32 {dst}, {region}, 2
            s_add_u32 {dst}, {dst}, s10
            s_lshl_b32 {dst}, {dst}, 1
            s_add_u32 {dst}, {dst}, s4
            s_lshl_b32 {dst}, {dst}, 10
            s_add_u32 {dst}, {dst}, {OP}""")

    def lane_window(self, i, dst):
        self(f"""
            v_cmp_gt_u32 vcc, s26, v{i}
            v_add_u32 v{dst}, s1, v{i}
            v_add_u32 v7, s0, v{i}
            v_cndmask_b32 v{dst}, v{dst}, v7, vcc""")

    def vote_load(self):
        self(f"""
            s_mul_i32 s10, s0, 6
            s_add_u32 s10, s10, 33
            s_lshr_b32 s10, s10, 10
            s_mul_i32 s11, s1, 6
            s_add_u32 s11, s11, 81
            s_lshr_b32 s11, s11, 10
            s_sub_u32 s11, s11, s10
            v_bfe_u32 v9, v0, 4, 1
            v_mul_u32_u24 v9, s11, v9
            v_bfe_u32 v10, v0, 5, 1
            v_mad_u32_u24 v9, v10, 12, v9
            v_add_u32 v9, s10, v9
            v_and_b32 v10, 15, v0
            v_mad_u32_u24 v9, v9, 10, v10
            v_cmp_lt_u32 vcc, 8, v10
            s_andn2_b32 s11, s2, 4
            v_add_u32 v9, 16, v9
            v_mov_b32 v10, s11
            v_cndmask_b32 v9, v9, v10, vcc
            v_lshlrev_b32 v9, {self.o["vsh"]}, v9
            s_mov_b32 s15, {VR}
            buffer_load_dwordx2 v[12:13], v9, s[44:47], s15 offen sc1 {NT(self.o, 'R')}""")

    def vote_eval(self):
        o = self.o
        self.spin_lds(C_NONCE, 1, sleep=0)
        self(f"""
            s_mov_b32 s92, s10
            s_mov_b32 s12, 0x40000
            L_vchk:
            v_cmp_ne_u32 vcc, s92, v12
            s_cmp_eq_u64 vcc, 0
            s_cbranch_scc1 L_vok
            s_sleep {o["asleep"]}
            buffer_load_dwordx2 v[12:13], v9, s[44:47], s15 offen sc1 {NT(self.o, 'R')}
            s_waitcnt vmcnt(0)
            s_sub_u32 s12, s12, 1
            s_cbranch_scc0 L_vchk
            s_branch L_end
            L_vok:
            v_readlane_b32 s11, v13, 15
            v_and_b32 v9, 15, v0""")
        self.lane_window(9, 10)
        self("""
            v_cndmask_b32 v11, 16, 0, vcc
            v_and_b32 v8, 1, v13
            v_cmp_eq_u32 vcc, 1, v8
            v_and_b32 v9, 16, v0
            v_lshl_add_u32 v11, v9, 1, v11
            v_mad_u32_u24 v10, v10, 6, 3
            v_lshrrev_b32 v10, 6, v10
            s_lshr_b32 s11, s11, 3
            s_xor_b32 s11, s11, s4
            v_lshrrev_b64 v[8:9], v11, vcc
            v_and_b32 v8, 0x1ff, v8
            v_bcnt_u32_b32 v8, v8, 3
            v_lshrrev_b32 v8, 3, v8
            v_xor_b32 v8, v8, v10
            v_xor_b32 v8, s11, v8
            v_and_b32 v8, 1, v8
            v_cmp_eq_u32 vcc, 1, v8
            s_mov_b32 s59, vcc_lo""")
        if o["numa"] == "far":
            self("s_not_b32 s59, s59")
        elif o["numa"] == "mix":
            self("s_xor_b32 s10, s4, s6\ns_bitcmp1_b32 s10, 0\ns_cselect_b32 s59, -1, 0\ns_xor_b32 s59, s59, 0x33335555")
        self(f"""
            v_mov_b32 v6, 1
            v_mov_b32 v7, s59
            ds_write_b64 v1, v[6:7] offset:{C_VOTE}""")

    def series(self):
        if self.o["series"]:
            self(f"""
                s_memrealtime s[78:79]
                s_lshl_b32 s10, s3, 5
                s_add_u32 s10, s10, s58
                s_lshl_b32 s10, s10, 2
                v_mov_b32 v6, s10
                s_waitcnt lgkmcnt(0)
                v_mov_b32 v7, s78
                ds_write_b32 v6, v7 offset:{L_SER}""")

    def advance_window(self, may_switch):
        self.series()
        self(f"""
            s_add_u32 s58, s58, 1
            s_and_b32 s10, s58, 15
            s_cmp_lt_u32 s10, s26
            s_cselect_b32 s57, s0, s1
            s_add_u32 s57, s57, s10
            s_mul_i32 s57, s57, {WIN}""")
        if may_switch:
            self("s_cmp_eq_u32 s58, 16\ns_cselect_b32 s40, s20, s40\ns_cselect_b32 s41, s63, s41")
        self("s_bitcmp1_b32 s59, s58\ns_cselect_b64 s[60:61], -1, 0")

    def issue(self, t, slot, wait):
        vo = 2 + (slot & 1)
        self(f"v_cndmask_b32 v{vo}, v{48 + t}, v{56 + t}, s[60:61]")
        if wait == "ctl":
            go = self.lab("go")
            self(f"""
                s_waitcnt vmcnt({6 + self.o["wadd"]})
                s_add_u32 s70, s70, s68
                s_cbranch_scc1 {go}
                s_waitcnt vmcnt({3 + self.o["wadd"]})
                s_add_u32 s71, s71, s69
                s_cbranch_scc0 {go}
                s_waitcnt vmcnt({self.o["wadd"]})
                {go}:""")
        elif wait is not None:
            self(f"s_waitcnt vmcnt({wait})")
        for j in range(3):
            r = 64 + slot * 12 + j * 4
            self(f"buffer_load_dwordx4 v[{r}:{r+3}], v{vo}, s[40:43], s57 offen offset:{128 * j} nt")

    def consume_k(self, slot):
        t = slot & 7
        r = 64 + slot * 12
        for i in range(1 if "k" in self.o["skip"] else 12):
            c = "0" if i == 0 else f"v{20 + t}"
            self(f"v_dot2_f32_bf16 v{20 + t}, v{r + i}, v{8 + i}, {c}")
        if t == 7:
            self("s_nop 2")
            for k in range(4):
                self(f"v_add_f32_dpp v{20 + k}, v{20 + k}, v{20 + k} row_shl:4 row_mask:0xf bank_mask:0x5")
            for k in range(4):
                self(f"v_add_f32_dpp v{20 + k}, v{24 + k}, v{24 + k} row_shr:4 row_mask:0xf bank_mask:0xa")
            for k in range(4):
                self(f"v_add_f32_dpp v{24 + k}, v{20 + k}, v{20 + k} quad_perm:[2,3,0,1] row_mask:0xf bank_mask:0xf")
            self("""
                v_cndmask_b32 v20, v24, v26, s[64:65]
                v_cndmask_b32 v21, v25, v27, s[64:65]
                s_nop 0
                v_add_f32_dpp v24, v20, v20 quad_perm:[1,0,3,2] row_mask:0xf bank_mask:0xf
                v_add_f32_dpp v25, v21, v21 quad_perm:[1,0,3,2] row_mask:0xf bank_mask:0xf
                v_cndmask_b32 v28, v24, v25, s[66:67]""")
            self.bf16_round(28)
            self(f"""
                v_mul_f32 v28, {f32(192 ** -0.5)}, v28
                v_cvt_pk_bf16_f32 v28, v28, v28
                ds_write_b16 v4, v28 offset:{L_S + (slot >> 3) * 512}""")

    def consume_v(self, slot):
        t = slot & 7
        r = 64 + slot * 12
        a = 20 + (slot & 1) * 4
        if t == 0:
            self("s_waitcnt lgkmcnt(0)")
        for w in range(4):
            self(f"v_perm_b32 v{a + w}, v{28 + (t >> 1)}, v{28 + (t >> 1)}, v{32 + (t & 1) * 4 + w}")
        self("s_nop 1")
        for j in range(3):
            self(f"v_mfma_f32_16x16x32_bf16 v[{8 + 4*j}:{11 + 4*j}], v[{a}:{a+3}], v[{r + 4*j}:{r + 4*j + 3}], v[{8 + 4*j}:{11 + 4*j}]")

    def flush_acc(self):
        self(f"""
            s_mov_b32 exec_lo, 0x00ff00ff
            s_mov_b32 exec_hi, 0xff00ff00
            s_nop 5
            ds_write_b128 v41, v[8:11] offset:{L_ORED}
            ds_write_b128 v41, v[12:15] offset:{L_ORED + 256}
            ds_write_b128 v41, v[16:19] offset:{L_ORED + 512}""")

    def publish_o(self):
        r = 64
        self("L_pub:\ns_mov_b32 exec_hi, 0xffff")
        for k in range(8):
            self(f"ds_read_b128 v[{r + 4*k}:{r + 3 + 4*k}], v40 offset:{L_ORED + 768 * k}")
        for k in range(4):
            self(f"s_waitcnt lgkmcnt({6 - 2*k})")
            for e in range(4):
                self(f"v_add_f32 v{r + 8*k + e}, v{r + 8*k + e}, v{r + 4 + 8*k + e}")
        for e in range(4):
            self(f"v_add_f32 v{r + e}, v{r + e}, v{r + 8 + e}\nv_add_f32 v{r + 16 + e}, v{r + 16 + e}, v{r + 24 + e}")
        for e in range(4):
            self(f"v_add_f32 v{r + e}, v{r + e}, v{r + 16 + e}")
        for e in range(4):
            self(f"v_mul_f32 v{r + e}, s73, v{r + e}")
        self.tag_data(r, 44)
        self(f"""
            buffer_store_dwordx4 v[{r}:{r+3}], v42, s[44:47], s13 offen {self.o["tst"]}
            s_mov_b64 exec, -1
            s_cmp_ge_u32 s3, 4
            s_cbranch_scc1 L_pubdone""")

    def streamer(self):
        o = self.o
        W = "ctl" if o["ctl"] else 3
        TAB = "\n".join(f"global_load_dwordx4 v[{48 + 4*i}:{51 + 4*i}], v8, s[14:15] offset:{(i >> 1) * 1024 + (i & 1) * 16}"
                        for i in range(4))
        self(f"""
            s_getpc_b64 s[14:15]
            L_pc:
            s_add_u32 s14, s14, L_table-L_pc
            s_addc_u32 s15, s15, 0
            v_lshrrev_b32 v8, 3, v0
            v_lshlrev_b32 v8, 5, v8
            s_max_u32 s12, s2, 16
            s_sub_u32 s12, s12, 16
            s_mul_i32 s12, s12, 205
            s_lshr_b32 s12, s12, 11
            s_cmp_ge_u32 s12, 12
            s_cselect_b32 s13, 12, 0
            s_sub_u32 s10, s12, s13
            s_lshl_b32 s10, s10, 3
            s_and_b32 s11, s2, 7
            s_add_u32 s10, s10, s11
            s_lshl_b32 s10, s10, 22
            s_and_b32 s11, s2, 63
            s_lshl_b32 s11, s11, 7
            s_add_u32 s10, s10, s11
            s_add_u32 s10, s10, 0x80000
            s_add_u32 s11, s10, 0x2000
            s_mov_b32 s54, {KV_BYTES}
            s_mov_b32 s55, 0x20000
            s_setprio {3 if o["hprio"] else 2}""")
        if o["tabw"] != 2:
            self(TAB)
        self.args_ready()
        if o["tabw"] == 2:
            self(TAB)
        self("""
            s_cmp_eq_u32 s13, 0
            s_cselect_b32 s52, s18, s20
            s_cselect_b32 s53, s19, s21
            s_and_b32 s53, s53, 0xffff""")
        self.plan()
        if o["tabw"]:
            self("s_waitcnt vmcnt(0)")
        self("""
            s_barrier
            s_cmp_lg_u32 s3, 0
            s_cbranch_scc1 L_noprobe
            s_mov_b64 exec, 1
            buffer_load_dword v6, v1, s[52:55], s10 offen nt
            buffer_load_dword v7, v1, s[52:55], s11 offen nt
            s_mov_b64 exec, -1
            L_noprobe:
            s_barrier""")
        self.srd(44, 36, WS_END)
        self(f"""
            s_cmp_lg_u32 s3, 0
            s_cbranch_scc1 L_pre
            s_waitcnt vmcnt(1)
            s_memtime s[10:11]
            s_waitcnt vmcnt(0)
            s_memtime s[12:13]
            s_waitcnt lgkmcnt(0)
            s_sub_u32 s10, s12, s10
            s_cmp_le_u32 s10, {o["gap"]}
            s_cselect_b32 s62, 1, 0
            s_xor_b32 s62, s62, s9""")
        self.jitter("s", 2)
        for k in range(4):
            self(f"""
                s_load_dword s92, s[34:35], {64 * k}
                s_waitcnt lgkmcnt(0)
                s_cmp_lg_u32 s92, 0
                s_cbranch_scc1 L_ndone
                s_sleep {o["nsleep"]}""")
        self(f"""
            s_mov_b32 s12, 0x40000
            L_npoll:
            global_load_dword v6, v1, s[34:35] sc1
            s_waitcnt vmcnt(0)
            v_readfirstlane_b32 s92, v6
            s_cmp_lg_u32 s92, 0
            s_cbranch_scc1 L_ndone
            s_sleep 4
            s_sub_u32 s12, s12, 1
            s_cbranch_scc0 L_npoll
            s_branch L_end
            L_ndone:
            s_lshl_b32 s11, s7, 1
            s_or_b32 s10, s62, s11
            s_lshl_b32 s11, s2, {o["vsh"]}
            s_add_u32 s11, s11, {VR}
            v_mov_b32 v6, s92
            v_mov_b32 v7, s10
            v_lshlrev_b32 v5, 3, v2
            s_mov_b64 exec, {(1 << (1 << (o["vsh"] - 3))) - 1}
            buffer_store_dwordx2 v[6:7], v5, s[44:47], s11 offen sc1 {NT(o, 'r')}
            s_mov_b64 exec, 0xff
            v_mov_b32 v8, {NEG}
            v_mov_b32 v9, s92
            v_mov_b32 v10, 0
            v_mov_b32 v11, s92
            v_lshlrev_b32 v12, 4, v2
            ds_write_b128 v12, v[8:11] offset:{L_STAT}
            ds_write_b32 v1, v6 offset:{C_NONCE}
            s_mov_b64 exec, -1""")
        self.stamp(1)
        self("""
            s_branch L_tabok
            L_pre:
            s_waitcnt vmcnt(0)
            L_tabok:
            s_setprio 1
            v_mov_b32 v9, 0
            v_and_b32 v40, 7, v0
            v_lshlrev_b32 v40, 4, v40""")
        for i in range(16):
            self(f"v_add_u32 v{48 + i}, v{48 + i}, v40")
        self.srd(40, 18, KV_BYTES)
        self(f"""
            s_and_b32 s63, s21, 0xffff
            v_lshlrev_b32 v4, 1, v0
            s_mul_i32 s57, s0, {WIN}
            s_mov_b32 s58, 0
            s_mov_b32 s68, 0
            s_mov_b32 s69, 0
            s_lshl_b32 s70, s3, 30
            s_lshl_b32 s71, s3, 30
            s_mov_b32 s72, -4
            s_mov_b32 s93, 1""")
        self("s_lshr_b32 s10, s3, 1\ns_cmp_lg_u32 s10, s4\ns_cselect_b64 s[60:61], -1, 0")

        def selectors(par):
            lo_sel, hi_sel = ((0x0c0c0100, 0x01000c0c), (0x0c0c0302, 0x03020c0c))[par]
            self(f"v_and_b32 v5, 7, v0\nv_mov_b32 v28, 0x0c0c0c0c\nv_mov_b32 v29, 0x{lo_sel:08x}\nv_mov_b32 v30, 0x{hi_sel:08x}")
            for w in range(4):
                r = 32 + par * 4 + w
                self(f"""
                    v_cmp_eq_u32 vcc, {2*w}, v5
                    v_cmp_eq_u32 s[10:11], {2*w + 1}, v5
                    s_nop 0
                    v_cndmask_b32 v{r}, v28, v29, vcc
                    v_cndmask_b32 v{r}, v{r}, v30, s[10:11]""")

        def addresses():
            self(f"""
                v_lshlrev_b32 v41, 1, v40
                v_bfe_u32 v6, v0, 4, 1
                v_lshl_add_u32 v41, v6, 4, v41
                v_lshrrev_b32 v6, 5, v0
                v_mul_u32_u24 v6, 768, v6
                v_add_u32 v41, v41, v6
                v_and_b32 v42, 63, v0
                v_lshlrev_b32 v42, 4, v42
                s_bcnt1_i32_b32 s10, s95
                s_sub_u32 s10, 3, s10
                s_mul_i32 s11, s10, 6144
                v_add_u32 v41, s11, v41
                s_mul_i32 s11, s10, 384
                v_add_u32 v40, s11, v40
                s_lshl_b32 s11, s10, 2
                v_mov_b32 v43, s11""")

        def last_unit():
            self.region_of("15", "s11", "s50")
            self.partial_slot("s11", "s50", "s13")
            self("s_lshl_b32 s50, s50, 3")

        def nonce_tags():
            self(f"ds_read_b32 v6, v1 offset:{C_NONCE}\ns_waitcnt lgkmcnt(0)\nv_readfirstlane_b32 s92, v6")
            self.tags(44)

        def only(wave, code):
            sk = self.lab("on")
            self(f"s_cmp_lg_u32 s3, {wave}\ns_cbranch_scc1 {sk}")
            code()
            self(f"{sk}:")

        if o["hold"]:
            self(f"s_sub_u32 s10, s38, 48\ns_cmp_ge_u32 s10, 24\ns_cbranch_scc1 L_nohold")
            self.spin_lds(C_ICNT, o["hold"], sleep=1)
            self("L_nohold:")
        self.jitter("s", 3)
        idle = [self.masks, lambda: selectors(0), lambda: selectors(1), addresses, last_unit, nonce_tags]
        assert o["vat"] + 2 < o["agn"] <= 8
        for n in range(15):
            if n == o["agn"]:
                self.spin_lds(C_VOTE, 1, sleep=0, wide=True)
                self("s_mov_b32 s59, s11")
                self("s_bitcmp1_b32 s59, 0\ns_cselect_b64 s[60:61], -1, 0")
                self.stamp(2)
            if n == 8:
                self.advance_window(False)
            self.issue(n & 7, n, None if n < 2 else o["w0"] if n < o["agn"] else o["pw"])
            if n == o["vat"]:
                only(1, self.vote_load)
            if n == o["vat"] + 2:
                only(1, lambda: (self("s_waitcnt vmcnt(6)"), self.vote_eval()))
            if n == o["qat"]:
                only(2, lambda: self.lds_inc(C_MARK))
            if 8 <= n < 8 + len(idle):
                idle[n - 8]()
        self.stamp(3)
        self("s_mov_b32 s62, 0\ns_mov_b32 s51, s95")

        def progress(first=False, late=0):
            sk = self.lab("pg")
            self(f"""
                s_cmp_lg_u32 s3, 0
                s_cbranch_scc1 {sk}
                s_memrealtime s[10:11]
                s_add_u32 s72, s72, 4
                v_mov_b32 v6, s72
                s_waitcnt lgkmcnt(0)
                s_or_b32 s10, s10, 1
                v_mov_b32 v7, s10
                ds_write_b32 v6, v7 offset:{C_T}
                {sk}:""")
            if not first:
                self("v_add_u32 v4, 1024, v4\ns_add_u32 s62, s62, 1")

        def next_q():
            for j in range(3):
                self(f"ds_read_b128 v[{8 + 4*j}:{11 + 4*j}], v40 offset:{L_Q + 128 * j}")
            self("v_add_u32 v40, 384, v40\ns_waitcnt lgkmcnt(0)")

        def next_o():
            self("v_add_u32 v41, 6144, v41\nv_add_u32 v43, 4, v43")
            for i in range(12):
                self(f"v_mov_b32 v{8 + i}, 0")

        def body(consume, vphase=False):
            for i in range(16):
                if vphase and i in (0, 8):
                    self(f"ds_read_b128 v[28:31], v4 offset:{L_P + (i >> 3) * 512}")
                if vphase and i > 0:
                    self(f"s_cbranch_vccnz L_dr{i}" if (i >= 12 or i == 1) else f"s_cbranch_vccnz L_cons{i}")
                if i == 8:
                    progress(True)
                if o["ctl"] and i % 4 == 2:
                    self(f"ds_read_b64 v[6:7], v1 offset:{C_CTL}\ns_memrealtime s[74:75]")
                if o["ctl"] and i % 4 == 3:
                    self(f"""
                        s_waitcnt lgkmcnt(0)
                        v_readfirstlane_b32 s68, v6
                        v_readfirstlane_b32 s69, v7
                        s_lshl_b32 s10, s74, 5
                        s_mul_i32 s11, s69, s93
                        s_add_u32 s93, s93, 2
                        s_sub_u32 s10, s10, s68
                        s_sub_u32 s10, s10, s11
                        s_cmp_eq_u32 s69, 0
                        s_cselect_b32 s10, 0, s10""")
                    self.levels("s68", "s69")
                if i in (1, 9):
                    self.advance_window(i == 1)
                self.issue((i - 1) & 7, (i - 1) & 15, W)
                if i == 8:
                    sk = self.lab("mb")
                    self(f"s_bitcmp1_b32 s51, 0\ns_cbranch_scc0 {sk}")
                    if vphase:
                        self.flush_acc()
                        self.lds_inc(C_OCNT, addr="v43")
                        next_o()
                    else:
                        next_q()
                    self(f"{sk}:")
                if vphase:
                    self(f"L_cons{i}:")
                consume(i)

        self.spin_lds(C_QRDY, 3)
        progress(True)
        self.stamp(4)
        self("L_kq:")
        next_q()
        self("L_kloop:")
        body(self.consume_k)
        progress()
        self("s_and_b32 s10, s62, 3\ns_cbranch_scc1 L_knoseg")
        self.jitter("s", 4)
        self("v_mov_b32 v7, s62")
        self.lds_inc(C_KSEG - 4, addr="v7")
        self("""
            s_cmp_eq_u32 s62, 8
            s_cbranch_scc1 L_kdone
            L_knoseg:
            s_mov_b32 s10, s51
            s_lshr_b32 s51, s51, 2
            s_bitcmp1_b32 s10, 1
            s_cbranch_scc0 L_kloop
            s_branch L_kq
            L_kdone:""")
        self.stamp(5)
        self(f"""
            v_lshrrev_b32 v4, 3, v0
            v_lshlrev_b32 v4, 4, v4
            v_add_u32 v40, {2 * 6144}, v42
            s_mov_b32 s62, 0
            s_mov_b32 s51, s95
            s_mov_b64 vcc, 0""")
        for i in range(12):
            self(f"v_mov_b32 v{8 + i}, 0")
        self.spin_lds(C_PRDY, 4)
        self("L_vloop:")
        body(self.consume_v, vphase=True)
        self("s_cbranch_vccnz L_vflush")
        progress()
        self("s_bitcmp1_b32 s51, 1\ns_cbranch_scc0 L_vnoflush\nL_vflush:")
        self.flush_acc()
        self.lds_inc(C_OCNT, ret=True, addr="v43")
        self("s_cbranch_vccnz L_vlast")
        next_o()
        self("""
            L_vnoflush:
            s_lshr_b32 s51, s51, 2
            s_cmp_eq_u32 s62, 7
            s_cselect_b64 vcc, -1, 0
            s_cmp_lg_u32 s62, 4
            s_cbranch_scc1 L_vloop""")
        self.spin_lds(C_PRDY, 8)
        self(f"ds_read_b32 v6, v1 offset:{C_F}\ns_waitcnt lgkmcnt(0)")
        for i in range(12):
            self(f"v_mul_f32 v{8 + i}, v{8 + i}, v6")
        self("s_branch L_vloop")
        self("L_dr1:")
        self.jitter("s", 5)
        if "iss" in (o["trig"], o["gtrig"], o["g3trig"]):
            self.lds_inc(C_ISS)
        self("v_mov_b32 v5, s50")
        self.spin_lds(C_SC, 1, wide=True, addr="v5")
        self("s_mov_b32 s73, s11\ns_branch L_cons1")
        for i in (12, 13, 14, 15):
            self(f"L_dr{i}:\ns_waitcnt vmcnt({3 * (15 - i)})\ns_branch L_cons{i}")
        self("L_vlast:")
        self.stamp(7)
        self("s_cmp_lg_u32 s10, 3\ns_cbranch_scc1 L_nolast")
        self.publish_o()
        self.stamp(8)
        self("L_nolast:")
        if o["series"]:
            self(f"""
                s_lshl_b32 s10, s3, 7
                v_mov_b32 v6, s10
                v_mov_b32 v7, s87
                ds_write_b32 v6, v7 offset:{L_SER + 124}
                v_and_b32 v6, 31, v0
                v_lshlrev_b32 v6, 2, v6
                v_add_u32 v6, s10, v6
                ds_read_b32 v7, v6 offset:{L_SER}
                s_lshl_b32 s10, s2, 9
                s_add_u32 s10, s10, {STAMPS + 0x100000}
                v_add_u32 v6, s10, v6
                s_waitcnt lgkmcnt(0)
                global_store_dword v6, v7, s[36:37]""")
        self("s_branch L_end")

    def item_loads(self, part):
        if part < 2:
            for rho in range(8):
                r = 48 + (part * 8 + rho) * 2
                self(f"buffer_load_dwordx2 v[{r}:{r+1}], v44, s[40:43], s13 offen nt")
                self(f"s_add_u32 s13, s13, {'s71' if rho == 7 else 's70'}")
        else:
            for rho in range(4):
                r = 80 + rho * 2
                self(f"buffer_load_dwordx2 v[{r}:{r+1}], v45, s[40:43], s13 offen nt")
                if rho < 3:
                    self("s_add_u32 s13, s13, s70")

    def frag_norm(self):
        for i in range(10):
            self(f"v_lshlrev_b32 v{8 + 2*i}, 16, v{28 + i}\nv_and_b32 v{9 + 2*i}, 0xffff0000, v{28 + i}")
        self("s_waitcnt lgkmcnt(0)")
        for i in range(20):
            self(f"v_sub_f32 v{8 + i}, v{8 + i}, v40")
        for i in range(10):
            self(f"v_cvt_pk_bf16_f32 v{28 + i}, v{8 + 2*i}, v{9 + 2*i}")
        for i in range(10):
            self(f"v_lshlrev_b32 v{8 + 2*i}, 16, v{28 + i}\nv_and_b32 v{9 + 2*i}, 0xffff0000, v{28 + i}")
        for i in range(20):
            self(f"v_mul_f32 v{8 + i}, v{8 + i}, v41")
        for i in range(10):
            self(f"v_cvt_pk_bf16_f32 v{144 + i}, v{8 + 2*i}, v{9 + 2*i}")

    def item_compute(self):
        for s in range(3):
            self(f"s_waitcnt vmcnt({(12, 4, 0)[s]})")
            nm = 4 if s < 2 else 2
            for e in range(4):
                for m in range(nm):
                    lo = 48 + (s * 8 + 2 * m) * 2 + (e >> 1)
                    self(f"v_perm_b32 v{88 + s*16 + e*nm + m}, v{lo + 2}, v{lo}, s{68 + (e & 1)}")
            self("s_nop 1")
            for e in range(4):
                a = 88 + s * 16 + e * nm
                d = 128 + e * 4
                c = "0" if s == 0 else f"v[{d}:{d+3}]"
                if s < 2:
                    self(f"v_mfma_f32_16x16x32_bf16 v[{d}:{d+3}], v[{a}:{a+3}], v[{144 + 4*s}:{147 + 4*s}], {c}")
                else:
                    self(f"v_mfma_f32_16x16x16_bf16 v[{d}:{d+3}], v[{a}:{a+1}], v[152:153], {c}")
        self("s_nop 7")
        for r in range(4):
            self(f"v_cndmask_b32 v{128 + r}, v{128 + r}, v{132 + r}, s[66:67]")
            self(f"v_cndmask_b32 v{136 + r}, v{136 + r}, v{140 + r}, s[66:67]")
        for r in range(4):
            self(f"v_cndmask_b32 v{128 + r}, v{128 + r}, v{136 + r}, s[64:65]")
        self(f"ds_write_b128 v46, v[128:131] offset:{L_ORED}")

    def gather_tile(self, vo, va, sleep, silu, dst):
        self.poll([(8, f"buffer_load_dwordx4 v[8:11], {vo}, s[44:47], s13 offen sc1 {NT(self.o, 'Q')}"),
                   (12, f"buffer_load_dwordx4 v[12:15], {vo}, s[44:47], s13 offen offset:3072 sc1 {NT(self.o, 'Q')}")], sleep)
        for e in range(4):
            self(f"v_add_f32 v{8 + e}, v{8 + e}, v{12 + e}")
        if silu:
            for e in range(4):
                self.bf16_round(8 + e)
            for e in range(4):
                self(f"v_mul_f32 v{12 + e}, {f32(-1.4426950408889634)}, v{8 + e}")
            for e in range(4):
                self(f"v_exp_f32 v{12 + e}, v{12 + e}")
            for e in range(4):
                self(f"v_add_f32 v{12 + e}, 1.0, v{12 + e}")
            for e in range(4):
                self(f"v_rcp_f32 v{12 + e}, v{12 + e}")
            for e in range(4):
                self(f"v_mul_f32 v{8 + e}, v{8 + e}, v{12 + e}")
        self(f"""
            v_cvt_pk_bf16_f32 v8, v8, v9
            v_cvt_pk_bf16_f32 v10, v10, v11
            ds_write_b16 {va}, v8 offset:{dst}
            ds_write_b16_d16_hi {va}, v8 offset:{dst + 8}
            ds_write_b16 {va}, v10 offset:{dst + 16}
            ds_write_b16_d16_hi {va}, v10 offset:{dst + 24}""")

    def gather_o(self, batches, sleep, hook=None):
        late = 3 in batches
        loads = [(8 + 4 * b, f"buffer_load_dwordx4 v[{8 + 4*b}:{11 + 4*b}], v47, s[44:47], s{16 + b} offen sc1")
                 for b in batches]
        if late:
            loads.append((24, "buffer_load_dwordx4 v[24:27], v48, s[44:47], s18 offen sc1"))

        def finish():
            self.rows4_reduce(*[8 + 4 * b for b in batches], extra=24 if late else None)
            for b in batches:
                r = 8 + 4 * b
                self(f"v_cvt_pk_bf16_f32 v{r}, v{r}, v{r}\nds_write_b16 v44, v{r} offset:{L_OBUF + 384 * b}")

        self.poll(loads, sleep, half={len(loads) - 1: "s20"} if late else {}, hook=hook, inner=finish)

    def tile_lanes(self):
        self("""
            v_lshlrev_b32 v232, 1, v4
            v_xor_b32 v232, v232, v3
            v_lshlrev_b32 v232, 4, v232
            v_mad_u32_u24 v232, v4, s11, v232""")

    def tile_setup(self):
        self.srd(40, 24, 6144 * 1280)
        self(f"""
            s_mul_i32 s70, s77, {192 * 1280}
            s_lshl_b32 s10, s39, 8
            s_add_u32 s70, s70, s10
            s_add_u32 s71, s70, {192 * 1280}
            s_mov_b32 m0, {L_WT}
            s_movk_i32 s11, 1280""")
        self.tile_lanes()
        self(f"""
            v_bfe_u32 v234, v2, 1, 1
            v_lshl_add_u32 v234, s72, 2, v234
            v_bfe_u32 v235, v2, 2, 2
            v_lshlrev_b32 v7, 1, v235
            v_xor_b32 v234, v234, v7
            v_lshlrev_b32 v234, 4, v234
            v_lshl_add_u32 v234, v235, 8, v234
            v_and_b32 v235, 1, v2
            v_lshl_add_u32 v234, v235, 3, v234
            v_xor_b32 v235, 32, v234
            v_mul_u32_u24 v7, {2 * TROW}, v4
            v_add_u32 v7, {L_WT}, v7
            v_add_u32 v234, v234, v7
            v_add_u32 v235, v235, v7""")

    def tile_issue(self, limit, depth, srd="s[40:43]", off="s70"):
        lp = self.lab("tl")
        self(f"""
            {lp}:
            s_waitcnt vmcnt({depth - 1})
            buffer_load_dwordx4 v232, {srd}, {off} offen nt lds
            s_add_u32 m0, m0, {TROW}
            s_add_u32 {off}, {off}, {4 * 1280}
            s_cmp_lt_u32 {off}, {limit}
            s_cbranch_scc1 {lp}""")

    def fragments(self):
        for s in range(6):
            for e in range(2):
                for hf in range(2):
                    r = 180 + s * 8 + e * 4 + hf * 2
                    self(f"ds_read_b64_tr_b16 v[{r}:{r+1}], v{234 + e} offset:{(8 * s + hf) * TROW}")

    def project(self, final):
        if final:
            self("s_waitcnt lgkmcnt(0)\ns_barrier")
        for s in range(6):
            self(f"ds_read_b128 v[{8 + 4*s}:{11 + 4*s}], v228 offset:{L_OBUF + 64 * s}")
        for s in range(6):
            self(f"s_waitcnt lgkmcnt({5 - s})")
            for e in range(2):
                b = 180 + s * 8 + e * 4
                d = 32 + e * 4
                c = "0" if s == 0 else f"v[{d}:{d+3}]"
                self(f"v_mfma_f32_16x16x32_bf16 v[{d}:{d+3}], v[{8 + 4*s}:{11 + 4*s}], v[{b}:{b+3}], {c}")
        self("s_mov_b32 vcc_lo, 0xffff0000\ns_mov_b32 vcc_hi, 0\ns_nop 6")
        for r in range(4):
            self(f"v_cndmask_b32 v{32 + r}, v{32 + r}, v{36 + r}, vcc")
        self.tag_data(32, 236)
        self("s_mov_b32 exec_hi, 0")
        if final and self.o["local"]:
            self("""
                s_cmp_eq_u32 s58, 0
                s_cbranch_scc1 L_ythru
                buffer_store_dwordx4 v[32:35], v229, s[44:47], s75 offen
                s_branch L_ydone
                L_ythru:""")
        self(f"buffer_store_dwordx4 v[32:35], v229, s[44:47], s75 offen sc1 {'' if final else NT(self.o, 'y')}")
        self("L_ydone:\ns_mov_b64 exec, -1" if final else "s_mov_b64 exec, -1")

    def prep(self, g):
        o = self.o
        lp, dn, keep = self.lab("fl"), self.lab("fd"), self.lab("fk")
        AGN = "s_mov_b64 s[60:61], s[52:53]\ns_mov_b64 s[54:55], s[52:53]"
        if g == 0 and o["agn"] and "a" not in o["skip"]:
            AGN = """
                s_lshr_b32 s10, s59, 16
                s_xor_b32 s10, s10, s4
                s_bitcmp1_b32 s10, 0
                s_cselect_b32 s54, -1, 0
                s_xor_b32 s54, s54, 0xffff0000
                s_cmp_eq_u32 s72, 0
                s_cselect_b32 s54, s54, s52
                s_mov_b32 s55, s53
                s_or_b64 s[60:61], s[52:53], s[54:55]"""
        SCA = {"wg": f"s_lshl_b32 s13, s2, 13\ns_add_u32 s13, s13, {SC + 4096 * g}\ns_xor_b32 s14, s13, {4 << 13}\nv_mov_b32 v30, v230",
               "seg": f"s_lshl_b32 s13, s2, 12\ns_add_u32 s13, s13, {SC + (g << 20)}\ns_xor_b32 s14, s13, {4 << 12}\nv_mov_b32 v30, v230",
               "page": f"""
                   s_lshr_b32 s13, s2, 4
                   s_lshl_b32 s13, s13, 16
                   s_and_b32 s14, s2, 15
                   s_lshl_b32 s14, s14, 11
                   s_add_u32 s13, s13, s14
                   s_lshl_b32 s14, s72, 9
                   s_add_u32 s13, s13, s14
                   s_add_u32 s13, s13, {SC + (g << 20)}
                   s_xor_b32 s14, s13, {4 << 11}
                   v_lshrrev_b32 v30, 5, v2
                   v_mul_u32_u24 v30, {32768 - 512}, v30
                   v_add_u32 v30, v30, v229"""}[o["scl"]]
        self.control(8 * g + 8)
        self.spin_lds(C_KSEG + 4 * g, 4, sleep=8)
        self.jitter("h", 7 + g)
        self(f"""
            ds_read_b128 v[32:35], v230 offset:{L_S + 4096 * g}
            s_lshr_b32 s62, s59, 16
            s_xor_b32 s62, s62, s59
            s_lshl_b32 s11, s72, 1
            s_add_u32 s11, s11, {8 * g}
            s_lshr_b32 s10, s62, s11
            s_bitcmp1_b32 s10, 0
            s_cselect_b32 s52, -1, 0
            s_bitcmp1_b32 s10, 1
            s_cselect_b32 s53, -1, 0
            {AGN}
            {SCA}
            s_lshl_b32 s15, s2, {o["fsh"]}
            s_add_u32 s15, s15, {FL + 32768 * g}
            s_waitcnt lgkmcnt(0)
            s_cmp_eq_u64 s[60:61], 0
            s_cbranch_scc1 {keep}s
            s_mov_b64 exec, s[60:61]
            buffer_store_dwordx4 v[32:35], v30, s[44:47], s13 offen {o["scst"]}
            s_waitcnt vmcnt(0)
            {keep}s:""")
        self.lds_inc(C_FCNT, ret=True)
        self(f"""
            s_cmp_lg_u32 s10, {4 * g + 3}
            s_cbranch_scc1 {keep}f
            s_bfe_u32 s10, s62, {(8 << 16) | (8 * g)}
            {"" if (g == 0 and o["agn"] and "a" not in o["skip"]) else f"s_cbranch_scc0 {keep}f"}
            v_mov_b32 v5, s92
            v_lshlrev_b32 v6, 2, v2
            s_mov_b32 exec_lo, {hex((1 << (1 << (o["fsh"] - 2))) - 1)}
            s_mov_b32 exec_hi, 0
            buffer_store_dword v5, v6, s[44:47], s15 offen sc1 {NT(o, 'f')}
            s_mov_b64 exec, -1
            {keep}f:
            s_xor_b32 s56, s15, {4 << o['fsh']}
            s_mov_b32 s57, s14""")
        self.control(8 * g + 8 + o["rlag"])
        self(f"s_cmp_eq_u64 s[60:61], 0\ns_cbranch_scc1 {keep}")
        self.spin_lds(C_T + 4 * (8 * g + 8 + o["rlag"]), 1, sleep=16)
        if o["fsc"]:
            self(f"""
                s_load_dword s10, s[36:37], s56
                s_waitcnt lgkmcnt(0)
                s_cmp_eq_u32 s10, s92
                s_cbranch_scc1 {dn}""")
        self(f"""
            s_mov_b32 s12, 0x40000
            s_mov_b64 exec, 1
            {lp}:
            buffer_load_dword v6, v1, s[44:47], s56 offen sc1 {NT(o, 'F')}
            s_waitcnt vmcnt(0)
            v_readfirstlane_b32 s10, v6
            s_cmp_eq_u32 s10, s92
            s_cbranch_scc1 {dn}
            s_sleep {o["fsleep"]}
            s_sub_u32 s12, s12, 1
            s_cbranch_scc0 {lp}
            s_branch L_end
            {dn}:
            s_mov_b64 exec, s[60:61]
            buffer_load_dwordx4 v[36:39], v30, s[44:47], s57 offen {o["scld"]}
            s_mov_b64 exec, -1
            s_waitcnt vmcnt(0)""")
        for i in range(4):
            self(f"v_cndmask_b32 v{32 + i}, v{32 + i}, v{36 + i}, {'s[54:55]' if 2 * i < o['agn'] else 's[52:53]'}")
        self(f"{keep}:")
        for i in range(4):
            self(f"v_lshlrev_b32 v{8 + 2*i}, 16, v{32 + i}\nv_and_b32 v{9 + 2*i}, 0xffff0000, v{32 + i}")
        self("v_max3_f32 v24, v8, v9, v10\nv_max3_f32 v24, v24, v11, v12\nv_max3_f32 v24, v24, v13, v14\nv_max_f32 v24, v24, v15")
        self.half_allreduce("v_max_f32", 24, 25)
        self(f"""
            v_lshrrev_b32 v27, 5, v2
            v_lshl_add_u32 v27, s72, 1, v27
            v_add_u32 v27, {8 * g}, v27""")
        self.lane_row(27, 26)
        self("v_lshlrev_b32 v26, 5, v26\nv_lshlrev_b32 v27, 2, v27")
        if g == 1:
            self(f"ds_read_b32 v25, v26 offset:{L_STAT}\ns_waitcnt lgkmcnt(0)\nv_max_f32 v24, v24, v25")
        self(f"""
            s_mov_b32 exec_lo, 1
            s_mov_b32 exec_hi, 1
            ds_max_f32 v26, v24 offset:{L_STAT + 16 * g}""")
        self.lds_inc(C_MAXC)
        self.spin_lds(C_MAXC, 4 * (g + 1), sleep=2)
        self(f"""
            ds_read_b32 v24, v26 offset:{L_STAT + 16 * g}
            s_mov_b32 s10, {f32(1.4426950408889634)}
            s_waitcnt lgkmcnt(0)""")
        if g == 1:
            self(f"""
                v_sub_f32 v25, v25, v24
                v_mul_f32 v25, s10, v25
                v_exp_f32 v25, v25
                s_cmp_lg_u32 s72, 0
                s_cbranch_scc1 L_nofact
                s_mov_b64 exec, 1
                ds_write_b32 v1, v25 offset:{C_F}
                s_mov_b64 exec, -1
                L_nofact:""")
        for i in range(8):
            self(f"v_sub_f32 v{8 + i}, v{8 + i}, v24")
        for i in range(8):
            self(f"v_mul_f32 v{8 + i}, s10, v{8 + i}")
        for i in range(8):
            self(f"v_exp_f32 v{8 + i}, v{8 + i}")
        for i in range(4):
            self(f"v_cvt_pk_bf16_f32 v{32 + i}, v{8 + 2*i}, v{9 + 2*i}")
        self(f"ds_write_b128 v230, v[32:35] offset:{L_P + 4096 * g}")
        self.lds_inc(C_PRDY)
        for step in (4, 2, 1):
            for i in range(step):
                self(f"v_add_f32 v{8 + i}, v{8 + i}, v{8 + step + i}")
        self.jitter("h", 9 + g)
        self.half_allreduce("v_add_f32", 8, 9)
        self(f"ds_write_b32 v27, v8 offset:{C_WL}")
        if g == 1:
            self.lds_inc(C_SCNT, ret=True)
            self(f"""
                s_cmp_lg_u32 s10, 3
                s_cbranch_scc1 L_nostat
                v_lshlrev_b32 v9, 2, v3
                ds_read_b32 v8, v9 offset:{C_WL}""")
            self.lane_row(3, 10)
            self("""
                v_cmp_eq_u32 vcc, v10, v4
                v_lshlrev_b32 v9, 1, v2
                s_waitcnt lgkmcnt(0)
                v_cndmask_b32 v8, 0, v8, vcc""")
            for ctl in ("quad_perm:[1,0,3,2]", "quad_perm:[2,3,0,1]", "row_half_mirror"):
                self(f"s_nop 1\nv_add_f32_dpp v8, v8, v8 {ctl} row_mask:0xf bank_mask:0xf")
            self(f"""
                s_mov_b32 exec_lo, 0x01010101
                s_mov_b32 exec_hi, 0x01010101
                ds_write_b32 v9, v8 offset:{L_STAT + 8}
                s_mov_b64 exec, 0xff
                ds_read_b128 v[24:27], v229 offset:{L_STAT}
                s_lshl_b32 s13, s27, 1
                s_add_u32 s13, s13, s4
                s_lshl_b32 s13, s13, 7
                s_add_u32 s13, s13, {ST}
                s_waitcnt lgkmcnt(0)
                buffer_store_dwordx4 v[24:27], v229, s[44:47], s13 offen sc1 {NT(o, 's')}
                s_mov_b64 exec, -1
                L_nostat:""")

    def lane_row(self, i, dst):
        self.lane_window(i, dst)
        self(f"""
            v_cmp_le_u32 vcc, {86 * 16}, v{dst}
            v_bfe_u32 v{dst}, v{dst}, 4, 1
            s_nop 0
            v_cndmask_b32 v{dst}, v{dst}, 2, vcc""")

    def scale(self):
        self.note("softmax scale per region from the (max, sum) records of the workgroups that share it")
        lp, dn = self.lab("sl"), self.lab("sd")
        self(f"""
            v_bfe_u32 v12, v2, 1, 3
            v_lshlrev_b32 v12, 7, v12
            v_lshl_add_u32 v12, v4, 5, v12
            v_and_b32 v13, 1, v2
            v_lshl_add_u32 v12, v13, 4, v12
            v_mov_b32 v8, {NEG}
            v_mov_b32 v10, 0
            s_sub_u32 s13, s27, s94
            s_lshl_b32 s13, s13, 8
            s_add_u32 s13, s13, {ST}
            s_mov_b32 s10, 0x00ff00ff
            s_cmp_lt_u32 s27, 126
            s_cselect_b32 exec_lo, 0x0fff0fff, s10
            s_mov_b32 exec_hi, exec_lo
            s_mov_b32 s12, 0x40000
            {lp}:
            buffer_load_dwordx4 v[8:11], v12, s[44:47], s13 offen sc1 {NT(self.o, 'S')}
            s_waitcnt vmcnt(0)
            v_xor_b32 v13, s92, v9
            v_bitop3_b32 v13, v13, v11, s92 bitop3:0xf6
            v_cmp_ne_u32 vcc, 0, v13
            s_cmp_eq_u64 vcc, 0
            s_cbranch_scc1 {dn}
            s_sleep 24
            s_sub_u32 s12, s12, 1
            s_cbranch_scc0 {lp}
            s_branch L_end
            {dn}:
            s_mov_b64 exec, -1
            v_max_f32_dpp v13, v8, v8 quad_perm:[1,0,3,2] row_mask:0xf bank_mask:0xf
            v_mov_b32 v9, v8""")
        self.row16_allreduce("v_max_f32", 9)
        self(f"""
            v_sub_f32 v8, v8, v9
            v_sub_f32 v13, v13, v9
            v_mul_f32 v8, {f32(1.4426950408889634)}, v8
            v_mul_f32 v13, {f32(1.4426950408889634)}, v13
            v_exp_f32 v8, v8
            v_exp_f32 v13, v13
            v_mul_f32 v10, v10, v8""")
        self.row16_allreduce("v_add_f32", 10)
        self(f"""
            v_rcp_f32 v10, v10
            v_lshlrev_b32 v11, 3, v4
            v_mul_f32 v9, v13, v10
            v_mov_b32 v8, 1
            s_lshl_b32 s10, s94, 1
            s_add_u32 s10, s10, s4
            s_lshl_b32 s10, s10, 1
            s_lshl_b32 exec_lo, 0x10001, s10
            s_mov_b32 exec_hi, exec_lo
            ds_write_b64 v11, v[8:9] offset:{C_SC}
            s_mov_b64 exec, -1""")

    def levels(self, up, down):
        o = self.o
        self(f"""
            s_min_i32 s10, s10, {(o["cmax"] << 22) // o["gain"]}
            s_max_i32 s10, s10, {-((o["cmaxs"] << 22) // o["gains"])}
            s_max_i32 {up}, s10, 0
            s_sub_i32 {down}, 0, s10
            s_max_i32 {down}, {down}, 0
            s_mul_i32 {up}, {up}, {o["gain"] << 6}
            s_mul_i32 {down}, {down}, {o["gains"] << 6}""")

    def control(self, last, check=True, guard=False):
        o = self.o
        if not o["ctl"]:
            return
        lp, dn, np_, nc = self.lab("cl"), self.lab("cd"), self.lab("cp"), self.lab("cn")
        if check:
            self(f"s_cmp_lg_u32 s72, 3\ns_cbranch_scc1 {dn}")
        if guard:
            self(f"s_cmp_ge_u32 s96, {last}\ns_cbranch_scc1 {dn}")
        self(f"""
            {lp}:
            s_add_u32 s96, s96, 1
            s_lshl_b32 s10, s96, 2
            v_mov_b32 v9, s10""")
        self.spin_lds(C_T, 1, sleep=4, addr="v9")
        if o["cpack"] == 2:
            self(f"""
                s_mov_b32 s97, s10
                s_mul_i32 s13, s96, {o["cstr"]}
                s_add_u32 s13, s13, {CT}
                s_cmp_ge_u32 s99, 16
                s_cbranch_scc1 {np_}
                s_lshl_b32 s14, s99, 3
                s_add_u32 s14, s14, s13
                s_add_u32 s14, s14, {o["cstr"]}
                v_mov_b32 v12, s92
                v_mov_b32 v13, s97
                s_mov_b64 exec, 1
                buffer_store_dwordx2 v[12:13], v1, s[44:47], s14 offen sc1
                s_mov_b64 exec, -1
                {np_}:
                s_mov_b32 s10, 0
                s_cmp_lt_u32 s96, {max(1, min(o['cfirst'], o['nomn']))}
                s_cbranch_scc1 {np_}w""")
            for part in range(4):
                self(f"s_load_dwordx8 s[16:23], s[36:37], s13\ns_add_u32 s13, s13, 32\ns_waitcnt lgkmcnt(0)")
                for k in range(4):
                    self(f"""
                        s_sub_u32 s11, s97, s{17 + 2*k}
                        s_cmp_eq_u32 s{16 + 2*k}, s92
                        s_cselect_b32 s11, s11, 0
                        s_add_u32 s10, s10, s11""")
            self(f"{np_}w:\ns_lshl_b32 s10, s10, 1")
        else:
            sh = 3 if o["cpack"] else 7
            step = o["cstr"] if o["cpack"] else 4096
            self(f"""
                s_mov_b32 s97, s10
                s_mul_i32 s13, s96, {step}
                s_add_u32 s13, s13, {CT}
                s_cmp_lt_u32 s96, {max(1, min(o['cfirst'], o['nomn']))}
                s_cselect_b32 s10, 0x80000000, 0
                v_lshl_or_b32 v9, v2, {sh}, s10
                s_mov_b64 exec, 0xffff
                buffer_load_dwordx2 v[10:11], v9, s[44:47], s13 offen sc1
                s_cmp_ge_u32 s99, 16
                s_cbranch_scc1 {np_}
                s_lshl_b32 s14, s99, {sh}
                s_add_u32 s14, s14, s13
                s_add_u32 s14, s14, {step}
                v_mov_b32 v12, s92
                v_mov_b32 v13, s97
                v_lshlrev_b32 v14, 3, v2
                s_mov_b32 exec_lo, {1 if o["cpack"] else "0xffff"}
                buffer_store_dwordx2 v[12:13], v14, s[44:47], s14 offen sc1
                s_mov_b32 exec_lo, 0xffff
                s_waitcnt vmcnt(1)
                s_branch {np_}w
                {np_}:
                s_waitcnt vmcnt(0)
                {np_}w:
                v_cmp_eq_u32 vcc, s92, v10
                v_sub_u32 v11, s97, v11
                s_nop 0
                v_cndmask_b32 v11, 0, v11, vcc""")
            self.row16_allreduce("v_add_u32", 11)
            self("s_nop 0\nv_readlane_b32 s10, v11, 0\ns_mov_b64 exec, -1\ns_lshl_b32 s10, s10, 1")
        self(f"""
            s_lshl_b32 s11, s97, 5
            s_sub_u32 s11, s11, s10
            s_sub_u32 s12, s11, s98
            s_mov_b32 s98, s11
            s_cmp_le_u32 s96, {o["nomn"]}
            s_cselect_b32 s12, {o["nominal"] * 16}, s12
            s_mov_b32 s14, s100
            s_mov_b32 s100, s12
            s_cmp_lt_u32 s96, {o["cfirst"]}
            s_cbranch_scc1 {nc}""")
        self({"last": "s_lshr_b32 s12, s12, 2",
              "min": "s_min_u32 s12, s12, s14\ns_lshr_b32 s12, s12, 2",
              "avg": "s_add_u32 s12, s12, s14\ns_lshr_b32 s12, s12, 3",
              "cap": f"s_add_u32 s12, s12, s14\ns_min_u32 s12, s12, {o['pcap'] * 32}\ns_lshr_b32 s12, s12, 3"}[o["pest"]])
        self("""
            s_sub_u32 s10, s96, 1
            s_mul_i32 s10, s10, s12
            s_lshl_b32 s10, s10, 2
            s_sub_u32 s11, s11, s10""")
        if o["gfrom"]:
            self(f"""
                s_cmp_ge_u32 s96, {o["gfrom"]}
                s_cselect_b32 s10, s101, {(o["bias"] * 32) & 0xffffffff}
                s_sub_u32 s11, s11, s10""")
        else:
            self("s_sub_u32 s11, s11, s101")
        self(f"""
            v_mov_b32 v12, s11
            v_mov_b32 v13, s12
            ds_write_b64 v1, v[12:13] offset:{C_CTL}
            {nc}:
            s_cmp_lt_u32 s96, {last}
            s_cbranch_scc1 {lp}
            {dn}:""")

    def helper(self):
        o = self.o
        self.in_helper = True
        self(f"""
            L_helper:
            s_sub_u32 s72, s3, 4
            s_sub_u32 s74, s38, 48
            s_mul_i32 s61, s74, 43
            s_lshr_b32 s61, s61, 8
            s_mul_i32 s10, s61, 6
            s_sub_u32 s73, s74, s10
            s_add_u32 s61, s61, 32
            s_cmp_lt_u32 s8, 6
            s_cselect_b32 s61, s6, s61
            s_cselect_b32 s73, s8, s73
            s_cselect_b32 s74, 0, s74
            s_cselect_b32 s70, 12, 3
            s_lshl_b32 s70, s70, 10
            s_mul_i32 s71, s70, 25
            s_cmp_ge_u32 s73, 3
            s_cselect_b32 s14, 4, 0
            s_cselect_b32 s10, 3, 0
            s_add_u32 s14, s14, s72
            s_mul_i32 s14, s14, 80
            s_sub_u32 s10, s73, s10
            s_and_b32 s11, s61, 31
            s_mul_i32 s11, s11, 3
            s_add_u32 s10, s10, s11
            s_lshl_b32 s10, s10, 7
            s_mul_i32 s13, s14, s70
            s_add_u32 s13, s13, s10
            s_lshl_b32 s14, s14, 1
            v_and_b32 v3, 15, v2
            v_lshrrev_b32 v4, 4, v2
            v_mul_u32_u24 v5, 1280, v4
            v_lshl_add_u32 v5, v3, 4, v5
            v_lshrrev_b32 v6, 2, v3
            v_mul_u32_u24 v7, 1280, v6
            v_lshl_add_u32 v38, v4, 3, v7
            v_lshl_add_u32 v7, v4, 4, v7
            v_mul_u32_u24 v45, s70, v4
            v_add_lshl_u32 v44, v45, v3, 3
            v_lshlrev_b32 v45, 2, v45
            v_lshl_add_u32 v45, v3, 3, v45
            s_or_b32 s10, s2, s72""")
        self.args_ready()
        self(f"""
            s_cmp_lg_u32 s10, 0
            s_cbranch_scc1 L_nononce
            s_max_u32 s10, s94, 1
            v_mov_b32 v47, s10
            v_lshlrev_b32 v46, 2, v2
            global_store_dword v46, v47, s[34:35] sc1
            L_nononce:
            s_mov_b32 s42, {640 * 1536 * 2}
            s_cmp_lt_u32 s8, 6
            s_cselect_b32 s40, s22, s28
            s_cselect_b32 s41, s23, s29
            s_cselect_b32 s42, {640 * 6144 * 2}, s42
            s_and_b32 s41, s41, 0xffff
            s_mov_b32 s43, 0x20000""")
        self.srd(48, 16, 5120)
        self.srd(44, 36, WS_END)
        self.stamp(1, 2)
        if o["hprio"]:
            self("s_setprio 2")
        self("s_barrier\ns_barrier")
        self.stamp(2, 2)
        def w2_tile():
            self("s_sub_u32 s56, s38, 32\ns_cmp_ge_u32 s56, 40\ns_cbranch_scc1 L_now2")
            self.srd(52, 30, 1536 * 1280)
            self(f"""
                s_mul_i32 s57, s56, 52
                s_lshr_b32 s57, s57, 8
                s_mul_i32 s10, s57, 5
                s_sub_u32 s10, s56, s10
                s_lshl_b32 s10, s10, 8
                s_lshl_b32 s62, s57, 2
                s_add_u32 s62, s62, s72
                s_mul_i32 s62, s62, {48 * 1280}
                s_add_u32 s62, s62, s10
                s_add_u32 s63, s62, {48 * 1280}
                s_mul_i32 s10, s72, {12 * TROW}
                s_add_u32 m0, s10, {L_WT}
                s_movk_i32 s11, 1280""")
            self.tile_lanes()
            self.tile_issue("s63", o["tdepth0"], "s[52:55]", "s62")
            self("L_now2:")

        if not o["w2last"]:
            w2_tile()
        self("s_cmp_ge_u32 s74, 48\ns_cbranch_scc1 L_noloads")
        for i in range(5):
            self(f"buffer_load_dwordx4 v[{8 + 4*i}:{11 + 4*i}], v5, s[48:51], 0 offen offset:{256 * i}")
        self("""
            buffer_load_dwordx4 v[28:31], v7, s[48:51], s14 offen
            buffer_load_dwordx4 v[32:35], v7, s[48:51], s14 offen offset:64
            buffer_load_dwordx2 v[36:37], v38, s[48:51], s14 offen offset:128""")
        first = (3, 1, 2)[o["hsplit"]]
        for p in range(first):
            self.item_loads(p)
        self("L_noloads:")
        if o["w2last"]:
            w2_tile()
        self.stamp(3, 2)
        self.masks()
        self.roles()
        self.plan()
        self(f"""
            s_mov_b32 s68, 0x05040100
            s_mov_b32 s69, 0x07060302
            v_lshlrev_b32 v229, 4, v2
            v_and_b32 v47, 3, v2
            v_mul_u32_u24 v228, 384, v47
            v_lshl_add_u32 v228, v4, 4, v228
            v_mul_u32_u24 v233, 384, v4
            v_lshl_add_u32 v233, v6, 5, v233
            v_lshl_add_u32 v233, v47, 1, v233
            s_lshl_b32 s10, s72, 7
            v_add_u32 v233, s10, v233
            s_lshl_b32 s10, s72, 10
            v_add_u32 v230, s10, v229
            v_lshl_add_u32 v46, v6, 8, s10
            v_lshl_add_u32 v46, v4, 6, v46
            v_lshl_add_u32 v46, v47, 4, v46
            s_lshl_b32 s10, s72, 2
            v_mov_b32 v231, s10
            s_mov_b32 s60, 0
            s_cmp_ge_u32 s74, 48
            s_cbranch_scc1 L_noitem
            v_lshlrev_b32 v47, 6, v6
            s_mov_b32 s10, 0x3f803f80
            s_waitcnt vmcnt({(20, 8, 16)[o["hsplit"]]})""")
        self.stamp(4, 2)
        for i in range(20):
            self(f"v_dot2_f32_bf16 v40, v{8 + i}, s10, {'0' if i == 0 else 'v40'}")
        self("s_nop 1")
        self.row16_allreduce("v_add_f32", 40)
        self(f"v_mul_f32 v40, {f32(1 / 640)}, v40")
        for p in range(first, 3):
            self.item_loads(p)
        self("v_mov_b32 v41, 0\nv_mov_b32 v42, 0")
        for i in range(20):
            self(f"""
                v_lshlrev_b32 v38, 16, v{8 + i}
                v_and_b32 v39, 0xffff0000, v{8 + i}
                v_sub_f32 v38, v38, v40
                v_sub_f32 v39, v39, v40
                v_fmac_f32 v41, v38, v38
                v_fmac_f32 v42, v39, v39""")
        self("v_add_f32 v41, v41, v42")
        self.row16_allreduce("v_add_f32", 41)
        self(f"v_mul_f32 v41, {f32(1 / 640)}, v41")
        self.bf16_round(41)
        self(f"v_add_f32 v41, {f32(1e-5)}, v41")
        self.bf16_round(41)
        self("v_sqrt_f32 v41, v41\ns_nop 0")
        self.bf16_round(41)
        self("v_rcp_f32 v41, v41")
        self.bf16_round(40)
        self("ds_bpermute_b32 v40, v47, v40\nds_bpermute_b32 v41, v47, v41")
        self.frag_norm()
        self.stamp(5, 2)
        self.jitter("h", 6)
        self.item_compute()
        self.lds_inc(C_ICNT, ret=True)
        self("s_mov_b32 s60, s10\nL_noitem:")
        self.stamp(1)
        self.stamp(6, 2)
        self.spin_lds(C_NONCE, 1, sleep=0)
        self("s_mov_b32 s92, s10")
        self.tags(236)
        self("s_cmp_lg_u32 s60, 3\ns_cbranch_scc1 L_nopub")
        for k in range(4):
            self(f"ds_read_b128 v[{8 + 4*k}:{11 + 4*k}], v229 offset:{L_ORED + 1024 * k}")
        self("""
            s_lshl_b32 s13, s61, 3
            s_add_u32 s13, s13, s73
            s_lshl_b32 s13, s13, 10
            s_waitcnt lgkmcnt(0)""")
        for e in range(4):
            self(f"v_add_f32 v{8 + e}, v{8 + e}, v{12 + e}\nv_add_f32 v{16 + e}, v{16 + e}, v{20 + e}")
        for e in range(4):
            self(f"v_add_f32 v{24 + e}, v{8 + e}, v{16 + e}")
        self.tag_data(24, 236)
        self(f"buffer_store_dwordx4 v[24:27], v229, s[44:47], s13 offen {o['qst']}\nL_nopub:")
        self.stamp(2)
        self.stamp(7, 2)
        self("""
            s_and_b32 s10, s95, 0x7fff
            s_flbit_i32_b32 s10, s10
            s_sub_u32 s11, 31, s10
            s_cmp_eq_u32 s72, 0
            s_cselect_b32 s11, 4, s11
            s_cmp_ge_u32 s72, 2
            s_cselect_b32 s11, 15, s11""")
        self.region_of("s11", "s68", "s69")
        self(f"""
            s_cmp_eq_u32 s72, 3
            s_cbranch_scc1 L_noq
            s_and_b32 s13, s68, 31
            s_lshl_b32 s13, s13, 5
            s_lshr_b32 s10, s68, 5
            s_add_u32 s13, s13, s10
            s_lshl_b32 s13, s13, 8
            v_lshlrev_b32 v47, 10, v4
            v_lshl_add_u32 v47, v3, 4, v47
            s_lshl_b32 s10, s72, 8
            v_add_u32 v46, s10, v233
            v_lshlrev_b32 v45, 8, v4
            v_sub_u32 v46, v46, v45""")
        self.spin_lds(C_MARK, 1, sleep=2)
        self("s_mov_b32 exec_hi, 0xffff")
        self.gather_tile("v47", "v46", o["qsleep"], False, L_Q)
        self.lds_inc(C_QRDY)
        self("L_noq:")
        if o["hprio"]:
            self("s_setprio 0")
        self.stamp(4)
        self.stamp(9, 2)
        self.tile_setup()
        self(f"""
            s_mov_b32 s96, -1
            s_mov_b32 s98, 0
            s_mov_b32 s100, -1
            s_mov_b32 s101, {((o["bias"] * 32) - o["gapr"] * 20) & 0xffffffff}
            s_cmp_eq_u32 s76, 0
            s_cselect_b32 s101, {((o["bias"] * 32) + o["gapr"] * 12) & 0xffffffff}, s101
            s_sub_u32 s99, s2, {8 * o["smp0"]}
            s_cmp_lt_u32 s99, 16
            s_cselect_b32 s99, s99, 64""")
        self.control(0)
        self.spin_lds(C_T, 1, sleep=16)
        self(f"""
            s_cmp_ge_u32 s56, 40
            s_cbranch_scc1 L_noffn
            s_lshl_b32 s75, s56, 2
            s_add_u32 s75, s75, s72
            s_lshl_b32 s75, s75, 9
            s_add_u32 s75, s75, {YP + 32 * 10240}
            s_add_u32 s13, s57, 32
            s_lshl_b32 s13, s13, 3
            s_add_u32 s13, s13, s72
            s_lshl_b32 s13, s13, 10
            s_cmp_eq_u32 s72, 3
            s_cbranch_scc1 L_fsync""")
        self.gather_tile("v229", "v233", 16, True, L_OBUF)
        self("L_fsync:\ns_waitcnt vmcnt(0)")
        self.jitter("h", 13)
        self.lds_inc(C_HS)
        self.spin_lds(C_HS, 4, sleep=4)
        self.fragments()
        self("s_waitcnt lgkmcnt(0)")
        self.project(False)
        self(f"""
            L_noffn:
            s_cmp_lg_u32 s76, 0
            s_cbranch_scc1 L_noproj
            s_lshl_b32 s10, s39, 2
            s_add_u32 s10, s10, s72
            s_lshl_b32 s10, s10, 9
            s_mul_i32 s75, s77, 10240
            s_add_u32 s75, s75, s10
            s_add_u32 s75, s75, {YP}
            s_and_b32 s13, s2, 7
            s_lshl_b32 s13, s13, {o["vsh"]}
            s_add_u32 s13, s13, {VR}
            v_lshlrev_b32 v9, {o["vsh"] + 3}, v2
            s_mov_b32 exec_hi, 0
            buffer_load_dwordx2 v[10:11], v9, s[44:47], s13 offen sc1
            s_waitcnt vmcnt(0)
            v_lshrrev_b32 v11, 1, v11
            v_xor_b32 v10, s92, v10
            v_bitop3_b32 v10, v10, v11, s7 bitop3:0xf6
            v_cmp_ne_u32 vcc, 0, v10
            s_mov_b32 exec_hi, -1
            s_cmp_eq_u64 vcc, 0
            s_cselect_b32 s58, 1, 0""")
        self("L_noproj:")
        self.stamp(5)
        self.stamp(10, 2)
        self.spin_lds(C_VOTE, 1, sleep=4, wide=True)
        self(f"""
            s_mov_b32 s59, s11""")
        self.prep(0)
        self.stamp(6)
        self.prep(1)
        self.stamp(7)
        self("s_cmp_lg_u32 s72, 3\ns_cbranch_scc1 L_pubo")
        self.control(o["sit"], check=False)
        self.scale()
        self.control(27, check=False, guard=True)
        if o["pf"] == 2:
            self("""
                s_cmp_ge_u32 s2, 16
                s_cbranch_scc1 L_nopf2
                s_getpc_b64 s[14:15]
                L_pf2pc:
                s_sub_u32 s14, s14, L_pf2pc-L_vflush
                s_subb_u32 s15, s15, 0
                v_lshlrev_b32 v9, 7, v2
                v_min_u32 v10, L_helper-L_vflush, v9
                v_add_u32 v9, L_pf2pc-L_vflush, v9
                v_min_u32 v9, L_table-L_vflush, v9
                global_load_dword v254, v10, s[14:15]
                global_load_dword v254, v9, s[14:15]
                L_nopf2:""")
        self.control(o['clast'], check=False)
        self("s_cmp_lg_u32 s76, 0\ns_cbranch_scc1 L_end")

        def across(r):
            self.rows4_reduce(r)
            for ctl in ("row_ror:4", "row_ror:8"):
                self(f"s_nop 1\nv_add_f32_dpp v{r}, v{r}, v{r} {ctl} row_mask:0xf bank_mask:0xf")
            self.bf16_round(r)

        self(f"""
            v_lshrrev_b32 v52, 2, v2
            v_mul_u32_u24 v52, 10240, v52
            v_and_b32 v5, 3, v2
            v_lshl_add_u32 v52, v5, 4, v52
            v_mul_u32_u24 v53, 1280, v4
            v_lshl_add_u32 v53, v5, 1, v53
            s_lshl_b32 s62, s39, 5
            s_add_u32 s62, s62, s77
            s_lshl_b32 s16, s62, 6
            s_add_u32 s16, s16, {YP}
            s_add_u32 s17, s16, {16 * 10240}
            s_add_u32 s18, s16, {32 * 10240}
            s_lshl_b32 s62, s62, 3
            buffer_load_ushort v54, v53, s[48:51], s62 offen""")
        for e in range(4):
            self(f"v_mov_b32 v{40 + e}, 0")
        self("s_mov_b32 exec_hi, 0")
        self.poll([(40, f"buffer_load_dwordx4 v[40:43], v52, s[44:47], s18 offen sc1 {NT(o, 'Y')}")], 16)
        self("s_mov_b32 exec_hi, -1")
        across(40)
        self("v_lshlrev_b32 v46, 16, v54")
        YL = [(8 + 4*i, f"buffer_load_dwordx4 v[{8 + 4*i}:{11 + 4*i}], v52, s[44:47], s{16 + i} offen sc1") for i in range(2)]
        trig = {"iss": (C_ISS, 4), "o1": (C_OCNT + 8, 1), "o4": (C_OCNT + 8, 4), "w": (C_WRDY, 1), "t15": (C_T + 120, 1),
                "t29": (C_T + 116, 1)}
        self.spin_lds(*trig[o["trig"]], sleep=o["tsleep"])
        self("s_setprio 3")
        if o["ytouch"] == 1:
            self("\n".join(ins for _, ins in YL))
        self.jitter("h", 12)
        self.tile_issue("s71", o["tdepth"])
        if o["ytouch"] == 2:
            self("\n".join(f"{ins} {NT(o, 'T')}" for _, ins in YL))
        self("s_waitcnt vmcnt(0)")
        self.lds_inc(C_WRDY)
        self.stamp(8)
        self("s_branch L_frag")
        self(f"""
            L_pubo:
            v_mov_b32 v52, 0
            v_mov_b32 v53, 0
            s_bcnt1_i32_b32 s10, s95
            s_add_u32 s10, s10, s72
            s_cmp_lt_u32 s10, 3
            s_cbranch_scc1 L_pubdone
            s_cmp_eq_u32 s72, 2
            s_cbranch_scc1 L_pubdone
            s_mul_i32 s10, s72, 6144
            v_add_u32 v40, s10, v229
            v_mov_b32 v42, v229
            s_lshl_b32 s10, s69, 3
            v_mov_b32 v45, s10""")
        self.partial_slot("s68", "s69", "s13")
        self.spin_lds(C_SC, 1, sleep=16, wide=True, addr="v45")
        self("s_mov_b32 s73, s11\nv_mov_b32 v44, v236\nv_mov_b32 v45, v237\nv_mov_b32 v46, v238\nv_mov_b32 v47, v239")
        self.spin_lds(C_OCNT, 4, sleep=8, addr="v231")
        self.spin_lds(C_T + 4 * o["pit"], 1, sleep=4)
        self.jitter("h", 11)
        self("s_branch L_pub\nL_pubdone:")
        self.stamp(8)
        self(f"""
            s_cmp_lg_u32 s76, 0
            s_cbranch_scc1 L_end
            s_mov_b32 s63, 0
            s_lshl_b32 s16, s77, 13
            s_lshl_b32 s10, s72, 8
            s_add_u32 s16, s16, s10
            s_add_u32 s16, s16, {OP}
            s_add_u32 s17, s16, 0x40000
            s_add_u32 s18, s16, 0x80000
            s_add_u32 s19, s16, 0xc0000
            s_cmp_ge_u32 s77, 22
            s_cselect_b32 s20, -1, 0
            v_lshlrev_b32 v47, 10, v4
            v_lshl_add_u32 v47, v3, 4, v47
            v_lshrrev_b32 v48, 1, v4
            v_mul_u32_u24 v48, 0x40800, v48
            v_sub_u32 v48, 0x41000, v48
            v_add_u32 v48, v48, v47
            v_lshlrev_b32 v44, 3, v3
            v_lshl_add_u32 v44, v4, 1, v44
            s_lshl_b32 s10, s72, 7
            v_add_u32 v44, s10, v44
            v_mov_b32 v24, 0
            v_mov_b32 v25, 0
            v_mov_b32 v26, 0
            v_mov_b32 v27, 0""")
        self.spin_lds(*trig[o["gtrig"]], sleep=o["tsleep"])
        self("s_setprio 3")
        if not o["g4"]:
            self.gather_o((0, 1), o["osleep"])
            if o["g3trig"]:
                self.spin_lds(*trig[o["g3trig"]], sleep=1)

        def early_fragments():
            self(f"""
                s_cmp_lg_u32 s63, 0
                s_cbranch_scc1 L_nofrag
                ds_read_b32 v6, v1 offset:{C_WRDY}
                s_waitcnt lgkmcnt(0)
                v_readfirstlane_b32 s63, v6
                s_cmp_eq_u32 s63, 0
                s_cbranch_scc1 L_nofrag""")
            self.fragments()
            self("L_nofrag:")

        self.gather_o((0, 1, 2, 3) if o["g4"] else (2, 3), o["psleep"], hook=early_fragments)
        self.stamp(9)
        self("s_cmp_lg_u32 s63, 0\ns_cbranch_scc1 L_proj\nL_fragwait:")
        self.spin_lds(C_WRDY, 1, sleep=o["wsleep"])
        self("L_frag:")
        self.fragments()
        self("L_proj:")
        self.jitter("h", 14)
        self.project(True)
        self.stamp(10)
        self("s_cmp_lg_u32 s72, 3\ns_cbranch_scc1 L_end")
        self.srd(52, 32, 5120)

        def result():
            for i in range(4):
                self(f"v_add_f32 v{8 + i}, v{8 + i}, v{12 + i}")
            across(8)
            self("v_add_f32 v8, v46, v8")
            self.bf16_round(8)
            self("v_add_f32 v8, v8, v40\nv_cvt_pk_bf16_f32 v8, v8, v8")

        self.poll(YL, o["psleep"], inner=result)
        self(f"""
            s_mov_b32 exec_lo, 0x000f000f
            s_mov_b32 exec_hi, 0x000f000f
            buffer_store_short v8, v53, s[52:55], s62 offen {o['outst']}""")
        self.stamp(9)

    def finish(self):
        self("L_end:")
        if self.o["stamps"]:
            self(f"""
                s_waitcnt vmcnt(0)
                s_memrealtime s[78:79]
                s_getreg_b32 s101, hwreg(HW_REG_XCC_ID)
                s_waitcnt lgkmcnt(0)
                s_mov_b32 s91, s78
                s_mov_b64 exec, 1
                s_lshl_b32 s10, s2, 3
                s_add_u32 s10, s10, s3
                s_lshl_b32 s10, s10, 6
                s_add_u32 s10, s10, {STAMPS}
                v_mov_b32 v5, s10""")
            for i in range(12):
                self(f"v_mov_b32 v{8 + i}, s{80 + i}")
            self("v_mov_b32 v20, s101\nv_mov_b32 v21, s59\nv_mov_b32 v22, s6\nv_mov_b32 v23, s76")
            for i in range(4):
                self(f"global_store_dwordx4 v5, v[{8 + 4*i}:{11 + 4*i}], s[36:37] offset:{16 * i}")
        if self.o["enc"]:
            wave, idx, mult = (int(x) for x in self.o["enc"].split("x"))
            if wave < 4:
                self("s_and_b32 s10, s2, 7\ns_cmp_lg_u32 s10, 3\ns_cbranch_scc1 L_exit")
            self(f"""
                s_cmp_lg_u32 s3, {wave}
                s_cbranch_scc1 L_exit
                s_sub_u32 s10, s{80 + idx}, s80
                s_mul_i32 s10, s10, {mult}
                s_min_u32 s10, s10, 40000
                s_add_u32 s10, s10, 20000
                L_encl:
                s_memrealtime s[78:79]
                s_waitcnt lgkmcnt(0)
                s_sub_u32 s11, s78, s80
                s_cmp_lt_u32 s11, s10
                s_cbranch_scc1 L_encl""")
        self("L_exit:\ns_endpgm")

    def build(self):
        head = open(f"cdna_kernels/{NAME}.s.ref").read().split("\n") if self.o["head"] else []
        out = [ln for ln in head if ln.startswith(";") and "@launch" not in ln][:14]
        out.append(f"; @launch grid=(256,1,1) block=(512,1,1) lds={LDS_BYTES}")
        out.append(DOC.strip("\n"))
        out += ['.amdgcn_target "amdgcn-amd-amdhsa--gfx950"', ".text", f".globl {NAME}_kernel", ".p2align 8",
                f".type {NAME}_kernel,@function", f"{NAME}_kernel:"]
        self.entry()
        self.streamer()
        self.helper()
        self.finish()
        out += self.L
        out += [".p2align 8", ".type L_table,@object", "L_table:"]
        T = row_table()
        for sig in range(2):
            for w in range(4):
                for g in range(8):
                    out.append("  .long " + ", ".join(str(T[sig][w][g][t] * 384) for t in range(8)))
        out.append(".size L_table, 2048")
        out += ['.section .rodata,"a"', ".p2align 6", f".amdhsa_kernel {NAME}_kernel",
                "  .amdhsa_next_free_vgpr 256", "  .amdhsa_next_free_sgpr 102", "  .amdhsa_accum_offset 256",
                "  .amdhsa_group_segment_fixed_size 0", "  .amdhsa_kernarg_size 88", "  .amdhsa_user_sgpr_count 2",
                "  .amdhsa_user_sgpr_kernarg_segment_ptr 1", "  .amdhsa_system_sgpr_workgroup_id_x 1",
                ".end_amdhsa_kernel"]
        return "\n".join(out) + "\n"


DOC = """
; A region is the 3 MiB of one (batch, head), cut into 16 windows of 192 KiB. Three pairs of workgroups share
; hand-off through d_ws carries a launch nonce that workgroup 0 puts into d_debug. The number of loads in
"""

DEFAULTS = dict(stamps=0, head=1, gap=40, numa="near", scst="sc1 nt", scld="sc1 nt", qst="sc1", asleep=8, qsleep=8,
                tsleep=1, psleep=0, fsleep=24, ntry=4, nsleep=2, enc="", series=0, ctl=2, gain=13000, gains=13000,
                cmax=15, bias=-40, tdepth=32, hsplit=0, ackfirst=0, oit=16, odelay=0, ost="sc1", old="sc1", agn=8, qdelay=0, sit=24, latepub=2, pdelay=0, osleep=4, cmaxs=12, pmin=1, ostart=1, tst="sc1", tld="sc1", outst="", pf=1, bar2=1, tat=1, wsleep=0, w0=3, trig="o1", gtrig="o4", tearly=0, tdepth0=40, vat=5, qat=11, mat=8, g4=0, g3trig="", rdelay=40, wadd=2, rot=0, tabe=2, tabsrc=0, ilv=0, warm=1, local=1, ytouch=2, gapr=55, early=0, edelay=0, esleep=8, pw=3, boost0=0, nominal=646, rlag=2, clast=29, nomn=3, cfirst=2, pest="avg", nsmp=16, stag=11, sst=1, skip="", hprio=1, hold=0, smp0=13, w2last=1, pit=30, tabw=1, scl="seg", nt="", cpack=2, cstr=640, vsh=3, fsh=3, fsc=1, gfrom=0, jit="", jseed=0, pcap=690)

if __name__ == "__main__":
    opt = dict(DEFAULTS)
    for kv in sys.argv[2:]:
        k, v = kv.split("=")
        assert k in opt, k
        opt[k] = int(v) if isinstance(DEFAULTS[k], int) else v.replace("+", " ")
    open(sys.argv[1], "w").write(Gen(opt).build())
```
